```python
import torch

def _softmax(x, axis=-1):
    return torch.softmax(x, dim=axis)
def _gelu(x):
    return torch.nn.functional.gelu(x, approximate="tanh")
def _silu(x):
    return torch.nn.functional.silu(x)
def _sigmoid(x):
    return torch.sigmoid(x)
def _layernorm(x, axis=-1, eps=1e-5):
    m = x.mean(dim=axis, keepdim=True)
    v = x.var(dim=axis, keepdim=True, unbiased=False)
    return (x - m) / torch.sqrt(v + eps)
def _scatter_add(tgt, idx, src, axis=0):
    return tgt.clone().index_add_(axis, idx, src)
def _segment_sum(src, seg, n):
    out = torch.zeros((n,) + src.shape[1:], dtype=src.dtype)
    return out.index_add_(0, seg, src)
def _pad(x, pw):
    flat = tuple(v for pair in reversed(pw) for v in pair)
    return torch.nn.functional.pad(x, flat)

kernel_name = 'gated_mix__linear_attn_block__spectral_gfnet__prompt'

def setup_inputs():

    _w = (lambda a: (lambda t: t.to(torch.bfloat16) if t.is_floating_point() else t)(torch.as_tensor(a)))
    def _A_setup():
        B, S, D = 1, 2048, 512
        return {
            "x": _w((lambda *s: torch.randn(*s, dtype=torch.bfloat16) * 0.05)(B, S, D)),
            "wqkv": _w((lambda *s: torch.randn(*s, dtype=torch.bfloat16) * 0.4)(D, 3 * D)),
            "wo": _w((lambda *s: torch.randn(*s, dtype=torch.bfloat16) * 0.05)(D, D)),
        }
    _A_in = _A_setup()

    def _B_setup():
        B, S, D = 1, 2048, 512
        Df = D // 2 + 1
        return {
            "x": _w((lambda *s: torch.randn(*s, dtype=torch.bfloat16) * 0.05)(B, S, D)),
            "w_r": _w((lambda *s: torch.randn(*s, dtype=torch.bfloat16) * 1.6)(S, Df) * 0.02),
            "w_i": _w((lambda *s: torch.randn(*s, dtype=torch.bfloat16) * 1.6)(S, Df) * 0.02),
        }
    _B_in = _B_setup()

    return {
        "A_x": _A_in["x"],
        "A_wqkv": _A_in["wqkv"],
        "A_wo": _A_in["wo"],
        "B_x": _B_in["x"],
        "B_w_r": _B_in["w_r"],
        "B_w_i": _B_in["w_i"],
        "gate_w": _w((lambda *s: torch.randn(*s, dtype=torch.bfloat16) * 0.05)(512) * 16.0),
    }

def reference(A_x, A_wqkv, A_wo, B_x, B_w_r, B_w_i, gate_w):
    def _A_ref(x, wqkv, wo):
        B, S, D = x.shape
        H = 32; Dh = D // H
        qkv = (lambda x, *d: x.permute(*d))((x @ wqkv).reshape(B, S, 3, H, Dh), 2, 0, 3, 1, 4)
        q, k, v = qkv[0], qkv[1], qkv[2]
        phi = lambda t: torch.where(t > 0, t + 1, torch.exp(t)) + 1e-6
        pq, pk = phi(q), phi(k)
        kv = torch.einsum("bhsd,bhse->bhde", pk, v)
        z = torch.einsum("bhsd->bhd", pk)
        num = torch.einsum("bhqd,bhde->bhqe", pq, kv)
        den = torch.einsum("bhqd,bhd->bhq", pq, z)[..., None] + 1e-6
        o = num / den
        return (lambda x, *d: x.permute(*d))(o, 0, 2, 1, 3).reshape(B, S, D) @ wo

    def _B_ref(x, w_r, w_i):
        B, S, D = x.shape
        X = (lambda x, axes=(-2,-1): torch.fft.rfft2(x.float(), dim=axes))(x, axes=(-2, -1))
        W = w_r + 1j * w_i
        X = X * W
        y = (lambda x, s, axes=(-2,-1): torch.fft.irfft2(x, s=s, dim=axes).to(torch.bfloat16))(X, (S, D), axes=(-2, -1))
        return y

    x = A_x
    g = _sigmoid((x * gate_w).sum(-1, keepdims=True))
    a = _A_ref(x, A_wqkv, A_wo)
    b = _B_ref(x, B_w_r, B_w_i)
    return g * a + (1 - g) * b
```

```python
import re

REG_RE = re.compile(r'(?<![\w.])([vas])(?:(\d+)\b|\[(\d+):(\d+)\])')
TRANS = ('v_exp_f32', 'v_log_f32', 'v_rcp_f32', 'v_rsq_f32', 'v_sqrt_f32', 'v_sin_f32', 'v_cos_f32', 'v_rcp_iflag_f32')

def regs_of(op):
    out = []
    for m in REG_RE.finditer(op):
        k = m.group(1)
        if m.group(2) is not None:
            out.append((k, int(m.group(2))))
        else:
            for i in range(int(m.group(3)), int(m.group(4)) + 1):
                out.append((k, i))
    if re.search(r'\bvcc\b', op): out += [('s', 106), ('s', 107)]
    if re.search(r'\bvcc_lo\b', op): out += [('s', 106)]
    if re.search(r'\bvcc_hi\b', op): out += [('s', 107)]
    if re.search(r'\bexec\b', op): out += [('s', 126), ('s', 127)]
    if re.search(r'\bm0\b', op): out += [('s', 124)]
    return out

def split_ops(s):
    ops, depth, cur = [], 0, ''
    for ch in s:
        if ch == '[': depth += 1
        if ch == ']': depth -= 1
        if ch == ',' and depth == 0:
            ops.append(cur.strip()); cur = ''
        else:
            cur += ch
    if cur.strip(): ops.append(cur.strip())
    return ops

def mfma_passes(mn):
    if '32x32x16' in mn or '32x32x8' in mn: return 8
    if '16x16x32' in mn or '16x16x16' in mn: return 4
    raise ValueError(mn)

class Asm:
    def __init__(self):
        self.lines = []
        self.ninst = 0
        self.reset()

    def reset(self):
        self.slot = 1000
        self.valu_w = {}
        self.trans_w = {}
        self.mfma_w = {}
        self.mfma_c = {}
        self.salu_m0 = -100
        self.store_r = {}
        self.vmq = []
        self.lgq = []

    def raw(self, text):
        self.lines.append(text)

    def comment(self, t):
        self.lines.append('    ; ' + t)

    def label(self, name, reset=True):
        self.lines.append(name + ':')
        if reset: self.reset()

    def _emit(self, text, slots=1):
        self.lines.append('    ' + text)
        self.slot += slots
        self.ninst += 1

    def nop(self, n):
        while n > 0:
            k = min(n, 16)
            self._emit(f's_nop {k-1}', k)
            n -= k

    def wait_vm(self, n):
        n = min(n, 63)
        if len(self.vmq) > n:
            self._emit(f's_waitcnt vmcnt({n})')
            self.vmq = self.vmq[len(self.vmq) - n:] if n > 0 else []

    def wait_lg(self, n):
        if any(e[2] for e in self.lgq): n = 0
        n = min(n, 15)
        if len(self.lgq) > n:
            self._emit(f's_waitcnt lgkmcnt({n})')
            self.lgq = self.lgq[len(self.lgq) - n:] if n > 0 else []

    def wait_vm_tag(self, tag):
        idx = [i for i, e in enumerate(self.vmq) if e[1] == tag]
        if idx: self.wait_vm(len(self.vmq) - 1 - idx[-1])

    def wait_lg_all(self): self.wait_lg(0)
    def wait_vm_all(self): self.wait_vm(0)

    def _need_waits(self, touched):
        t = set(touched)
        idx = [i for i, e in enumerate(self.vmq) if e[0] & t]
        if idx: self.wait_vm(len(self.vmq) - 1 - idx[-1])
        idx = [i for i, e in enumerate(self.lgq) if e[0] & t]
        if idx: self.wait_lg(len(self.lgq) - 1 - idx[-1])

    def I(self, text, tag=None):
        text = text.strip()
        mn, _, rest = text.partition(' ')
        ops = split_ops(rest)
        dst, src = [], []
        kind = None
        srcC = []
        if mn.startswith('v_mfma'):
            kind = 'mfma'; dst = regs_of(ops[0]); src = regs_of(ops[1]) + regs_of(ops[2]); srcC = regs_of(ops[3])
        elif mn.startswith('v_cmp'):
            kind = 'valu'; dst = regs_of(ops[0]); src = sum((regs_of(o) for o in ops[1:]), [])
        elif mn.startswith('v_permlane') and 'swap' in mn:
            kind = 'valu'; dst = regs_of(ops[0]) + regs_of(ops[1]); src = list(dst)
        elif mn.startswith('v_'):
            kind = 'valu'; dst = regs_of(ops[0]); src = sum((regs_of(o) for o in ops[1:]), [])
            if mn.startswith('v_fmac') or mn.startswith('v_accvgpr_write') and False: src += dst
            if 'dpp' in mn or 'row_' in text or 'quad_perm' in text: src += dst
            if mn.startswith('v_add_co') or mn.startswith('v_addc_co') or mn.startswith('v_sub_co'):
                dst += regs_of(ops[1])
        elif mn.startswith('buffer_load') or mn.startswith('global_load'):
            if re.search(r'\blds\b', rest) or '_lds_' in mn:
                kind = 'dma'; src = sum((regs_of(o) for o in ops), []) + [('s', 124)]
            else:
                kind = 'vload'; dst = regs_of(ops[0]); src = sum((regs_of(o) for o in ops[1:]), [])
        elif mn.startswith('buffer_store') or mn.startswith('global_store') or mn.startswith('buffer_atomic') or mn.startswith('global_atomic'):
            kind = 'vstore'; src = sum((regs_of(o) for o in ops), [])
        elif mn.startswith('ds_read') or mn.startswith('ds_bpermute') or mn.startswith('ds_swizzle') or mn.startswith('ds_permute'):
            kind = 'dsread'; dst = regs_of(ops[0]); src = sum((regs_of(o) for o in ops[1:]), [])
        elif mn.startswith('ds_'):
            kind = 'dswrite'; src = sum((regs_of(o) for o in ops), [])
        elif mn.startswith('s_load') or mn.startswith('s_memtime') or mn.startswith('s_buffer_load'):
            kind = 'smem'; dst = regs_of(ops[0]); src = sum((regs_of(o) for o in ops[1:]), [])
        elif mn in ('s_waitcnt', 's_barrier', 's_nop', 's_setprio', 's_endpgm', 's_sleep') or mn.startswith('s_branch') or mn.startswith('s_cbranch'):
            kind = 'ctl'
        elif mn.startswith('s_cmp') or mn.startswith('s_bitcmp'):
            kind = 'salu'; src = sum((regs_of(o) for o in ops), [])
        elif mn.startswith('s_'):
            kind = 'salu'; dst = regs_of(ops[0]); src = sum((regs_of(o) for o in ops[1:]), [])
            if 'saveexec' in mn: dst += [('s', 126), ('s', 127)]; src += [('s', 126), ('s', 127)]
            if mn.startswith('s_addk') or mn.startswith('s_mulk'): src += dst
        else:
            raise ValueError('unknown instr ' + text)

        self._need_waits(dst + src + srcC)
        if kind in ('vload', 'dma', 'vstore') and len(self.vmq) >= 63:
            self.wait_vm(62)
        if kind in ('dsread', 'dswrite') and len(self.lgq) >= 15:
            self.wait_lg(14)

        need = 0
        def req(s):
            nonlocal need
            need = max(need, s)
        allsrc = src + srcC
        if kind == 'mfma':
            p = mfma_passes(mn)
            for r in allsrc:
                if r in self.valu_w: req(self.valu_w[r] + 1 + 2)
            for r in src:
                if r in self.mfma_w:
                    s, pp, _ = self.mfma_w[r]; req(s + 1 + (8 if pp == 4 else 12))
            for r in srcC:
                if r in self.mfma_w:
                    s, pp, dt = self.mfma_w[r]
                    if dt == tuple(srcC) and pp == p: pass
                    else: req(s + 1 + (6 if pp == 4 else 10))
            for r in dst:
                if r in self.mfma_w and r not in srcC:
                    s, pp, dt = self.mfma_w[r]; req(s + 1 + (8 if pp == 4 else 12))
        if kind in ('valu', 'vload', 'dma', 'vstore', 'dsread', 'dswrite'):
            for r in src + dst:
                if r in self.mfma_w:
                    s, pp, _ = self.mfma_w[r]; req(s + 1 + (8 if pp == 4 else 12))
        if kind == 'valu':
            for r in dst:
                if r in self.mfma_c:
                    s, pp = self.mfma_c[r]; req(s + 1 + (3 if pp == 4 else 7))
                if r in self.store_r: req(self.store_r[r] + 1 + 2)
            for r in src:
                if r[0] == 's' and r in self.valu_w: req(self.valu_w[r] + 1 + 2)
                if r in self.trans_w and re.sub(r'_e(32|64)$', '', mn) not in TRANS: req(self.trans_w[r] + 1 + 1)
            if mn.startswith('v_readfirstlane') or mn.startswith('v_readlane'):
                for r in src:
                    if r[0] == 'v' and r in self.valu_w: req(self.valu_w[r] + 1 + 1)
                    if r[0] == 's' and r in self.valu_w: req(self.valu_w[r] + 1 + 4)
            if mn.startswith('v_permlane') or 'dpp' in mn or 'row_' in text or 'quad_perm' in text:
                for r in src:
                    if r in self.valu_w: req(self.valu_w[r] + 1 + 2)
        if kind in ('vload', 'dma', 'vstore'):
            for r in src:
                if r[0] == 's' and r in self.valu_w: req(self.valu_w[r] + 1 + 5)
        if kind in ('vload', 'dsread'):
            for r in dst:
                if r in self.store_r: req(self.store_r[r] + 1 + 1)
                if r in self.mfma_c:
                    s, pp = self.mfma_c[r]; req(s + 1 + (3 if pp == 4 else 7))
        if kind == 'dma': req(self.salu_m0 + 1 + 1)
        if kind in ('salu', 'smem'):
            for r in src:
                if r in self.valu_w: req(self.valu_w[r] + 1 + 1)
        if need > self.slot: self.nop(need - self.slot)

        cur = self.slot
        self._emit(text)
        for r in dst:
            self.valu_w.pop(r, None); self.trans_w.pop(r, None); self.mfma_w.pop(r, None)
        if kind == 'valu':
            for r in dst: self.valu_w[r] = cur
            if re.sub(r'_e(32|64)$', '', mn) in TRANS:
                for r in dst: self.trans_w[r] = cur
        if kind == 'mfma':
            for r in dst: self.mfma_w[r] = (cur, p, tuple(dst))
            for r in srcC: self.mfma_c[r] = (cur, p)
        if kind == 'salu' and ('s', 124) in dst: self.salu_m0 = cur
        if kind == 'vstore' and ('x3' in mn or 'x4' in mn):
            for r in regs_of(ops[0] if mn.startswith('buffer') else ops[1]): self.store_r[r] = cur
        if kind == 'vload': self.vmq.append((set(dst), tag))
        if kind in ('dma', 'vstore'): self.vmq.append((set(), tag))
        if kind == 'dsread': self.lgq.append((set(dst), tag, False))
        if kind == 'dswrite': self.lgq.append((set(), tag, False))
        if kind == 'smem': self.lgq.append((set(dst), tag, True))

    def drain_hazards(self):
        need = 0
        for r, (s, pp, _) in self.mfma_w.items(): need = max(need, s + 1 + (8 if pp == 4 else 12))
        for r, s in self.valu_w.items(): need = max(need, s + 1 + (5 if r[0] == 's' else 2))
        if need > self.slot: self.nop(need - self.slot)

    def barrier(self):
        self.wait_lg_all()
        self.I('s_barrier')

    def text(self):
        return '\n'.join(self.lines) + '\n'

class Pool:
    def __init__(self, kind, start, end):
        self.kind, self.cur, self.end, self.hi = kind, start, end, start
    def alloc(self, n=1, align=1):
        if n >= 2 and align < 2: align = 2
        if self.kind == 's' and n >= 4: align = max(align, 4)
        self.cur = (self.cur + align - 1) // align * align
        r = self.cur; self.cur += n
        assert self.cur <= self.end, f'out of {self.kind} regs'
        self.hi = max(self.hi, self.cur)
        return r
    def mark(self): return self.cur
    def release(self, m): self.cur = m

def v(r, n=1): return f'v{r}' if n == 1 else f'v[{r}:{r+n-1}]'
def a(r, n=1): return f'a{r}' if n == 1 else f'a[{r}:{r+n-1}]'
def s(r, n=1): return f's{r}' if n == 1 else f's[{r}:{r+n-1}]'
```

```python
from asmgen import *
from layout import *

LOG2E = 0x3fb8aa3b

def srd(A, sreg, ptr_lo, nbytes):
    A.I(f"s_mov_b32 s{sreg}, s{ptr_lo}")
    A.I(f"s_mov_b32 s{sreg+1}, s{ptr_lo+1}")
    A.I(f"s_mov_b32 s{sreg+2}, {hex(nbytes)}")
    A.I(f"s_mov_b32 s{sreg+3}, 0x00020000")

def split_pair(A, hi, lo, a_, b_, t0, t1, hi2=None, lo2=None):
    A.I(f"v_cvt_pk_bf16_f32 v{hi}, v{a_}, v{b_}")
    if hi2 is not None: A.I(f"v_cvt_pk_bf16_f32 v{hi2}, v{a_}, v{b_}")
    A.I(f"v_lshlrev_b32 v{t0}, 16, v{hi}")
    A.I(f"v_and_b32 v{t1}, 0xffff0000, v{hi}")
    A.I(f"v_sub_f32 v{t0}, v{a_}, v{t0}")
    A.I(f"v_sub_f32 v{t1}, v{b_}, v{t1}")
    A.I(f"v_cvt_pk_bf16_f32 v{lo}, v{t0}, v{t1}")
    if lo2 is not None: A.I(f"v_cvt_pk_bf16_f32 v{lo2}, v{t0}, v{t1}")

def kernel_wrap(name, body, vgpr, agpr=0, sgpr=100):
    acc = (vgpr + 3) // 4 * 4
    nfv = acc + agpr if agpr else vgpr
    code = f""".globl {name}
.p2align 8
.type {name},@function
{name}:
{body}"""
    desc = f""".p2align 6
.amdhsa_kernel {name}
  .amdhsa_next_free_vgpr {nfv}
  .amdhsa_next_free_sgpr {sgpr}
  .amdhsa_accum_offset {acc}
  .amdhsa_group_segment_fixed_size 0
  .amdhsa_kernarg_size 80
  .amdhsa_user_sgpr_count 2
  .amdhsa_user_sgpr_kernarg_segment_ptr 1
  .amdhsa_system_sgpr_workgroup_id_x 1
.end_amdhsa_kernel
"""
    return code, desc
```

```python
from common_k import *

LDS_B = 0
LDS_X = 98304
K1_LDS = 163840

def gen_k1():
    A = Asm(); I = A.I
    I("s_cmp_ge_u32 s2, 256")
    I("s_cbranch_scc1 K1_END")
    I("s_load_dwordx4 s[4:7], s[0:1], 0")
    I("s_load_dwordx4 s[8:11], s[0:1], 32")
    I("s_load_dwordx2 s[12:13], s[0:1], 48")
    I("s_load_dwordx2 s[14:15], s[0:1], 72")
    sJ, sT, sS1, sC0, sW = 16, 17, 18, 19, 20
    I("s_lshr_b32 s21, s2, 3")
    I(f"s_and_b32 s{sJ}, s21, 7")
    I(f"s_lshr_b32 s{sT}, s21, 3")
    I("s_and_b32 s21, s2, 7")
    I(f"s_lshl_b32 s{sS1}, s21, 2")
    I(f"s_add_u32 s{sS1}, s{sS1}, s{sT}")
    I(f"s_add_u32 s{sC0}, s{sT}, s{sJ}")
    I(f"s_and_b32 s{sC0}, s{sC0}, 3")
    I("v_lshrrev_b32 v1, 6, v0")
    I("v_and_b32 v0, 63, v0")
    I(f"v_readfirstlane_b32 s{sW}, v1")
    X_, WQ_, WR_, WI_, GW_, WS_ = 24, 28, 32, 36, 40, 44
    srd(A, X_, 4, 2097152)
    srd(A, WQ_, 6, 1572864)
    srd(A, WR_, 8, 1052672)
    srd(A, WI_, 10, 1052672)
    srd(A, GW_, 12, 1024)
    srd(A, WS_, 14, WS_BYTES)
    I(f"s_cmp_ge_u32 s{sW}, 4")
    A.drain_hazards()
    I("s_cbranch_scc1 K1_HELPER")

    P = Pool('v', 1, 128)
    vG, vM = P.alloc(), P.alloc()
    I(f"v_lshrrev_b32 v{vG}, 4, v0")
    I(f"v_and_b32 v{vM}, 15, v0")
    def wtask_issue(n, regs):
        (ld, vaddrP, vaddrO) = regs
        I("s_lshl_b32 s48, s2, 2")
        I(f"s_add_u32 s48, s48, s{sW}")
        if n: I(f"s_add_u32 s48, s48, {1024*n}")
        sb = 50 + 8 * n
        I(f"s_lshr_b32 s{sb}, s48, 6")
        I(f"s_bfe_u32 s{sb+1}, s48, 0x30003")
        I(f"s_and_b32 s{sb+2}, s48, 7")
        I(f"s_lshl_b32 s49, s{sb+1}, 8")
        I(f"s_add_u32 s49, s49, s{sb}")
        tk1, tkm = P.alloc(), P.alloc()
        I(f"v_lshl_add_u32 v{tk1}, v{vG}, 6, s49")
        I(f"v_sub_u32 v{tkm}, 2048, v{tk1}")
        I(f"v_and_b32 v{tkm}, 2047, v{tkm}")
        I(f"s_cmp_ge_u32 s{sb+2}, 4")
        I(f"s_cselect_b64 s[{sb+4}:{sb+5}], -1, 0")
        I(f"v_cndmask_b32 v{vaddrP}, v{tk1}, v{tkm}, s[{sb+4}:{sb+5}]")
        I(f"v_cndmask_b32 v{vaddrO}, v{tkm}, v{tk1}, s[{sb+4}:{sb+5}]")
        I(f"v_mul_u32_u24 v{vaddrP}, 514, v{vaddrP}")
        I(f"v_mul_u32_u24 v{vaddrO}, 514, v{vaddrO}")
        I(f"s_lshl_b32 s49, s{sb+2}, 6")
        I(f"v_add_u32 v{tk1}, s49, v{vM}")
        I(f"v_sub_u32 v{tkm}, 464, v{tk1}")
        I(f"v_cndmask_b32 v{tkm}, v{tk1}, v{tkm}, s[{sb+4}:{sb+5}]")
        I(f"v_lshl_add_u32 v{vaddrP}, v{tkm}, 1, v{vaddrP}")
        I(f"v_lshl_add_u32 v{vaddrO}, v{tkm}, 1, v{vaddrO}")
        I(f"s_cselect_b32 s49, 96, 0")
        I(f"v_add_u32 v{vaddrO}, s49, v{vaddrO}")
        for i in range(4):
            I(f"buffer_load_ushort v{ld+i}, v{vaddrP}, s[{WR_}:{WR_+3}], 0 offen offset:{32*i}")
            I(f"buffer_load_ushort v{ld+4+i}, v{vaddrP}, s[{WI_}:{WI_+3}], 0 offen offset:{32*i}")
        I(f"buffer_load_ushort v{ld+8}, v{vaddrO}, s[{WR_}:{WR_+3}], 0 offen")
        I(f"buffer_load_ushort v{ld+9}, v{vaddrO}, s[{WI_}:{WI_+3}], 0 offen")
    def wtask_finish(n, regs):
        (ld, vaddrP, vaddrO) = regs
        sb = 50 + 8 * n
        m = P.mark()
        pk = P.alloc(4, 4); o = P.alloc(4, 4); t0, t1, t2, t3 = P.alloc(), P.alloc(), P.alloc(), P.alloc()
        for i in range(4):
            I(f"v_lshl_or_b32 v{pk+i}, v{ld+4+i}, 16, v{ld+i}")
        for i in range(4):
            I(f"v_cndmask_b32 v{o+i}, v{pk+i}, v{pk+3-i}, s[{sb+4}:{sb+5}]")
        I(f"v_lshlrev_b32 v{t0}, 16, v{o}")
        I(f"v_and_b32 v{t1}, 0xffff0000, v{o}")
        I(f"v_lshlrev_b32 v{t2}, 16, v{ld+8}")
        I(f"v_lshlrev_b32 v{t3}, 16, v{ld+9}")
        I(f"v_add_f32 v{t0}, v{t0}, v{t2}")
        I(f"v_sub_f32 v{t1}, v{t1}, v{t3}")
        I(f"v_mul_f32 v{t0}, 0.5, v{t0}")
        I(f"v_mul_f32 v{t1}, 0.5, v{t1}")
        I(f"v_cvt_pk_bf16_f32 v{t0}, v{t0}, v{t1}")
        I(f"s_and_b32 s49, s{sb+2}, 3")
        I(f"v_or_b32 v{t1}, s49, v{vM}")
        I(f"v_cmp_eq_u32 vcc, 0, v{t1}")
        I(f"v_cndmask_b32 v{o}, v{o}, v{t0}, vcc")
        I(f"s_and_b32 s49, s{sb+4}, 0x80000000")
        for i in range(4):
            I(f"v_xor_b32 v{o+i}, s49, v{o+i}")
        I(f"v_lshlrev_b32 v{t0}, 12, v{vM}")
        I(f"v_lshl_add_u32 v{t0}, v{vG}, 4, v{t0}")
        I(f"s_lshl_b32 s49, s{sb}, 16")
        I(f"s_lshl_b32 s48, s{sb+2}, 9")
        I(f"s_add_u32 s49, s49, s48")
        I(f"s_lshl_b32 s48, s{sb+1}, 6")
        I(f"s_add_u32 s49, s49, s48")
        I(f"s_add_u32 s49, s49, {OFF_WEFF}")
        I(f"buffer_store_dwordx4 v[{o}:{o+3}], v{t0}, s[{WS_}:{WS_+3}], s49 offen")
        P.release(m)
    mk = P.mark()
    wregs = [(P.alloc(10), P.alloc(), P.alloc()) for _ in range(3)]
    wtask_issue(0, wregs[0]); wtask_issue(1, wregs[1])
    I("s_cmp_ge_u32 s2, 16")
    A.drain_hazards()
    I("s_cbranch_scc1 K1_NOW3")
    vmq_save = list(A.vmq)
    wtask_issue(2, wregs[2]); wtask_finish(2, wregs[2])
    A.wait_vm_all(); A.drain_hazards()
    A.label("K1_NOW3", reset=True)
    A.vmq = vmq_save
    wtask_finish(0, wregs[0]); wtask_finish(1, wregs[1])
    P.release(mk)
    aaddr = [P.alloc() for _ in range(4)]
    baddr = [P.alloc() for _ in range(2)]
    t0, t1 = P.alloc(), P.alloc()
    I(f"s_lshl_b32 s48, s{sC0}, 14")
    I(f"s_add_u32 s48, s48, {LDS_X}")
    I(f"v_lshl_add_u32 v{t0}, v{vM}, 8, s48")
    for ks in range(4):
        I(f"v_add_u32 v{t1}, {4*ks}, v{vG}")
        I(f"v_xor_b32 v{t1}, v{t1}, v{vM}")
        I(f"v_lshl_add_u32 v{aaddr[ks]}, v{t1}, 4, v{t0}")
    I(f"v_bfe_u32 v{t0}, v0, 2, 2")
    I(f"v_and_b32 v{t1}, 1, v{vG}")
    I(f"v_lshl_or_b32 v{t1}, v{t1}, 2, v{t0}")
    I(f"v_xor_b32 v{t1}, s{sW}, v{t1}")
    I(f"v_lshl_add_u32 v{t0}, v{vG}, 3, v{t0}")
    I(f"v_lshlrev_b32 v{t0}, 8, v{t0}")
    I(f"v_lshl_add_u32 v{t0}, v{t1}, 5, v{t0}")
    I(f"v_and_b32 v{t1}, 3, v0")
    I(f"v_lshl_add_u32 v{baddr[0]}, v{t1}, 3, v{t0}")
    I(f"v_xor_b32 v{baddr[1]}, 0x80, v{baddr[0]}")
    acc = [[P.alloc(4, 4) for seg in range(2)] for mt in range(4)]
    for mt in range(4):
        for seg in range(2):
            for i in range(4): I(f"v_mov_b32 v{acc[mt][seg]+i}, 0")
    af = [[P.alloc(4, 4) for mt in range(4)] for _ in range(2)]
    bf = [[P.alloc(4, 4) for seg in range(2)] for _ in range(2)]
    def reads(ks, buf):
        for seg in range(2):
            for half in range(2):
                I(f"ds_read_b64_tr_b16 v[{bf[buf][seg]+2*half}:{bf[buf][seg]+2*half+1}], v{baddr[seg]} offset:{ks*8192+half*1024}")
        for mt in range(4):
            I(f"ds_read_b128 v[{af[buf][mt]}:{af[buf][mt]+3}], v{aaddr[ks]} offset:{mt*4096}")
    for ci in range(4):
        A.barrier()
        reads(0, 0)
        for ks in range(4):
            buf = ks & 1
            if ks < 3: reads(ks + 1, buf ^ 1)
            for mt in range(4):
                for seg in range(2):
                    c = acc[mt][seg]
                    I(f"v_mfma_f32_16x16x32_bf16 v[{c}:{c+3}], v[{af[buf][mt]}:{af[buf][mt]+3}], v[{bf[buf][seg]}:{bf[buf][seg]+3}], v[{c}:{c+3}]")
        if ci < 3:
            I(f"s_add_u32 s48, s{sC0}, {ci+1}")
            I(f"s_and_b32 s48, s48, 3")
            I(f"s_cmp_eq_u32 s48, 0")
            I(f"s_movk_i32 s49, 16384")
            I(f"s_cselect_b32 s48, {hex(-49152 & 0xffffffff)}, s49")
            for ks in range(4): I(f"v_add_u32 v{aaddr[ks]}, s48, v{aaddr[ks]}")
            d = 32768 if ci < 2 else (-65536 & 0xffffffff)
            for seg in range(2): I(f"v_add_u32 v{baddr[seg]}, {hex(d)}, v{baddr[seg]}")
    pkq = [af[0][0], af[0][1]]; vq = [af[0][2], af[0][3]]; ones = af[1][0]
    kvacc, zacc = af[1][1], af[1][2]
    ta, tb, tc, td = bf[0][0], bf[0][0]+1, bf[0][0]+2, bf[0][0]+3
    for i in range(4):
        I(f"v_mov_b32 v{ones+i}, 0x3f803f80")
        I(f"v_mov_b32 v{kvacc+i}, 0")
        I(f"v_mov_b32 v{zacc+i}, 0")
    I(f"s_mov_b32 s48, {hex(LOG2E)}")
    for mt in range(4):
        for pr in range(2):
            r0 = acc[mt][0] + 2 * pr
            dstp = pkq[mt >> 1] + 2 * (mt & 1) + pr
            dstv = vq[mt >> 1] + 2 * (mt & 1) + pr
            I(f"v_cvt_pk_bf16_f32 v{dstv}, v{acc[mt][1]+2*pr}, v{acc[mt][1]+2*pr+1}")
            I(f"v_cvt_pk_bf16_f32 v{tc}, v{r0}, v{r0+1}")
            I(f"v_lshlrev_b32 v{ta}, 16, v{tc}")
            I(f"v_and_b32 v{tb}, 0xffff0000, v{tc}")
            for (x_, y_) in ((ta, tc), (tb, td)):
                I(f"v_min_f32 v{y_}, 0, v{x_}")
                I(f"v_mul_f32 v{y_}, s48, v{y_}")
                I(f"v_exp_f32 v{y_}, v{y_}")
                I(f"v_max_f32 v{x_}, 0, v{x_}")
                I(f"v_add_f32 v{x_}, v{x_}, v{y_}")
                I(f"v_add_f32 v{x_}, 0x358637bd, v{x_}")
            I(f"v_cvt_pk_bf16_f32 v{dstp}, v{ta}, v{tb}")
    for h2 in range(2):
        I(f"v_mfma_f32_16x16x32_bf16 v[{kvacc}:{kvacc+3}], v[{vq[h2]}:{vq[h2]+3}], v[{pkq[h2]}:{pkq[h2]+3}], v[{kvacc}:{kvacc+3}]")
        I(f"v_mfma_f32_16x16x32_bf16 v[{zacc}:{zacc+3}], v[{ones}:{ones+3}], v[{pkq[h2]}:{pkq[h2]+3}], v[{zacc}:{zacc+3}]")
    I(f"s_lshl_b32 s48, s{sJ}, 2")
    I(f"s_add_u32 s48, s48, s{sW}")
    I(f"s_lshl_b32 s49, s48, 15")
    I(f"s_lshl_b32 s50, s{sS1}, 10")
    I(f"s_add_u32 s49, s49, s50")
    I(f"s_add_u32 s49, s49, {OFF_KVP}")
    I(f"v_lshlrev_b32 v{ta}, 4, v0")
    I(f"buffer_store_dwordx4 v[{kvacc}:{kvacc+3}], v{ta}, s[{WS_}:{WS_+3}], s49 offen")
    I(f"s_lshl_b32 s49, s{sS1}, 11")
    I(f"s_lshl_b32 s50, s48, 6")
    I(f"s_add_u32 s49, s49, s50")
    I(f"s_add_u32 s49, s49, {OFF_ZP}")
    I(f"v_lshlrev_b32 v{tb}, 2, v{vM}")
    I("s_mov_b64 exec, 0xffff")
    I(f"buffer_store_dword v{zacc}, v{tb}, s[{WS_}:{WS_+3}], s49 offen")
    I("s_endpgm")
    hi_g = P.hi

    A.label("K1_HELPER")
    P = Pool('v', 1, 256)
    sH = 21
    I(f"s_sub_u32 s{sH}, s{sW}, 4")
    vG, vM = P.alloc(), P.alloc()
    I(f"v_lshrrev_b32 v{vG}, 4, v0")
    I(f"v_and_b32 v{vM}, 15, v0")
    vxo, vbo, t0, t1, t2, t3 = [P.alloc() for _ in range(6)]
    I(f"s_lshl_b32 s48, s{sH}, 2")
    I(f"v_add_u32 v{t0}, s48, v{vG}")
    I(f"v_xor_b32 v{t0}, v{t0}, v{vM}")
    I(f"v_lshlrev_b32 v{t0}, 4, v{t0}")
    I(f"v_lshl_add_u32 v{vxo}, v{vG}, 15, v{t0}")
    I(f"s_lshr_b32 s48, s{sH}, 1")
    I(f"s_lshl_b32 s48, s48, 2")
    I(f"v_or_b32 v{t0}, s48, v{vG}")
    I(f"v_lshrrev_b32 v{t1}, 1, v{vM}")
    I(f"v_xor_b32 v{t0}, v{t0}, v{t1}")
    I(f"v_lshrrev_b32 v{t1}, 2, v{t0}")
    I(f"v_and_b32 v{t0}, 3, v{t0}")
    I(f"v_lshlrev_b32 v{t0}, 5, v{t0}")
    I(f"v_lshl_add_u32 v{t0}, v{t1}, 10, v{t0}")
    I(f"v_and_b32 v{t1}, 1, v{vM}")
    I(f"v_lshl_add_u32 v{t0}, v{t1}, 4, v{t0}")
    I(f"v_mul_u32_u24 v{t1}, 3072, v{vG}")
    I(f"v_add3_u32 v{vbo}, v{t0}, v{t1}, 1024") if False else None
    I(f"v_add_u32 v{vbo}, v{t0}, v{t1}")
    I(f"v_add_u32 v{vbo}, 1024, v{vbo}")
    stage = P.alloc(32, 4)
    def chunk_idx(ci, sdst):
        I(f"s_add_u32 s{sdst}, s{sC0}, {ci}")
        I(f"s_and_b32 s{sdst}, s{sdst}, 3")
    def issue_x(ci, tag):
        chunk_idx(ci, 48)
        I(f"s_lshl_b32 s49, s48, 8")
        I(f"s_lshl_b32 s50, s{sS1}, 10")
        I(f"s_add_u32 s49, s49, s50")
        I(f"s_lshl_b32 s50, s{sH}, 17")
        I(f"s_add_u32 s49, s49, s50")
        I(f"s_lshl_b32 s50, s48, 14")
        I(f"s_lshl_b32 s51, s{sH}, 10")
        I(f"s_add_u32 s50, s50, s51")
        I(f"s_add_u32 s50, s50, {LDS_X}")
        for i in range(4):
            I(f"s_mov_b32 m0, s50")
            if i < 3: I(f"s_add_u32 s50, s50, 4096")
            I(f"buffer_load_dwordx4 v{vxo}, s[{X_}:{X_+3}], s49 offen lds", tag=tag)
            if i < 3: I(f"s_add_u32 s49, s49, {4*131072}")
    def issue_b(ci, tag):
        chunk_idx(ci, 48)
        I(f"s_lshl_b32 s49, s48, 5")
        I(f"s_add_u32 s49, s49, s{sH}")
        I(f"s_mul_i32 s49, s49, 12288")
        I(f"s_lshl_b32 s50, s{sJ}, 7")
        I(f"s_add_u32 s49, s49, s50")
        I(f"s_lshl_b32 s50, s{sH}, 10")
        if ci: I(f"s_add_u32 s50, s50, {LDS_B + 32768*ci}")
        for i in range(8):
            if ci < 3:
                I(f"s_mov_b32 m0, s50")
                if i < 7: I(f"s_add_u32 s50, s50, 4096")
                I(f"buffer_load_dwordx4 v{vbo}, s[{WQ_}:{WQ_+3}], s49 offen lds", tag=tag)
            else:
                I(f"buffer_load_dwordx4 v[{stage+4*i}:{stage+4*i+3}], v{vbo}, s[{WQ_}:{WQ_+3}], s49 offen", tag=tag)
            if i < 7: I(f"s_add_u32 s49, s49, {4*12288}")
    gwr = P.alloc(8, 4)
    issue_x(0, 'c0'); issue_b(0, 'c0')
    I(f"v_and_b32 v{t0}, 31, v0")
    I(f"v_lshlrev_b32 v{t0}, 5, v{t0}")
    I(f"buffer_load_dwordx4 v[{gwr}:{gwr+3}], v{t0}, s[{GW_}:{GW_+3}], 0 offen")
    I(f"buffer_load_dwordx4 v[{gwr+4}:{gwr+7}], v{t0}, s[{GW_}:{GW_+3}], 0 offen offset:16")
    issue_x(1, 'c1'); issue_b(1, 'c1')
    tr1 = [[P.alloc(4, 4) for hl in range(2)] for u in range(2)]
    vP0, vP1 = P.alloc(), P.alloc()
    I(f"v_lshrrev_b32 v{t0}, 1, v{vM}")
    I(f"s_lshl_b32 s48, s{sH}, 3")
    I(f"v_add_u32 v{t0}, s48, v{t0}")
    I(f"v_and_b32 v{t1}, 1, v{vM}")
    I(f"v_mul_u32_u24 v{vP0}, s{sS1}, v{t0}")
    I(f"v_lshl_add_u32 v{vP0}, v{t1}, 9, v{vP0}")
    I(f"v_lshlrev_b32 v{vP1}, 5, v{t0}")
    I(f"v_lshl_or_b32 v{t0}, v{t0}, 1, v{t1}")
    I(f"v_cmp_eq_u32 vcc, 1, v{t0}")
    I(f"v_mov_b32 v{t1}, 1024")
    I(f"v_cndmask_b32 v{vP1}, v{vP1}, v{t1}, vcc")
    I(f"v_cndmask_b32 v{vP0}, v{vP0}, 0, vcc")
    I(f"v_lshlrev_b32 v{t0}, 3, v{vG}")
    I(f"v_mad_u32_u24 v{vP0}, v{t0}, v{vP1}, v{vP0}")
    I(f"v_cvt_f32_u32 v{vP0}, v{vP0}")
    I(f"v_cvt_f32_u32 v{vP1}, v{vP1}")
    I(f"v_mul_f32 v{vP0}, 0x3a000000, v{vP0}")
    I(f"v_mul_f32 v{vP1}, 0x3a000000, v{vP1}")
    sK = 52
    import struct
    def f32(x): return hex(struct.unpack('<I', struct.pack('<f', x))[0])
    def phase(dst, mult, step, base):
        if mult == 0:
            I(f"v_fract_f32 v{dst}, v{base}")
        else:
            I(f"s_mov_b32 s{sK}, {f32(float(mult))}")
            I(f"v_fma_f32 v{dst}, s{sK}, v{step}, v{base}")
            I(f"v_fract_f32 v{dst}, v{dst}")
    for u in range(2):
        for pr in range(4):
            for k_, tt in ((0, t0), (1, t1)):
                phase(tt, 32 * u + 2 * pr + k_, vP1, vP0)
                I(f"v_cos_f32 v{tt}, v{tt}")
            split_pair(A, tr1[u][0] + pr, tr1[u][1] + pr, t0, t1, t2, t3)
    A.wait_vm_tag('c0'); A.barrier()
    issue_x(2, 'c2'); issue_x(3, 'c2'); issue_b(2, 'c2'); issue_b(3, 'c3')
    tr2 = [[P.alloc(4, 4) for cs in range(2)] for e in range(4)]
    I(f"s_lshl_b32 s48, s{sJ}, 2")
    I(f"v_lshl_add_u32 v{t0}, v{vG}, 5, s48")
    I(f"v_mul_u32_u24 v{vP0}, v{t0}, v{vM}")
    I(f"v_cvt_f32_u32 v{vP0}, v{vP0}")
    I(f"v_mul_f32 v{vP0}, 0x3b000000, v{vP0}")
    I(f"v_cvt_f32_u32 v{vP1}, v{vM}")
    I(f"v_mul_f32 v{vP1}, 0x3b000000, v{vP1}")
    t4_, t5_ = P.alloc(), P.alloc()
    for e in range(4):
        for pr in range(2):
            phase(t0, e + 128 * (2 * pr), vP1, vP0)
            phase(t1, e + 128 * (2 * pr + 1), vP1, vP0)
            I(f"v_sin_f32 v{t4_}, v{t0}")
            I(f"v_sin_f32 v{t5_}, v{t1}")
            I(f"v_cos_f32 v{t0}, v{t0}")
            I(f"v_cos_f32 v{t1}, v{t1}")
            split_pair(A, tr2[e][0] + pr, tr2[e][0] + 2 + pr, t0, t1, t2, t3)
            split_pair(A, tr2[e][1] + pr, tr2[e][1] + 2 + pr, t4_, t5_, t2, t3)
    A.wait_vm_tag('c1'); A.barrier()
    A.wait_vm_tag('c2'); A.barrier()
    I(f"s_lshl_b32 s48, s{sH}, 10")
    I(f"v_lshl_add_u32 v{t0}, v0, 4, s48")
    for i in range(8):
        I(f"ds_write_b128 v{t0}, v[{stage+4*i}:{stage+4*i+3}] offset:{LDS_B + 4096*i}")
    A.barrier()
    a0, a1 = P.alloc(), P.alloc()
    I(f"v_bfe_u32 v{t0}, v0, 2, 2")
    I(f"v_lshl_add_u32 v{t0}, v{vG}, 3, v{t0}")
    I(f"v_and_b32 v{t1}, 3, v0")
    I(f"s_lshr_b32 s48, s{sJ}, 1")
    I(f"v_lshl_add_u32 v{t1}, v{t1}, 2, s48")
    I(f"v_and_b32 v{t2}, 15, v{t0}")
    I(f"v_xor_b32 v{t1}, v{t1}, v{t2}")
    I(f"v_lshlrev_b32 v{t1}, 4, v{t1}")
    I(f"v_lshl_add_u32 v{t1}, v{t0}, 8, v{t1}")
    I(f"s_and_b32 s48, s{sJ}, 1")
    I(f"s_lshl_b32 s48, s48, 3")
    I(f"s_add_u32 s48, s48, {LDS_X}")
    I(f"v_add_u32 v{a0}, s48, v{t1}")
    I(f"v_xor_b32 v{a1}, 64, v{a0}")
    xa = [[stage + 8 * tt + 4 * u for u in range(2)] for tt in range(4)]
    d1 = [P.alloc(4, 4) for tt in range(4)]
    for tt in range(4):
        for u in range(2):
            I(f"ds_read_b64_tr_b16 v[{xa[tt][u]}:{xa[tt][u]+1}], v{a0} offset:{tt*16384+u*8192}")
            I(f"ds_read_b64_tr_b16 v[{xa[tt][u]+2}:{xa[tt][u]+3}], v{a1} offset:{tt*16384+u*8192+1024}")
    for tt in range(4):
        for i in range(4): I(f"v_mov_b32 v{d1[tt]+i}, 0")
    for tt in range(4):
        for u in range(2):
            for hl in range(2):
                I(f"v_mfma_f32_16x16x32_bf16 v[{d1[tt]}:{d1[tt]+3}], v[{xa[tt][u]}:{xa[tt][u]+3}], v[{tr1[u][hl]}:{tr1[u][hl]+3}], v[{d1[tt]}:{d1[tt]+3}]")
    dh = [P.alloc(4, 4) for e in range(4)]; dl = [P.alloc(4, 4) for e in range(4)]
    pc = [P.alloc(4, 4) for e in range(4)]; ps = [P.alloc(4, 4) for e in range(4)]
    for e in range(4):
        for i in range(4):
            I(f"v_mov_b32 v{pc[e]+i}, 0"); I(f"v_mov_b32 v{ps[e]+i}, 0")
    for e in range(4):
        for pr in range(2):
            split_pair(A, dh[e] + pr, dl[e] + pr, d1[2*pr] + e, d1[2*pr+1] + e, t2, t3, hi2=dh[e] + 2 + pr, lo2=dl[e] + 2 + pr)
        for (acc_, cs) in ((pc[e], 0), (ps[e], 1)):
            for dd in (dh[e], dl[e]):
                I(f"v_mfma_f32_16x16x32_bf16 v[{acc_}:{acc_+3}], v[{dd}:{dd+3}], v[{tr2[e][cs]}:{tr2[e][cs]+3}], v[{acc_}:{acc_+3}]")
    re = [[stage + 4 * ks2 + e for e in range(4)] for ks2 in range(3)]
    im = [[stage + 12 + 4 * ks2 + e for e in range(4)] for ks2 in range(3)]
    I(f"s_cmp_eq_u32 s{sH}, 0")
    I(f"s_cselect_b64 s[54:55], 0xffff, 0")
    I(f"v_cvt_f32_u32 v{t0}, s{sS1}")
    I(f"v_mul_f32 v{t0}, 0x3c800000, v{t0}")
    I(f"v_sin_f32 v{t1}, v{t0}")
    I(f"v_cos_f32 v{t0}, v{t0}")
    for e in range(4):
        for ks2 in range(2):
            I(f"v_add_f32 v{re[ks2][e]}, v{pc[e]+2*ks2}, v{ps[e]+2*ks2+1}")
            I(f"v_sub_f32 v{im[ks2][e]}, v{pc[e]+2*ks2+1}, v{ps[e]+2*ks2}")
        I(f"v_cndmask_b32 v{re[0][e]}, v{re[0][e]}, v{pc[e]}, s[54:55]")
        I(f"v_cndmask_b32 v{im[0][e]}, v{im[0][e]}, -v{ps[e]}, s[54:55]")
        I(f"v_mul_f32 v{t2}, v{ps[e]+1}, v{t1}")
        I(f"v_fma_f32 v{re[2][e]}, v{pc[e]+1}, v{t0}, -v{t2}")
        I(f"v_mul_f32 v{t3}, v{ps[e]+1}, v{t0}")
        I(f"v_fma_f32 v{im[2][e]}, -v{pc[e]+1}, v{t1}, -v{t3}")
    gr = [(dh[0], dh[1]), (dh[2], dh[3]), (dl[0], dl[1])]
    vaddr = P.alloc()
    I(f"v_lshl_add_u32 v{vaddr}, v{vG}, 5, v{vM}")
    I(f"v_lshlrev_b32 v{vaddr}, 13, v{vaddr}")
    I(f"s_lshl_b32 s48, s{sH}, 20")
    I(f"s_lshl_b32 s49, s{sS1}, 8")
    I(f"s_add_u32 s48, s48, s49")
    I(f"s_lshl_b32 s49, s{sJ}, 5")
    I(f"s_add_u32 s48, s48, s49")
    if OFF_T2: I(f"s_add_u32 s48, s48, {OFF_T2}")
    I(f"s_add_u32 s49, s48, {16*8192}")
    I(f"s_add_u32 s50, s48, {512*8192}")
    for ks2 in range(3):
        gh, gl = gr[ks2]
        for pr in range(2):
            split_pair(A, gh + pr, gl + pr, re[ks2][2*pr], re[ks2][2*pr+1], t2, t3)
            split_pair(A, gh + 2 + pr, gl + 2 + pr, im[ks2][2*pr], im[ks2][2*pr+1], t2, t3)
        if ks2 < 2:
            I(f"buffer_store_dwordx4 v[{gh}:{gh+3}], v{vaddr}, s[{WS_}:{WS_+3}], s{48+ks2} offen")
            I(f"buffer_store_dwordx4 v[{gl}:{gl+3}], v{vaddr}, s[{WS_}:{WS_+3}], s{48+ks2} offen offset:16")
    I(f"s_cmp_lg_u32 s{sH}, 0")
    A.drain_hazards()
    I("s_cbranch_scc1 K1_NOSP")
    I("s_mov_b64 exec, 0xffff")
    gh, gl = gr[2]
    I(f"buffer_store_dwordx4 v[{gh}:{gh+3}], v{vaddr}, s[{WS_}:{WS_+3}], s50 offen")
    I(f"buffer_store_dwordx4 v[{gl}:{gl+3}], v{vaddr}, s[{WS_}:{WS_+3}], s50 offen offset:16")
    I("s_mov_b64 exec, -1")
    vmq_save = list(A.vmq)
    A.label("K1_NOSP")
    A.vmq = vmq_save
    xr = pc[0]
    xr = P.alloc(8, 4)
    I(f"s_lshl_b32 s48, s{sJ}, 3")
    I(f"s_lshl_b32 s49, s{sH}, 1")
    I(f"s_add_u32 s48, s48, s49")
    I(f"v_lshrrev_b32 v{t0}, 5, v0")
    I(f"v_add_u32 v{t0}, s48, v{t0}")
    I(f"v_and_b32 v{t1}, 7, v0")
    I(f"v_lshlrev_b32 v{t1}, 1, v{t1}")
    I(f"v_and_b32 v{t2}, 15, v{t0}")
    I(f"v_xor_b32 v{t1}, v{t1}, v{t2}")
    I(f"v_lshlrev_b32 v{t1}, 4, v{t1}")
    I(f"v_lshl_add_u32 v{t1}, v{t0}, 8, v{t1}")
    I(f"v_bfe_u32 v{t2}, v0, 3, 2")
    I(f"v_lshl_add_u32 v{t1}, v{t2}, 14, v{t1}")
    I(f"v_add_u32 v{t1}, {LDS_X}, v{t1}")
    I(f"v_xor_b32 v{t2}, 16, v{t1}")
    I(f"ds_read_b128 v[{xr}:{xr+3}], v{t1}")
    I(f"ds_read_b128 v[{xr+4}:{xr+7}], v{t2}")
    sacc = P.alloc()
    I(f"v_mov_b32 v{sacc}, 0")
    for i in range(8):
        I(f"v_lshlrev_b32 v{t1}, 16, v{xr+i}")
        I(f"v_and_b32 v{t2}, 0xffff0000, v{xr+i}")
        I(f"v_lshlrev_b32 v{t3}, 16, v{gwr+i}")
        I(f"v_and_b32 v{t4_}, 0xffff0000, v{gwr+i}")
        I(f"v_mul_f32 v{t1}, v{t1}, v{t3}")
        I(f"v_mul_f32 v{t2}, v{t2}, v{t4_}")
        I(f"v_cvt_pk_bf16_f32 v{t1}, v{t1}, v{t2}")
        I(f"v_lshlrev_b32 v{t2}, 16, v{t1}")
        I(f"v_and_b32 v{t1}, 0xffff0000, v{t1}")
        I(f"v_add_f32 v{sacc}, v{sacc}, v{t2}")
        I(f"v_add_f32 v{sacc}, v{sacc}, v{t1}")
    for off in (0x041F, 0x081F, 0x101F, 0x201F, 0x401F):
        I(f"ds_swizzle_b32 v{t1}, v{sacc} offset:{hex(off)}")
        I(f"v_add_f32 v{sacc}, v{sacc}, v{t1}")
    I(f"v_cvt_pk_bf16_f32 v{sacc}, v{sacc}, v{sacc}")
    I(f"v_lshlrev_b32 v{sacc}, 16, v{sacc}")
    I(f"v_mul_f32 v{sacc}, 0xbfb8aa3b, v{sacc}")
    I(f"v_exp_f32 v{sacc}, v{sacc}")
    I(f"v_add_f32 v{sacc}, 1.0, v{sacc}")
    I(f"v_rcp_f32 v{sacc}, v{sacc}")
    I(f"v_cvt_pk_bf16_f32 v{sacc}, v{sacc}, v{sacc}")
    I(f"v_lshlrev_b32 v{sacc}, 16, v{sacc}")
    I(f"s_lshl_b32 s48, s{sS1}, 8")
    I(f"s_add_u32 s48, s48, {OFF_G}")
    I(f"v_lshlrev_b32 v{t0}, 2, v{t0}")
    I("s_mov_b32 s50, 1"); I("s_mov_b32 s51, 1")
    I("s_mov_b64 exec, s[50:51]")
    I(f"buffer_store_dword v{sacc}, v{t0}, s[{WS_}:{WS_+3}], s48 offen")
    A.label("K1_END")
    I("s_endpgm")
    vg = max(hi_g, P.hi)
    return A.text(), vg, A.ninst

if __name__ == "__main__":
    t, vg, n = gen_k1()
    print(vg, n)
```

```python
from common_k import *
import struct, os
def f32(x): return hex(struct.unpack('<I', struct.pack('<f', x))[0])

NT2 = int(os.environ.get("NT2", "3"))
K2_LDS = 65536
N_FFT, N_KV = 136, 32
K2_GRID = N_FFT + N_KV + 256

def gen_k2():
    A = Asm(); I = A.I
    I(f"s_cmp_ge_u32 s2, {K2_GRID}")
    I("s_cbranch_scc1 K2_END")
    I("s_load_dwordx4 s[4:7], s[0:1], 0")
    I("s_load_dwordx2 s[8:9], s[0:1], 16")
    I("s_load_dwordx2 s[14:15], s[0:1], 72")
    sW = 20
    I("v_lshrrev_b32 v1, 6, v0")
    I("v_and_b32 v0, 63, v0")
    I(f"v_readfirstlane_b32 s{sW}, v1")
    X_, WQ_, WO_, WS_ = 24, 28, 32, 44
    srd(A, WS_, 14, WS_BYTES)
    srd(A, X_, 4, 2097152)
    srd(A, WQ_, 6, 1572864)
    srd(A, WO_, 8, 524288)
    I(f"s_cmp_ge_u32 s2, {N_FFT + N_KV}")
    A.drain_hazards()
    I("s_cbranch_scc1 K2_Q")
    I(f"s_cmp_ge_u32 s2, {N_FFT}")
    I("s_cbranch_scc1 K2_KV")
    I(f"s_cmp_ge_u32 s2, 132")
    I("s_cbranch_scc1 K2_END")
    his = []
    P = Pool('v', 1, 256)
    sK2, sKB, sU = 16, 17, 18
    I(f"s_lshr_b32 s{sK2}, s2, 2")
    I(f"s_and_b32 s{sKB}, s2, 3")
    I(f"s_lshl_b32 s{sKB}, s{sKB}, 2")
    I(f"s_add_u32 s{sKB}, s{sKB}, s{sW}")
    I(f"s_lshl_b32 s{sU}, s{sK2}, 4")
    I(f"s_add_u32 s{sU}, s{sU}, s{sKB}")
    vN, vH = P.alloc(), P.alloc()
    I(f"v_and_b32 v{vN}, 31, v0")
    I(f"v_lshrrev_b32 v{vH}, 5, v0")
    t0, t1, t2, t3, t4, t5 = [P.alloc() for _ in range(6)]
    ah = [P.alloc(4, 4) for p in range(4)]
    al = [P.alloc(4, 4) for p in range(4)]
    wf = P.alloc(16, 4)
    I(f"v_lshlrev_b32 v{t0}, 8, v{vN}")
    I(f"v_lshl_add_u32 v{t0}, v{vH}, 5, v{t0}")
    I(f"s_lshl_b32 s48, s{sU}, 13")
    if OFF_T2: I(f"s_add_u32 s48, s48, {OFF_T2}")
    for p in range(4):
        I(f"buffer_load_dwordx4 v[{ah[p]}:{ah[p]+3}], v{t0}, s[{WS_}:{WS_+3}], s48 offen offset:{64*p}")
        if NT2 >= 3:
            I(f"buffer_load_dwordx4 v[{al[p]}:{al[p]+3}], v{t0}, s[{WS_}:{WS_+3}], s48 offen offset:{64*p+16}")
    I(f"v_lshlrev_b32 v{t1}, 4, v0")
    I(f"s_lshl_b32 s49, s{sU}, 12")
    I(f"s_add_u32 s49, s49, {OFF_WEFF}")
    for q in range(4):
        I(f"buffer_load_dwordx4 v[{wf+4*q}:{wf+4*q+3}], v{t1}, s[{WS_}:{WS_+3}], s49 offen offset:{1024*q}")
    th = [P.alloc(6, 2) for p in range(4)]
    tl = [P.alloc(6, 2) for p in range(4)] if NT2 >= 2 else None
    vP0, vP1 = P.alloc(), P.alloc()
    I(f"v_cvt_f32_u32 v{vP1}, v{vN}")
    I(f"v_mul_f32 v{vP1}, 0x3d000000, v{vP1}")
    I(f"v_lshlrev_b32 v{t0}, 2, v{vH}")
    I(f"v_cvt_f32_u32 v{t0}, v{t0}")
    I(f"v_mul_f32 v{vP0}, v{t0}, v{vP1}")
    def phase(dst, mult):
        if mult == 0: I(f"v_fract_f32 v{dst}, v{vP0}")
        else:
            I(f"s_mov_b32 s52, {f32(float(mult))}")
            I(f"v_fma_f32 v{dst}, s52, v{vP1}, v{vP0}")
            I(f"v_fract_f32 v{dst}, v{dst}")
    for p in range(4):
        for pr in range(2):
            phase(t0, 8 * p + 2 * pr); phase(t1, 8 * p + 2 * pr + 1)
            I(f"v_sin_f32 v{t4}, v{t0}"); I(f"v_sin_f32 v{t5}, v{t1}")
            I(f"v_cos_f32 v{t0}, v{t0}"); I(f"v_cos_f32 v{t1}, v{t1}")
            if NT2 >= 2:
                split_pair(A, th[p] + 2 + pr, tl[p] + 2 + pr, t0, t1, t2, t3)
                split_pair(A, th[p] + 4 + pr, tl[p] + 4 + pr, t4, t5, t2, t3)
                I(f"v_xor_b32 v{tl[p]+pr}, 0x80008000, v{tl[p]+4+pr}")
            else:
                I(f"v_cvt_pk_bf16_f32 v{th[p]+2+pr}, v{t0}, v{t1}")
                I(f"v_cvt_pk_bf16_f32 v{th[p]+4+pr}, v{t4}, v{t5}")
            I(f"v_xor_b32 v{th[p]+pr}, 0x80008000, v{th[p]+4+pr}")
    dre, dim = P.alloc(16, 4), P.alloc(16, 4)
    def step():
        for (D, off) in ((dre, 2), (dim, 0)):
            first = True
            for p in range(4):
                prods = [(ah[p], th[p])]
                if NT2 >= 3: prods.append((al[p], th[p]))
                if NT2 >= 2: prods.append((ah[p], tl[p]))
                for (a_, b_) in prods:
                    c = "0" if first else f"v[{D}:{D+15}]"
                    I(f"v_mfma_f32_32x32x16_bf16 v[{D}:{D+15}], v[{a_}:{a_+3}], v[{b_+off}:{b_+off+3}], {c}")
                    first = False
    def convert(R, Im):
        for (D, off) in ((R, 0), (Im, 2)):
            for p in range(4):
                for pr in range(2):
                    if NT2 >= 3:
                        split_pair(A, ah[p] + off + pr, al[p] + off + pr, D + 4*p + 2*pr, D + 4*p + 2*pr + 1, t2, t3)
                    else:
                        I(f"v_cvt_pk_bf16_f32 v{ah[p]+off+pr}, v{D+4*p+2*pr}, v{D+4*p+2*pr+1}")
    step(); convert(dre, dim)
    step()
    for i in range(16):
        I(f"v_lshlrev_b32 v{t0}, 16, v{wf+i}")
        I(f"v_and_b32 v{t1}, 0xffff0000, v{wf+i}")
        I(f"v_mul_f32 v{t4}, v{dim+i}, v{t1}")
        I(f"v_mul_f32 v{t5}, v{dim+i}, v{t0}")
        I(f"v_fma_f32 v{dim+i}, -v{dre+i}, v{t1}, -v{t5}")
        I(f"v_fma_f32 v{dre+i}, v{dre+i}, v{t0}, -v{t4}")
    convert(dre, dim)
    step(); convert(dre, dim)
    step()
    I(f"s_cmp_lg_u32 s{sK2}, 32")
    A.drain_hazards()
    I("s_cbranch_scc1 K2_NOROT")
    I(f"v_cvt_f32_u32 v{t0}, v{vN}")
    I(f"v_mul_f32 v{t0}, 0x3c800000, v{t0}")
    I(f"v_sin_f32 v{t1}, v{t0}")
    I(f"v_cos_f32 v{t0}, v{t0}")
    for i in range(16):
        I(f"v_mul_f32 v{t4}, v{dim+i}, v{t1}")
        I(f"v_mul_f32 v{t5}, v{dre+i}, v{t1}")
        I(f"v_fma_f32 v{dre+i}, v{dre+i}, v{t0}, v{t4}")
        I(f"v_fma_f32 v{dim+i}, v{dim+i}, v{t0}, -v{t5}")
    A.drain_hazards()
    A.label("K2_NOROT")
    I(f"s_mov_b32 s48, 135168")
    I(f"v_mul_lo_u32 v{t0}, v{vN}, s48")
    I(f"v_mov_b32 v{t1}, 16896")
    I(f"v_mad_u32_u24 v{t0}, v{vH}, v{t1}, v{t0}")
    I(f"s_lshl_b32 s48, s{sU}, 5")
    I(f"s_add_u32 s48, s48, {OFF_V}")
    for p in range(4):
        for (D, q_, off) in ((dre, ah[p], 0), (dim, al[p], 16)):
            for pr in range(2):
                split_pair(A, q_ + pr, q_ + 2 + pr, D + 4*p + 2*pr, D + 4*p + 2*pr + 1, t2, t3)
            I(f"buffer_store_dwordx4 v[{q_}:{q_+3}], v{t0}, s[{WS_}:{WS_+3}], s48 offen offset:{off}")
        if p < 3: I(f"s_add_u32 s48, s48, 33792")
    I("s_endpgm")
    his.append(P.hi)

    A.label("K2_KV")
    P = Pool('v', 1, 256)
    sHd = 16
    I(f"s_sub_u32 s{sHd}, s2, {N_FFT}")
    vG, vM = P.alloc(), P.alloc()
    I(f"v_lshrrev_b32 v{vG}, 4, v0")
    I(f"v_and_b32 v{vM}, 15, v0")
    t0, t1, t2, t3 = [P.alloc() for _ in range(4)]
    part = P.alloc(32, 4)
    I(f"v_lshlrev_b32 v{t0}, 4, v0")
    I(f"s_lshl_b32 s48, s{sHd}, 15")
    I(f"s_lshl_b32 s49, s{sW}, 13")
    I(f"s_add_u32 s48, s48, s49")
    I(f"s_add_u32 s48, s48, {OFF_KVP}")
    I(f"s_add_u32 s49, s48, 4096")
    for i in range(8):
        I(f"buffer_load_dwordx4 v[{part+4*i}:{part+4*i+3}], v{t0}, s[{WS_}:{WS_+3}], s{48 + (i>>2)} offen offset:{1024*(i&3)}")
    wo = P.alloc(16, 2)
    I(f"v_lshlrev_b32 v{t1}, 12, v{vG}")
    I(f"v_lshl_add_u32 v{t1}, v{vM}, 3, v{t1}")
    I(f"s_lshl_b32 s50, s{sHd}, 14")
    I(f"s_lshl_b32 s51, s{sW}, 8")
    I(f"s_add_u32 s50, s50, s51")
    for G in range(2):
        for jj in range(4):
            r = wo + 8 * G + 2 * jj
            I(f"buffer_load_dwordx2 v[{r}:{r+1}], v{t1}, s[{WO_}:{WO_+3}], s50 offen offset:{1024*jj + 128*G}")
    for i in range(1, 8):
        for c in range(4): I(f"v_add_f32 v{part+c}, v{part+c}, v{part+4*i+c}")
    I(f"s_lshl_b32 s48, s{sW}, 10")
    I(f"v_add_u32 v{t2}, s48, v{t0}")
    I(f"ds_write_b128 v{t2}, v[{part}:{part+3}]")
    A.barrier()
    for i in range(4):
        I(f"ds_read_b128 v[{part+4+4*i}:{part+7+4*i}], v{t0} offset:{1024*i}")
    for c in range(4):
        I(f"v_add_f32 v{part+4+c}, v{part+4+c}, v{part+8+c}")
        I(f"v_add_f32 v{part+12+c}, v{part+12+c}, v{part+16+c}")
        I(f"v_add_f32 v{part+4+c}, v{part+4+c}, v{part+12+c}")
    kva = P.alloc(2, 2)
    I(f"v_cvt_pk_bf16_f32 v{kva}, v{part+4}, v{part+5}")
    I(f"v_cvt_pk_bf16_f32 v{kva+1}, v{part+6}, v{part+7}")
    I("s_mov_b32 s52, 0x05040100"); I("s_mov_b32 s53, 0x07060302")
    bq = P.alloc(16, 2); dd = P.alloc(32, 4); oo = P.alloc(16, 2)
    I(f"v_and_b32 v{t2}, 7, v{vM}")
    I(f"v_lshlrev_b32 v{t2}, 16, v{t2}")
    I(f"v_lshrrev_b32 v{t3}, 3, v{vM}")
    I(f"v_lshl_add_u32 v{t2}, v{t3}, 6, v{t2}")
    I(f"v_lshl_add_u32 v{t2}, v{vG}, 3, v{t2}")
    I(f"s_lshr_b32 s48, s{sHd}, 1")
    I(f"s_lshl_b32 s48, s48, 10")
    I(f"s_and_b32 s49, s{sHd}, 1")
    I(f"s_lshl_b32 s49, s49, 5")
    I(f"s_add_u32 s48, s48, s49")
    I(f"s_lshl_b32 s49, s{sW}, 8")
    I(f"s_add_u32 s48, s48, s49")
    I(f"s_add_u32 s48, s48, {OFF_KVWO}")
    for G in range(2):
        for e in range(4):
            b_ = bq + 8 * G + 2 * e
            for hp in range(2):
                r0 = wo + 8 * G + 4 * hp + (e >> 1); r1 = r0 + 2
                I(f"v_perm_b32 v{b_+hp}, v{r1}, v{r0}, s{52 + (e & 1)}")
            d_ = dd + 16 * G + 4 * e
            I(f"v_mfma_f32_16x16x16_bf16 v[{d_}:{d_+3}], v[{kva}:{kva+1}], v[{b_}:{b_+1}], 0")
    for e in range(4):
        for G in range(2):
            d_ = dd + 16 * G + 4 * e; o_ = oo + 8 * G + 2 * e
            I(f"v_cvt_pk_bf16_f32 v{o_}, v{d_}, v{d_+1}")
            I(f"v_cvt_pk_bf16_f32 v{o_+1}, v{d_+2}, v{d_+3}")
            I(f"buffer_store_dwordx2 v[{o_}:{o_+1}], v{t2}, s[{WS_}:{WS_+3}], s48 offen offset:{128*G}")
        if e < 3: I(f"s_add_u32 s48, s48, 16384")
    I("s_endpgm")
    his.append(P.hi)

    A.label("K2_Q")
    P = Pool('v', 1, 256)
    sJ, sT, sS1 = 16, 17, 18
    I(f"s_sub_u32 s22, s2, {N_FFT + N_KV}")
    I("s_lshr_b32 s21, s22, 3")
    I(f"s_and_b32 s{sJ}, s21, 7")
    I(f"s_lshr_b32 s{sT}, s21, 3")
    I("s_and_b32 s21, s22, 7")
    I(f"s_lshl_b32 s{sS1}, s21, 2")
    I(f"s_add_u32 s{sS1}, s{sS1}, s{sT}")
    vG, vM = P.alloc(), P.alloc()
    I(f"v_lshrrev_b32 v{vG}, 4, v0")
    I(f"v_and_b32 v{vM}, 15, v0")
    t0, t1, t2, t3, t4, t5 = [P.alloc() for _ in range(6)]
    vd0, vd1 = P.alloc(), P.alloc()
    I(f"v_lshrrev_b32 v{t0}, 3, v0")
    I(f"v_bfe_u32 v{t1}, v0, 4, 1")
    I(f"v_bfe_u32 v{t2}, v0, 1, 2")
    I(f"v_xor_b32 v{t1}, v{t1}, v{t2}")
    I(f"v_lshlrev_b32 v{t1}, 5, v{t1}")
    I(f"v_and_b32 v{t2}, 1, v0")
    I(f"v_lshl_add_u32 v{t1}, v{t2}, 4, v{t1}")
    I(f"v_mul_u32_u24 v{t0}, 3072, v{t0}")
    I(f"v_add_u32 v{vd0}, v{t0}, v{t1}")
    I(f"v_xor_b32 v{vd1}, 64, v{vd0}")
    I(f"s_mul_i32 s48, s{sW}, {128*3072}")
    I(f"s_lshl_b32 s49, s{sJ}, 7")
    I(f"s_add_u32 s48, s48, s49")
    I(f"s_lshl_b32 s50, s{sW}, 14")
    xf = [[P.alloc(4, 4) for mt in range(4)] for ks in range(4)]
    vx = P.alloc()
    I(f"v_lshlrev_b32 v{vx}, 15, v{vM}")
    I(f"v_lshl_add_u32 v{vx}, v{vG}, 4, v{vx}")
    I(f"s_lshl_b32 s54, s{sS1}, 10")
    I(f"s_lshl_b32 s55, s{sW}, 8")
    I(f"s_add_u32 s54, s54, s55")
    for mt in range(1, 4): I(f"s_add_u32 s{54+mt}, s54, {mt*524288}")
    for ks in range(4):
        for q in range(4 * ks, 4 * ks + 4):
            I(f"s_mov_b32 m0, s50")
            I(f"s_add_u32 s50, s50, 1024")
            I(f"buffer_load_dwordx4 v{vd1 if q & 1 else vd0}, s[{WQ_}:{WQ_+3}], s48 offen lds", tag=f"b{ks}")
            I(f"s_add_u32 s48, s48, {8*3072}")
        for mt in range(4):
            I(f"buffer_load_dwordx4 v[{xf[ks][mt]}:{xf[ks][mt]+3}], v{vx}, s[{X_}:{X_+3}], s{54+mt} offen offset:{64*ks}")
    zr = P.alloc(8, 4); gv = P.alloc(4)
    I(f"s_lshl_b32 s58, s{sJ}, 2")
    I(f"s_add_u32 s58, s58, s{sW}")
    I(f"v_lshlrev_b32 v{t0}, 11, v{vM}")
    I(f"v_lshl_add_u32 v{t0}, v{vG}, 4, v{t0}")
    I(f"s_lshl_b32 s48, s58, 6")
    I(f"s_add_u32 s48, s48, {OFF_ZP}")
    I(f"s_add_u32 s49, s48, 32768")
    I(f"buffer_load_dwordx4 v[{zr}:{zr+3}], v{t0}, s[{WS_}:{WS_+3}], s48 offen")
    I(f"buffer_load_dwordx4 v[{zr+4}:{zr+7}], v{t0}, s[{WS_}:{WS_+3}], s49 offen")
    I(f"v_lshlrev_b32 v{t1}, 2, v{vM}")
    I(f"s_lshl_b32 s48, s{sS1}, 8")
    I(f"s_add_u32 s48, s48, {OFF_G}")
    for mt in range(4):
        I(f"buffer_load_dword v{gv+mt}, v{t1}, s[{WS_}:{WS_+3}], s48 offen offset:{64*mt}")
    baddr = [P.alloc() for _ in range(4)]
    I(f"v_bfe_u32 v{t0}, v0, 2, 2")
    I(f"v_bfe_u32 v{t1}, v0, 3, 1")
    I(f"v_and_b32 v{t2}, 1, v{vG}")
    I(f"v_lshl_or_b32 v{t1}, v{t2}, 1, v{t1}")
    I(f"v_lshl_add_u32 v{t0}, v{vG}, 3, v{t0}")
    I(f"v_lshlrev_b32 v{t0}, 7, v{t0}")
    I(f"v_and_b32 v{t2}, 3, v0")
    I(f"v_lshl_add_u32 v{t0}, v{t2}, 3, v{t0}")
    I(f"s_lshl_b32 s48, s{sW}, 14")
    I(f"v_add_u32 v{t0}, s48, v{t0}")
    for a_ in range(4):
        I(f"s_add_u32 s48, s{sW}, {a_}")
        I(f"s_and_b32 s48, s48, 3")
        I(f"v_xor_b32 v{t2}, s48, v{t1}")
        I(f"v_lshl_add_u32 v{baddr[a_]}, v{t2}, 5, v{t0}")
    acc = [[P.alloc(4, 4) for a_ in range(4)] for mt in range(4)]
    bfr = [[P.alloc(4, 4) for a_ in range(4)] for _ in range(2)]
    def breads(ks):
        A.wait_vm_tag(f"b{ks}")
        for a_ in range(4):
            for half in range(2):
                r = bfr[ks & 1][a_] + 2 * half
                I(f"ds_read_b64_tr_b16 v[{r}:{r+1}], v{baddr[a_]} offset:{ks*4096 + half*512}")
    breads(0)
    for ks in range(4):
        if ks < 3: breads(ks + 1)
        for mt in range(4):
            for a_ in range(4):
                c = acc[mt][a_]; b_ = bfr[ks & 1][a_]
                cs = "0" if ks == 0 else f"v[{c}:{c+3}]"
                I(f"v_mfma_f32_16x16x32_bf16 v[{c}:{c+3}], v[{b_}:{b_+3}], v[{xf[ks][mt]}:{xf[ks][mt]+3}], {cs}")
    for c in range(4): I(f"v_add_f32 v{zr+c}, v{zr+c}, v{zr+4+c}")
    for sh in (8, 4, 2, 1):
        for c in range(4):
            I(f"v_add_f32_dpp v{zr+c}, v{zr+c}, v{zr+c} row_ror:{sh} row_mask:0xf bank_mask:0xf")
    I(f"v_cvt_pk_bf16_f32 v{zr+4}, v{zr}, v{zr+1}")
    I(f"v_cvt_pk_bf16_f32 v{zr+5}, v{zr+2}, v{zr+3}")
    I(f"v_lshlrev_b32 v{zr}, 16, v{zr+4}"); I(f"v_and_b32 v{zr+1}, 0xffff0000, v{zr+4}")
    I(f"v_lshlrev_b32 v{zr+2}, 16, v{zr+5}"); I(f"v_and_b32 v{zr+3}, 0xffff0000, v{zr+5}")
    I(f"s_lshl_b32 s48, s{sW}, 14")
    I(f"v_lshl_add_u32 v{t0}, v0, 4, s48")
    for a_ in range(1, 4):
        for mt in range(4):
            c = acc[mt][a_]
            I(f"ds_write_b128 v{t0}, v[{c}:{c+3}] offset:{(a_-1)*4096 + mt*1024}")
    A.barrier()
    for a_ in range(1, 4):
        I(f"s_sub_u32 s48, s{sW}, {a_}")
        I(f"s_and_b32 s48, s48, 3")
        I(f"s_lshl_b32 s48, s48, 14")
        I(f"v_lshl_add_u32 v{t1+a_-1}, v0, 4, s48")
        for mt in range(4):
            c = acc[mt][a_]
            I(f"ds_read_b128 v[{c}:{c+3}], v{t1+a_-1} offset:{(a_-1)*4096 + mt*1024}")
    va = P.alloc()
    I(f"v_lshlrev_b32 v{va}, 6, v{vM}")
    I(f"v_lshl_add_u32 v{va}, v{vG}, 3, v{va}")
    I(f"s_lshl_b32 s48, s{sS1}, 16")
    I(f"s_lshr_b32 s49, s58, 1")
    I(f"s_lshl_b32 s49, s49, 10")
    I(f"s_add_u32 s48, s48, s49")
    I(f"s_and_b32 s49, s58, 1")
    I(f"s_lshl_b32 s49, s49, 5")
    I(f"s_add_u32 s48, s48, s49")
    I(f"s_add_u32 s48, s48, {OFF_APP}")
    I(f"s_mov_b32 s52, {hex(LOG2E)}")
    e0, e1 = bfr[0][0], bfr[0][1]
    for mt in range(4):
        c = acc[mt][0]
        for i in range(4):
            I(f"v_add_f32 v{c+i}, v{c+i}, v{acc[mt][1]+i}")
            I(f"v_add_f32 v{acc[mt][2]+i}, v{acc[mt][2]+i}, v{acc[mt][3]+i}")
            I(f"v_add_f32 v{c+i}, v{c+i}, v{acc[mt][2]+i}")
        for pr in range(2):
            I(f"v_cvt_pk_bf16_f32 v{e0}, v{c+2*pr}, v{c+2*pr+1}")
            I(f"v_lshlrev_b32 v{c+2*pr}, 16, v{e0}")
            I(f"v_and_b32 v{c+2*pr+1}, 0xffff0000, v{e0}")
        for i in range(4):
            I(f"v_min_f32 v{e0+i}, 0, v{c+i}")
            I(f"v_mul_f32 v{e0+i}, s52, v{e0+i}")
            I(f"v_exp_f32 v{e0+i}, v{e0+i}")
            I(f"v_max_f32 v{c+i}, 0, v{c+i}")
        for i in range(4):
            I(f"v_add_f32 v{c+i}, v{c+i}, v{e0+i}")
            I(f"v_add_f32 v{c+i}, 0x358637bd, v{c+i}")
        for pr in range(2):
            I(f"v_cvt_pk_bf16_f32 v{e0}, v{c+2*pr}, v{c+2*pr+1}")
            I(f"v_lshlrev_b32 v{c+2*pr}, 16, v{e0}")
            I(f"v_and_b32 v{c+2*pr+1}, 0xffff0000, v{e0}")
        I(f"v_mul_f32 v{e1}, v{c}, v{zr}")
        for i in range(1, 4): I(f"v_fmac_f32 v{e1}, v{c+i}, v{zr+i}")
        I(f"v_mov_b32 v{e1+1}, v{e1}")
        I(f"v_permlane16_swap_b32 v{e1}, v{e1+1}")
        I(f"v_add_f32 v{e1}, v{e1}, v{e1+1}")
        I(f"v_mov_b32 v{e1+1}, v{e1}")
        I(f"v_permlane32_swap_b32 v{e1}, v{e1+1}")
        I(f"v_add_f32 v{e1}, v{e1}, v{e1+1}")
        I(f"v_add_f32 v{e1}, 0x358637bd, v{e1}")
        I(f"v_rcp_f32 v{e1}, v{e1}")
        I(f"v_mul_f32 v{e1}, v{e1}, v{gv+mt}")
        for i in range(4): I(f"v_mul_f32 v{c+i}, v{c+i}, v{e1}")
        o_ = acc[mt][1]
        I(f"v_cvt_pk_bf16_f32 v{o_}, v{c}, v{c+1}")
        I(f"v_cvt_pk_bf16_f32 v{o_+1}, v{c+2}, v{c+3}")
        I(f"buffer_store_dwordx2 v[{o_}:{o_+1}], v{va}, s[{WS_}:{WS_+3}], s48 offen")
        if mt < 3: I(f"s_add_u32 s48, s48, 16384")
    his.append(P.hi)
    A.label("K2_END")
    I("s_endpgm")
    return A.text(), max(his), 0, A.ninst

if __name__ == "__main__":
    t, vg, ag, n = gen_k2(); print(vg, ag, n)
```

```python
from common_k import *
import struct, os
def f32(x): return hex(struct.unpack('<I', struct.pack('<f', x))[0])
K3_LDS = 49152

def gen_k3():
    A = Asm(); I = A.I
    I("s_cmp_ge_u32 s2, 256")
    I("s_cbranch_scc1 K3_END")
    I("s_load_dwordx2 s[12:13], s[0:1], 56")
    I("s_load_dwordx2 s[14:15], s[0:1], 72")
    sJ, sT, sS1, sW = 16, 17, 18, 20
    I("s_lshr_b32 s21, s2, 3")
    I(f"s_and_b32 s{sJ}, s21, 7")
    I(f"s_lshr_b32 s{sT}, s21, 3")
    I("s_and_b32 s21, s2, 7")
    I(f"s_lshl_b32 s{sS1}, s21, 2")
    I(f"s_add_u32 s{sS1}, s{sS1}, s{sT}")
    I("v_lshrrev_b32 v1, 6, v0")
    I("v_and_b32 v0, 63, v0")
    I(f"v_readfirstlane_b32 s{sW}, v1")
    OUT_, WS_ = 40, 44
    srd(A, WS_, 14, WS_BYTES)
    srd(A, OUT_, 12, 2097152)
    P = Pool('v', 1, 256); PA = Pool('a', 0, 256)
    vG, vM = P.alloc(), P.alloc()
    I(f"v_lshrrev_b32 v{vG}, 4, v0")
    I(f"v_and_b32 v{vM}, 15, v0")
    t0, t1, t2, t3, t4, t5 = [P.alloc() for _ in range(6)]
    I(f"s_cmp_eq_u32 s{sW}, 0")
    I("s_cselect_b32 s60, 0x00010001, 0")
    I("s_mov_b32 s61, s60")
    I("s_lshl_b32 s62, s60, 1")
    I("s_mov_b32 s63, s62")
    I("s_cselect_b64 s[64:65], 0xffff, 0") if False else None
    I(f"s_cmp_eq_u32 s{sW}, 0")
    I("s_cselect_b64 s[64:65], 0xffff, 0")
    vqc = [P.alloc(4, 4) for i in range(4)]; vqs = [P.alloc(4, 4) for i in range(4)]
    I(f"v_lshrrev_b32 v{t0}, 1, v{vM}")
    I(f"v_lshlrev_b32 v{t0}, 9, v{t0}")
    I(f"v_and_b32 v{t1}, 1, v{vM}")
    I(f"v_lshl_add_u32 v{t0}, v{t1}, 4, v{t0}")
    I(f"v_lshlrev_b32 v{t2}, 7, v{vG}")
    I(f"v_add_u32 v{t0}, v{t0}, v{t2}")
    I(f"v_add_u32 v{t3}, {32*512}, v{t2}")
    I(f"v_add_u32 v{t4}, {32*512+16}, v{t2}")
    I(f"v_cndmask_b32 v{t3}, v{t0}, v{t3}, s[62:63]")
    I(f"v_cndmask_b32 v{t4}, v{t0}, v{t4}, s[60:61]")
    I(f"s_lshl_b32 s48, s{sS1}, 3")
    I(f"s_add_u32 s48, s48, s{sJ}")
    I(f"s_mul_i32 s48, s48, 16896")
    I(f"s_lshl_b32 s49, s{sW}, 12")
    I(f"s_add_u32 s48, s48, s49")
    I(f"s_add_u32 s48, s48, {OFF_V}")
    for i in range(4):
        I(f"buffer_load_dwordx4 v[{vqc[i]}:{vqc[i]+3}], v{t3}, s[{WS_}:{WS_+3}], s48 offen offset:{32*i}")
        I(f"buffer_load_dwordx4 v[{vqs[i]}:{vqs[i]+3}], v{t4}, s[{WS_}:{WS_+3}], s48 offen offset:{32*i}")
    for a_ in range(4):
        I(f"s_add_u32 s{66+a_}, s{sW}, {a_}")
        I(f"s_and_b32 s{66+a_}, s{66+a_}, 3")
    gv = P.alloc(4)
    I(f"v_lshlrev_b32 v{t1}, 2, v{vM}")
    I(f"s_lshl_b32 s48, s{sS1}, 8")
    I(f"s_add_u32 s48, s48, {OFF_G}")
    for a_ in range(4):
        I(f"s_lshl_b32 s50, s{66+a_}, 6")
        I(f"s_add_u32 s50, s50, s48")
        I(f"buffer_load_dword v{gv+a_}, v{t1}, s[{WS_}:{WS_+3}], s50 offen")
    af = [[PA.alloc(4, 4) for a_ in range(4)] for ks in range(4)]
    bf = [[PA.alloc(4, 4) for e in range(4)] for ks in range(4)]
    acc = [[PA.alloc(4, 4) for e in range(4)] for a_ in range(4)]
    vf = P.alloc()
    I(f"v_lshlrev_b32 v{vf}, 6, v{vM}")
    I(f"v_lshl_add_u32 v{vf}, v{vG}, 4, v{vf}")
    I(f"s_lshl_b32 s48, s{sS1}, 16")
    I(f"s_add_u32 s48, s48, s49")
    I(f"s_add_u32 s48, s48, {OFF_APP}")
    for a_ in range(4):
        I(f"s_lshl_b32 s{70+a_}, s{66+a_}, 14")
        I(f"s_add_u32 s{70+a_}, s{70+a_}, s48")
    I(f"s_lshl_b32 s74, s{sJ}, 16")
    I(f"s_add_u32 s74, s74, s49")
    I(f"s_add_u32 s74, s74, {OFF_KVWO}")
    for e in range(1, 4): I(f"s_add_u32 s{74+e}, s74, {16384*e}")
    for ks in range(4):
        for i in range(4):
            I(f"buffer_load_dwordx4 a[{af[ks][i]}:{af[ks][i]+3}], v{vf}, s[{WS_}:{WS_+3}], s{70+i} offen offset:{1024*ks}")
            I(f"buffer_load_dwordx4 a[{bf[ks][i]}:{bf[ks][i]+3}], v{vf}, s[{WS_}:{WS_+3}], s{74+i} offen offset:{1024*ks}")
    tr = [[[P.alloc(4, 4) for hl in range(2)] for cs in range(2)] for e in range(4)]
    vD, vKf = P.alloc(), P.alloc()
    I(f"s_lshl_b32 s48, s{sJ}, 2")
    I(f"v_lshl_add_u32 v{vD}, v{vM}, 5, s48")
    I(f"v_cvt_f32_u32 v{vD}, v{vD}")
    I(f"v_mul_f32 v{vD}, 0x3b000000, v{vD}")
    I(f"v_lshlrev_b32 v{vKf}, 2, v{vG}")
    I(f"v_cvt_f32_u32 v{vKf}, v{vKf}")
    vb, vst = P.alloc(), P.alloc()
    for e in range(4):
        if e == 0: I(f"v_mov_b32 v{vst}, v{vD}")
        else: I(f"v_add_f32 v{vst}, {f32(e/512.0)}, v{vD}")
        I(f"v_mul_f32 v{vb}, v{vst}, v{vKf}")
        for pr in range(2):
            for (i, tt) in ((2*pr, t0), (2*pr+1, t1)):
                if i == 0: I(f"v_fract_f32 v{tt}, v{vb}")
                else:
                    m_ = {1: "1.0", 2: "2.0"}.get(i)
                    if m_ is None:
                        I("s_mov_b32 s52, 0x40400000"); m_ = "s52"
                    I(f"v_fma_f32 v{tt}, {m_}, v{vst}, v{vb}")
                    I(f"v_fract_f32 v{tt}, v{tt}")
            I(f"v_sin_f32 v{t4}, v{t0}"); I(f"v_sin_f32 v{t5}, v{t1}")
            I(f"v_cos_f32 v{t0}, v{t0}"); I(f"v_cos_f32 v{t1}, v{t1}")
            split_pair(A, tr[e][0][0] + pr, tr[e][0][1] + pr, t0, t1, t2, t3, hi2=tr[e][0][0] + 2 + pr, lo2=tr[e][0][1] + 2 + pr)
            split_pair(A, tr[e][1][0] + pr, tr[e][1][1] + pr, t4, t5, t2, t3, hi2=tr[e][1][0] + 2 + pr, lo2=tr[e][1][1] + 2 + pr)
    gf = [[P.alloc(4, 4) for hl in range(2)] for a_ in range(4)]
    vk = [P.alloc(), P.alloc()]; vph = [P.alloc(), P.alloc()]; vsgn = P.alloc(); vpm = P.alloc()
    I(f"s_lshl_b32 s48, s{sW}, 3")
    I(f"v_lshl_add_u32 v{t0}, v{vG}, 1, s48")
    I(f"v_lshl_add_u32 v{t1}, v{vM}, 5, s{sS1}")
    I(f"v_cvt_f32_u32 v{t1}, v{t1}")
    I(f"v_mul_f32 v{t1}, 0x3a000000, v{t1}")
    I(f"v_cvt_f32_u32 v{vk[0]}, v{t0}")
    I(f"v_add_f32 v{vk[1]}, 1.0, v{vk[0]}")
    for kk in range(2):
        I(f"v_mul_f32 v{vph[kk]}, v{t1}, v{vk[kk]}")
        I(f"v_mul_f32 v{vk[kk]}, 0x3e800000, v{vk[kk]}")
    I(f"v_mov_b32 v{vsgn}, -1.0")
    I(f"v_cndmask_b32 v{vsgn}, v{vsgn}, 1.0, s[64:65]")
    I(f"v_lshlrev_b32 v{vpm}, 31, v{vM}")
    I(f"v_or_b32 v{vpm}, 1.0, v{vpm}")
    vsc, vsa = P.alloc(), P.alloc()
    for a_ in range(4):
        I(f"v_cvt_f32_u32 v{vb}, s{66+a_}")
        I(f"v_sub_f32 v{vsc}, 1.0, v{gv+a_}")
        I(f"v_cvt_pk_bf16_f32 v{vsc}, v{vsc}, v{vsc}")
        I(f"v_lshlrev_b32 v{vsc}, 16, v{vsc}")
        I(f"v_mul_f32 v{vsc}, {f32(2.0**-19)}, v{vsc}")
        I(f"v_mul_f32 v{vsa}, 0.5, v{vsc}")
        I(f"v_cndmask_b32 v{vsa}, v{vsc}, v{vsa}, s[64:65]")
        for kk in range(2):
            I(f"v_fma_f32 v{t0}, v{vb}, v{vk[kk]}, v{vph[kk]}")
            I(f"v_fract_f32 v{t0}, v{t0}")
            I(f"v_sin_f32 v{t1}, v{t0}")
            I(f"v_cos_f32 v{t0}, v{t0}")
            if kk == 0: I(f"v_cndmask_b32 v{t1}, v{t1}, v{vpm}, s[64:65]")
            sc = vsa if kk == 0 else vsc
            I(f"v_mul_f32 v{t0}, v{t0}, v{sc}")
            I(f"v_mul_f32 v{t1}, v{t1}, v{sc}")
            split_pair(A, gf[a_][0] + kk, gf[a_][1] + kk, t0, t1, t2, t3, hi2=gf[a_][0] + 2 + kk, lo2=gf[a_][1] + 2 + kk)
    I("s_mov_b32 s52, 0x05040100"); I("s_mov_b32 s53, 0x07060302")
    ac = [P.alloc(4, 4) for e in range(4)]; as_ = [P.alloc(4, 4) for e in range(4)]
    pc = [P.alloc(4, 4) for e in range(4)]; ps = [P.alloc(4, 4) for e in range(4)]
    for e in range(4):
        for (dst, src) in ((ac[e], vqc), (as_[e], vqs)):
            for hl in range(2):
                for hp in range(2):
                    r = 2 * hl + (e >> 1)
                    I(f"v_perm_b32 v{dst+2*hl+hp}, v{src[2*hp+1]+r}, v{src[2*hp]+r}, s{52+(e&1)}")
        for (d_, a_, cs) in ((pc[e], ac[e], 0), (ps[e], as_[e], 1)):
            I(f"v_mfma_f32_16x16x32_bf16 v[{d_}:{d_+3}], v[{a_}:{a_+3}], v[{tr[e][cs][0]}:{tr[e][cs][0]+3}], 0")
            I(f"v_mfma_f32_16x16x32_bf16 v[{d_}:{d_+3}], v[{a_}:{a_+3}], v[{tr[e][cs][1]}:{tr[e][cs][1]+3}], v[{d_}:{d_+3}]")
    uq = [vqc[e] for e in range(4)]
    for e in range(4):
        I(f"v_add_f32 v{t0}, v{pc[e]}, v{ps[e]+1}")
        I(f"v_fma_f32 v{t1}, v{vsgn}, v{ps[e]}, v{pc[e]+1}")
        I(f"v_add_f32 v{t4}, v{pc[e]+2}, v{ps[e]+3}")
        I(f"v_sub_f32 v{t5}, v{pc[e]+3}, v{ps[e]+2}")
        split_pair(A, uq[e], uq[e] + 2, t0, t1, t2, t3)
        split_pair(A, uq[e] + 1, uq[e] + 3, t4, t5, t2, t3)
        for a_ in range(4):
            c = acc[a_][e]
            I(f"v_mfma_f32_16x16x32_bf16 a[{c}:{c+3}], v[{gf[a_][0]}:{gf[a_][0]+3}], v[{uq[e]}:{uq[e]+3}], 0")
            I(f"v_mfma_f32_16x16x32_bf16 a[{c}:{c+3}], v[{gf[a_][1]}:{gf[a_][1]+3}], v[{uq[e]}:{uq[e]+3}], a[{c}:{c+3}]")
    for ks in range(4):
        for a_ in range(4):
            for e in range(4):
                c = acc[a_][e]
                I(f"v_mfma_f32_16x16x32_bf16 a[{c}:{c+3}], a[{af[ks][a_]}:{af[ks][a_]+3}], a[{bf[ks][e]}:{bf[ks][e]+3}], a[{c}:{c+3}]")
    I(f"s_mul_i32 s48, s{sW}, 12288")
    I(f"v_lshl_add_u32 v{t0}, v0, 4, s48")
    for a_ in range(1, 4):
        for e in range(4):
            c = acc[a_][e]
            I(f"ds_write_b128 v{t0}, a[{c}:{c+3}] offset:{(a_-1)*4096 + e*1024}")
    own = [pc[e] for e in range(4)]
    for e in range(4):
        for i in range(4): I(f"v_accvgpr_read_b32 v{own[e]+i}, a{acc[0][e]+i}")
    A.barrier()
    rd = [[tr[e][0][0], tr[e][0][1], tr[e][1][0]] for e in range(4)]
    for a_ in range(1, 4):
        I(f"s_sub_u32 s48, s{sW}, {a_}")
        I(f"s_and_b32 s48, s48, 3")
        I(f"s_mul_i32 s48, s48, 12288")
        I(f"v_lshl_add_u32 v{t1+a_-1}, v0, 4, s48")
        for e in range(4):
            c = rd[e][a_-1]
            I(f"ds_read_b128 v[{c}:{c+3}], v{t1+a_-1} offset:{(a_-1)*4096 + e*1024}")
    I(f"v_lshlrev_b32 v{vf}, 17, v{vG}")
    I(f"v_lshl_add_u32 v{vf}, v{vM}, 6, v{vf}")
    I(f"s_lshl_b32 s48, s{sW}, 9")
    I(f"s_add_u32 s48, s48, s{sS1}")
    I(f"s_lshl_b32 s48, s48, 10")
    I(f"s_lshl_b32 s49, s{sJ}, 3")
    I(f"s_add_u32 s48, s48, s49")
    for e in range(4):
        for i in range(4):
            I(f"v_add_f32 v{own[e]+i}, v{own[e]+i}, v{rd[e][0]+i}")
            I(f"v_add_f32 v{rd[e][1]+i}, v{rd[e][1]+i}, v{rd[e][2]+i}")
            I(f"v_add_f32 v{own[e]+i}, v{own[e]+i}, v{rd[e][1]+i}")
    for r in range(4):
        o_ = ps[0] + 2 * r if r < 2 else ps[1] + 2 * (r - 2)
        I(f"v_cvt_pk_bf16_f32 v{o_}, v{own[0]+r}, v{own[1]+r}")
        I(f"v_cvt_pk_bf16_f32 v{o_+1}, v{own[2]+r}, v{own[3]+r}")
        I(f"buffer_store_dwordx2 v[{o_}:{o_+1}], v{vf}, s[{OUT_}:{OUT_+3}], s48 offen")
        if r < 3: I(f"s_add_u32 s48, s48, 32768")
    A.label("K3_END")
    I("s_endpgm")
    return A.text(), P.hi, PA.hi, A.ninst

if __name__ == "__main__":
    t, vg, ag, n = gen_k3(); print(vg, ag, n)
```

```python
import sys, importlib
from common_k import *
HEADER = open("gated_mix__linear_attn_block__spectral_gfnet__prompt.s.ref").read().split("; Override launch")[0]

def build(kernels, path):
    out = HEADER
    for (name, text, vg, ag, grid, block, lds) in kernels:
        out += f"; @launch kernel={name} grid=({grid},1,1) block=({block},1,1) lds={lds}\n"
    out += '.amdgcn_target "amdgcn-amd-amdhsa--gfx950"\n.text\n'
    descs = []
    seen = set()
    for (name, text, vg, ag, grid, block, lds) in kernels:
        if name in seen: continue
        seen.add(name)
        c, d = kernel_wrap(name, text, vg, ag)
        out += c; descs.append(d)
    if "gm_k2_kernel" not in seen: out += "gm_k2_kernel:\n"
    out += "GM_CODE_END:\n"
    out += '.section .rodata,"a"\n' + ''.join(descs)
    open(path, "w").write(out)

def all_kernels(which=("k1", "k2", "k3")):
    ks = []
    if "k1" in which:
        import k1; t, vg, n = k1.gen_k1(); print("k1", vg, n); ks.append(("gm_k1_kernel", t, vg, 0, 256, k1.K1_THREADS, k1.K1_LDS))
    if "k2" in which:
        import k2; t, vg, ag, n = k2.gen_k2(); print("k2", vg, ag, n); ks.append(("gm_k2_kernel", t, vg, ag, k2.K2_GRID, k2.K2_THREADS, k2.K2_LDS))
    if "k3" in which:
        import k3; t, vg, ag, n = k3.gen_k3(); print("k3", vg, ag, n); ks.append(("gm_k3_kernel", t, vg, ag, 256, 256, k3.K3_LDS))
    return ks

if __name__ == "__main__":
    which = sys.argv[1].split(",") if len(sys.argv) > 1 else ["k1", "k2", "k3"]
    path = sys.argv[2] if len(sys.argv) > 2 else "gated_mix__linear_attn_block__spectral_gfnet__prompt.s"
    build(all_kernels(which), path)
```

```python
import sys
from gen import *
ks = all_kernels()
build([ks[0], ks[0], ks[1], ks[2]], "v_1123.s")
build([ks[0], ks[1], ks[1], ks[2]], "v_1223.s")
build([ks[0], ks[1], ks[2], ks[2]], "v_1233.s")
build(ks + ks, "v_twice.s")
```

```python
import re

REG_RE = re.compile(r'(?<![\w.])([vas])(?:(\d+)\b|\[(\d+):(\d+)\])')
TRANS = ('v_exp_f32', 'v_log_f32', 'v_rcp_f32', 'v_rsq_f32', 'v_sqrt_f32', 'v_sin_f32', 'v_cos_f32', 'v_rcp_iflag_f32')

def regs_of(op):
    out = []
    for m in REG_RE.finditer(op):
        k = m.group(1)
        if m.group(2) is not None:
            out.append((k, int(m.group(2))))
        else:
            for i in range(int(m.group(3)), int(m.group(4)) + 1):
                out.append((k, i))
    if re.search(r'\bvcc\b', op): out += [('s', 106), ('s', 107)]
    if re.search(r'\bvcc_lo\b', op): out += [('s', 106)]
    if re.search(r'\bvcc_hi\b', op): out += [('s', 107)]
    if re.search(r'\bexec\b', op): out += [('s', 126), ('s', 127)]
    if re.search(r'\bm0\b', op): out += [('s', 124)]
    return out

def split_ops(s):
    ops, depth, cur = [], 0, ''
    for ch in s:
        if ch == '[': depth += 1
        if ch == ']': depth -= 1
        if ch == ',' and depth == 0:
            ops.append(cur.strip()); cur = ''
        else:
            cur += ch
    if cur.strip(): ops.append(cur.strip())
    return ops

def mfma_passes(mn):
    if '32x32x16' in mn or '32x32x8' in mn: return 8
    if '16x16x32' in mn or '16x16x16' in mn: return 4
    raise ValueError(mn)

class Asm:
    def __init__(self):
        self.lines = []
        self.ninst = 0
        self.reset()

    def reset(self):
        self.slot = 1000
        self.valu_w = {}
        self.trans_w = {}
        self.dot_w = {}
        self.mfma_w = {}
        self.mfma_c = {}
        self.salu_m0 = -100
        self.store_r = {}
        self.vmq = []
        self.lgq = []

    def raw(self, text):
        self.lines.append(text)

    def comment(self, t):
        self.lines.append('    ; ' + t)

    def label(self, name, reset=True):
        self.lines.append(name + ':')
        if reset: self.reset()

    def _emit(self, text, slots=1):
        self.lines.append('    ' + text)
        self.slot += slots
        self.ninst += 1

    def nop(self, n):
        while n > 0:
            k = min(n, 16)
            self._emit(f's_nop {k-1}', k)
            n -= k

    def wait_vm(self, n):
        n = min(n, 63)
        if len(self.vmq) > n:
            self._emit(f's_waitcnt vmcnt({n})')
            self.vmq = self.vmq[len(self.vmq) - n:] if n > 0 else []

    def wait_lg(self, n):
        if any(e[2] for e in self.lgq): n = 0
        n = min(n, 15)
        if len(self.lgq) > n:
            self._emit(f's_waitcnt lgkmcnt({n})')
            self.lgq = self.lgq[len(self.lgq) - n:] if n > 0 else []

    def wait_vm_tag(self, tag):
        idx = [i for i, e in enumerate(self.vmq) if e[1] == tag]
        if idx: self.wait_vm(len(self.vmq) - 1 - idx[-1])

    def wait_lg_all(self): self.wait_lg(0)
    def wait_vm_all(self): self.wait_vm(0)

    def _need_waits(self, touched):
        t = set(touched)
        idx = [i for i, e in enumerate(self.vmq) if e[0] & t]
        if idx: self.wait_vm(len(self.vmq) - 1 - idx[-1])
        idx = [i for i, e in enumerate(self.lgq) if e[0] & t]
        if idx: self.wait_lg(len(self.lgq) - 1 - idx[-1])

    def I(self, text, tag=None):
        text = text.strip()
        mn, _, rest = text.partition(' ')
        ops = split_ops(rest)
        dst, src = [], []
        kind = None
        srcC = []
        if mn.startswith('v_mfma'):
            kind = 'mfma'; dst = regs_of(ops[0]); src = regs_of(ops[1]) + regs_of(ops[2]); srcC = regs_of(ops[3])
        elif mn.startswith('v_cmp'):
            kind = 'valu'; dst = regs_of(ops[0]); src = sum((regs_of(o) for o in ops[1:]), [])
        elif mn.startswith('v_permlane') and 'swap' in mn:
            kind = 'valu'; dst = regs_of(ops[0]) + regs_of(ops[1]); src = list(dst)
        elif mn.startswith('v_'):
            kind = 'valu'; dst = regs_of(ops[0]); src = sum((regs_of(o) for o in ops[1:]), [])
            if mn.startswith('v_fmac') or mn.startswith('v_dot2c'): src += dst
            if 'dpp' in mn or 'row_' in text or 'quad_perm' in text: src += dst
            if mn.startswith('v_add_co') or mn.startswith('v_addc_co') or mn.startswith('v_sub_co'):
                dst += regs_of(ops[1])
        elif mn.startswith('buffer_load') or mn.startswith('global_load'):
            if re.search(r'\blds\b', rest) or '_lds_' in mn:
                kind = 'dma'; src = sum((regs_of(o) for o in ops), []) + [('s', 124)]
            else:
                kind = 'vload'; dst = regs_of(ops[0]); src = sum((regs_of(o) for o in ops[1:]), [])
        elif mn.startswith('buffer_store') or mn.startswith('global_store') or mn.startswith('buffer_atomic') or mn.startswith('global_atomic'):
            kind = 'vstore'; src = sum((regs_of(o) for o in ops), [])
        elif mn.startswith('ds_read') or mn.startswith('ds_bpermute') or mn.startswith('ds_swizzle') or mn.startswith('ds_permute'):
            kind = 'dsread'; dst = regs_of(ops[0]); src = sum((regs_of(o) for o in ops[1:]), [])
        elif mn.startswith('ds_'):
            kind = 'dswrite'; src = sum((regs_of(o) for o in ops), [])
        elif mn.startswith('s_load') or mn.startswith('s_memtime') or mn.startswith('s_buffer_load'):
            kind = 'smem'; dst = regs_of(ops[0]); src = sum((regs_of(o) for o in ops[1:]), [])
        elif mn in ('s_waitcnt', 's_barrier', 's_nop', 's_setprio', 's_endpgm', 's_sleep') or mn.startswith('s_branch') or mn.startswith('s_cbranch'):
            kind = 'ctl'
        elif mn.startswith('s_cmp') or mn.startswith('s_bitcmp'):
            kind = 'salu'; src = sum((regs_of(o) for o in ops), [])
        elif mn.startswith('s_'):
            kind = 'salu'; dst = regs_of(ops[0]); src = sum((regs_of(o) for o in ops[1:]), [])
            if 'saveexec' in mn: dst += [('s', 126), ('s', 127)]; src += [('s', 126), ('s', 127)]
            if mn.startswith('s_addk') or mn.startswith('s_mulk'): src += dst
        else:
            raise ValueError('unknown instr ' + text)

        self._need_waits(dst + src + srcC)
        if kind in ('vload', 'dma', 'vstore') and len(self.vmq) >= 63:
            self.wait_vm(62)
        if kind in ('dsread', 'dswrite') and len(self.lgq) >= 15:
            self.wait_lg(14)

        need = 0
        def req(s):
            nonlocal need
            need = max(need, s)
        allsrc = src + srcC
        for r in allsrc + dst:
            if r in self.dot_w and not (mn.startswith('v_dot2c') and r in dst): req(self.dot_w[r] + 1 + 3)
        if kind == 'mfma':
            p = mfma_passes(mn)
            for r in allsrc:
                if r in self.valu_w: req(self.valu_w[r] + 1 + 2)
            for r in src:
                if r in self.mfma_w:
                    s, pp, _ = self.mfma_w[r]; req(s + 1 + (8 if pp == 4 else 12))
            for r in srcC:
                if r in self.mfma_w:
                    s, pp, dt = self.mfma_w[r]
                    if dt == tuple(srcC) and pp == p: pass
                    else: req(s + 1 + (6 if pp == 4 else 10))
            for r in dst:
                if r in self.mfma_w and r not in srcC:
                    s, pp, dt = self.mfma_w[r]; req(s + 1 + (8 if pp == 4 else 12))
        if kind in ('valu', 'vload', 'dma', 'vstore', 'dsread', 'dswrite'):
            for r in src + dst:
                if r in self.mfma_w:
                    s, pp, _ = self.mfma_w[r]; req(s + 1 + (8 if pp == 4 else 12))
        if kind == 'valu':
            for r in dst:
                if r in self.mfma_c:
                    s, pp = self.mfma_c[r]; req(s + 1 + (3 if pp == 4 else 7))
                if r in self.store_r: req(self.store_r[r] + 1 + 2)
            for r in src:
                if r[0] == 's' and r in self.valu_w: req(self.valu_w[r] + 1 + 2)
                if r in self.trans_w and re.sub(r'_e(32|64)$', '', mn) not in TRANS: req(self.trans_w[r] + 1 + 1)
            if mn.startswith('v_readfirstlane') or mn.startswith('v_readlane'):
                for r in src:
                    if r[0] == 'v' and r in self.valu_w: req(self.valu_w[r] + 1 + 1)
                    if r[0] == 's' and r in self.valu_w: req(self.valu_w[r] + 1 + 4)
            if mn.startswith('v_permlane') or 'dpp' in mn or 'row_' in text or 'quad_perm' in text:
                for r in src:
                    if r in self.valu_w: req(self.valu_w[r] + 1 + 2)
        if kind in ('vload', 'dma', 'vstore'):
            for r in src:
                if r[0] == 's' and r in self.valu_w: req(self.valu_w[r] + 1 + 5)
        if kind in ('vload', 'dsread'):
            for r in dst:
                if r in self.store_r: req(self.store_r[r] + 1 + 1)
                if r in self.mfma_c:
                    s, pp = self.mfma_c[r]; req(s + 1 + (3 if pp == 4 else 7))
        if kind == 'dma': req(self.salu_m0 + 1 + 1)
        if kind in ('salu', 'smem'):
            for r in src:
                if r in self.valu_w: req(self.valu_w[r] + 1 + 1)
        if need > self.slot: self.nop(need - self.slot)

        cur = self.slot
        self._emit(text)
        for r in dst:
            self.valu_w.pop(r, None); self.trans_w.pop(r, None); self.mfma_w.pop(r, None); self.dot_w.pop(r, None)
        if kind == 'valu':
            for r in dst: self.valu_w[r] = cur
            if re.sub(r'_e(32|64)$', '', mn) in TRANS:
                for r in dst: self.trans_w[r] = cur
        if mn.startswith('v_dot'):
            for r in dst: self.dot_w[r] = cur
        if kind == 'mfma':
            for r in dst: self.mfma_w[r] = (cur, p, tuple(dst))
            for r in srcC: self.mfma_c[r] = (cur, p)
        if kind == 'salu' and ('s', 124) in dst: self.salu_m0 = cur
        if kind == 'vstore' and ('x3' in mn or 'x4' in mn):
            for r in regs_of(ops[0] if mn.startswith('buffer') else ops[1]): self.store_r[r] = cur
        if kind == 'vload': self.vmq.append((set(dst), tag))
        if kind in ('dma', 'vstore'): self.vmq.append((set(), tag))
        if kind == 'dsread': self.lgq.append((set(dst), tag, False))
        if kind == 'dswrite': self.lgq.append((set(), tag, False))
        if kind == 'smem': self.lgq.append((set(dst), tag, True))

    def drain_hazards(self):
        need = 0
        for r, (s, pp, _) in self.mfma_w.items(): need = max(need, s + 1 + (8 if pp == 4 else 12))
        for r, s in self.valu_w.items(): need = max(need, s + 1 + (5 if r[0] == 's' else 3))
        if need > self.slot: self.nop(need - self.slot)

    def barrier(self):
        self.wait_lg_all()
        self.I('s_barrier')

    def text(self):
        return '\n'.join(self.lines) + '\n'

class Pool:
    def __init__(self, kind, start, end):
        self.kind, self.cur, self.end, self.hi = kind, start, end, start
    def alloc(self, n=1, align=1):
        if n >= 2 and align < 2: align = 2
        if self.kind == 's' and n >= 4: align = max(align, 4)
        self.cur = (self.cur + align - 1) // align * align
        r = self.cur; self.cur += n
        assert self.cur <= self.end, f'out of {self.kind} regs'
        self.hi = max(self.hi, self.cur)
        return r
    def mark(self): return self.cur
    def release(self, m): self.cur = m

def v(r, n=1): return f'v{r}' if n == 1 else f'v[{r}:{r+n-1}]'
def a(r, n=1): return f'a{r}' if n == 1 else f'a[{r}:{r+n-1}]'
def s(r, n=1): return f's{r}' if n == 1 else f's[{r}:{r+n-1}]'

class Rec:
    def __init__(self): self.ops = []
    def I(self, text, tag=None): self.ops.append(('I', text, tag))
    def call(self, name, *args): self.ops.append(('C', name, args))
    def barrier(self): self.call('barrier')
    def wait_vm_tag(self, t): self.call('wait_vm_tag', t)
    def group(self):
        self.ops.append(('G',))
    def endgroup(self): self.ops.append(('E',))
    def units(self):
        out, cur, ing = [], None, False
        for o in self.ops:
            if o[0] == 'G': cur = []; ing = True
            elif o[0] == 'E': out.append(cur); ing = False
            elif ing: cur.append(o)
            else: out.append([o])
        return out

def play(A, unit):
    for o in unit:
        if o[0] == 'I': A.I(o[1], tag=o[2])
        else: getattr(A, o[1])(*o[2])

def interleave(A, main, side, every, start=0):
    m, s_ = main.units(), side.units()
    si = 0
    for i, u in enumerate(m):
        if i >= start and (i - start) % every == 0 and si < len(s_):
            play(A, s_[si]); si += 1
        play(A, u)
    while si < len(s_):
        play(A, s_[si]); si += 1
```

```python
from asmgen import *
from layout import *

LOG2E = 0x3fb8aa3b

def srd(A, sreg, ptr_lo, nbytes):
    A.I(f"s_mov_b32 s{sreg}, s{ptr_lo}")
    A.I(f"s_mov_b32 s{sreg+1}, s{ptr_lo+1}")
    A.I(f"s_mov_b32 s{sreg+2}, {hex(nbytes)}")
    A.I(f"s_mov_b32 s{sreg+3}, 0x00020000")

def split_pair(A, hi, lo, a_, b_, t0, t1, hi2=None, lo2=None):
    A.I(f"v_cvt_pk_bf16_f32 v{hi}, v{a_}, v{b_}")
    if hi2 is not None: A.I(f"v_cvt_pk_bf16_f32 v{hi2}, v{a_}, v{b_}")
    A.I(f"v_lshlrev_b32 v{t0}, 16, v{hi}")
    A.I(f"v_and_b32 v{t1}, 0xffff0000, v{hi}")
    A.I(f"v_sub_f32 v{t0}, v{a_}, v{t0}")
    A.I(f"v_sub_f32 v{t1}, v{b_}, v{t1}")
    A.I(f"v_cvt_pk_bf16_f32 v{lo}, v{t0}, v{t1}")
    if lo2 is not None: A.I(f"v_cvt_pk_bf16_f32 v{lo2}, v{t0}, v{t1}")

def split_many(A, items, kA, kB):
    for (hi, lo, a_, b_, hi2, lo2) in items:
        A.I(f"v_cvt_pk_bf16_f32 v{hi}, v{a_}, v{b_}")
        if hi2 is not None: A.I(f"v_mov_b32 v{hi2}, v{hi}")
    for (hi, lo, a_, b_, hi2, lo2) in items:
        A.I(f"v_dot2c_f32_bf16 v{a_}, v{hi}, v{kA}")
        A.I(f"v_dot2c_f32_bf16 v{b_}, v{hi}, v{kB}")
    for (hi, lo, a_, b_, hi2, lo2) in items:
        A.I(f"v_cvt_pk_bf16_f32 v{lo}, v{a_}, v{b_}")
        if lo2 is not None: A.I(f"v_mov_b32 v{lo2}, v{lo}")

def split_consts(A, kA, kB):
    A.I(f"v_mov_b32 v{kA}, 0x0000bf80")
    A.I(f"v_mov_b32 v{kB}, 0xbf800000")

def kernel_wrap(name, body, vgpr, agpr=0, sgpr=100):
    acc = (vgpr + 3) // 4 * 4
    nfv = acc + agpr if agpr else vgpr
    code = f""".globl {name}
.p2align 8
.type {name},@function
{name}:
{body}"""
    desc = f""".p2align 6
.amdhsa_kernel {name}
  .amdhsa_next_free_vgpr {nfv}
  .amdhsa_next_free_sgpr {sgpr}
  .amdhsa_accum_offset {acc}
  .amdhsa_group_segment_fixed_size 0
  .amdhsa_kernarg_size 80
  .amdhsa_user_sgpr_count 2
  .amdhsa_user_sgpr_kernarg_segment_ptr 1
  .amdhsa_system_sgpr_workgroup_id_x 1
.end_amdhsa_kernel
"""
    return code, desc

import os
STAMPS = int(os.environ.get("STAMPS", "0"))
OFF_STAMP = 0x1140000
class Stamper:
    def __init__(self, A, kidx): self.A, self.n, self.kidx = A, 0, kidx
    def begin_role(self): self.n = 1
    def stamp(self, force=False):
        if not STAMPS or (STAMPS == 2 and not force): return
        assert self.n < 9
        self.A.I(f"s_memtime s[{80+2*self.n}:{81+2*self.n}]"); self.n += 1
    def first(self):
        if not STAMPS: return
        self.A.I("s_memtime s[80:81]"); self.A.raw("    s_memrealtime s[76:77]")
        self.n = 1
    def dump(self, sW, WS_, v0=250):
        if not STAMPS: return
        A = self.A
        A.wait_vm_all()
        A.raw("    s_waitcnt vmcnt(0)")
        self.stamp(True)
        A.raw("    s_memrealtime s[98:99]")
        A.raw("    s_waitcnt lgkmcnt(0)"); A.lgq = []
        A.I("s_mov_b64 exec, 1")
        A.I(f"s_lshl_b32 s79, s2, 4"); A.I(f"s_add_u32 s79, s79, s{sW}"); A.I("s_lshl_b32 s79, s79, 6")
        A.I(f"s_add_u32 s79, s79, {OFF_STAMP + self.kidx*0x80000}")
        A.I(f"v_mov_b32 v1, 0")
        for i in range(self.n):
            A.I(f"v_mov_b32 v2, s{80+2*i}")
            A.I(f"buffer_store_dword v2, v1, s[{WS_}:{WS_+3}], s79 offen offset:{4*i}")
        A.I(f"v_mov_b32 v2, s98")
        A.I(f"buffer_store_dword v2, v1, s[{WS_}:{WS_+3}], s79 offen offset:60")
        A.I(f"v_mov_b32 v2, s76")
        A.I(f"buffer_store_dword v2, v1, s[{WS_}:{WS_+3}], s79 offen offset:52")
        A.I(f"v_mov_b32 v2, {self.n}")
        A.I(f"buffer_store_dword v2, v1, s[{WS_}:{WS_+3}], s79 offen offset:56")

XMAP = int(os.environ.get("XMAP", "1"))
def decode_wg(A, b, sJ, sS1, tmp=21, tmp2=22):
    I = A.I
    if XMAP == 0:
        I(f"s_lshr_b32 s{tmp}, {b}, 3")
        I(f"s_and_b32 s{sJ}, s{tmp}, 7")
        I(f"s_lshr_b32 s{tmp}, s{tmp}, 3")
        I(f"s_and_b32 s{tmp2}, {b}, 7")
        I(f"s_lshl_b32 s{sS1}, s{tmp2}, 2")
        I(f"s_add_u32 s{sS1}, s{sS1}, s{tmp}")
    else:
        I(f"s_bfe_u32 s{sJ}, {b}, 0x20003")
        I(f"s_and_b32 s{tmp}, {b}, 1")
        I(f"s_lshl_b32 s{tmp}, s{tmp}, 2")
        I(f"s_add_u32 s{sJ}, s{sJ}, s{tmp}")
        I(f"s_lshr_b32 s{sS1}, {b}, 5")
        I(f"s_bfe_u32 s{tmp}, {b}, 0x20001")
        I(f"s_lshl_b32 s{tmp}, s{tmp}, 3")
        I(f"s_add_u32 s{sS1}, s{sS1}, s{tmp}")
```

```python
from common_k import *
import struct
def f32(x): return hex(struct.unpack('<I', struct.pack('<f', x))[0])

LDS_B = 0
LDS_X = 98304
K1_LDS = 163840
K1_THREADS = 768
SC = "sc1"
sJ, sT, sS1, sC0, sW = 16, 17, 18, 19, 20
X_, WQ_, WR_, WI_, GW_, WS_ = 24, 28, 32, 36, 40, 44
vG, vM = 1, 2

def gen_loader(A, ST):
    I = A.I
    P = Pool('v', 3, 168)
    sL = 21
    I(f"s_sub_u32 s{sL}, s{sW}, 8")
    t0, t1, t2, t3 = [P.alloc() for _ in range(4)]
    vx = [P.alloc() for _ in range(4)]; vb = [P.alloc() for _ in range(4)]
    I(f"v_xor_b32 v{t0}, v{vG}, v{vM}")
    I(f"v_lshlrev_b32 v{t0}, 4, v{t0}")
    I(f"v_lshl_add_u32 v{vx[0]}, v{vG}, 15, v{t0}")
    I(f"s_lshl_b32 s56, s{sS1}, 10")
    I(f"s_lshl_b32 s57, s{sL}, 19")
    I(f"s_add_u32 s56, s56, s57")
    I(f"s_lshl_b32 s59, s{sL}, 12")
    I(f"s_add_u32 s57, s59, {LDS_X}")
    for i in range(1, 4):
        I(f"v_xor_b32 v{vx[i]}, {64*i}, v{vx[0]}")
        I(f"v_add_u32 v{vx[i]}, {i*131072 - 1024*i}, v{vx[i]}")
    srd(A, X_, 4, 2097152)
    def issue_x(ci, tag):
        I(f"s_add_u32 s48, s{sC0}, {ci}")
        I(f"s_and_b32 s48, s48, 3")
        I(f"s_lshl_b32 s49, s48, 8")
        I(f"s_add_u32 s49, s49, s56")
        I(f"s_lshl_b32 s50, s48, 14")
        I(f"s_add_u32 m0, s50, s57")
        for i in range(4):
            I(f"buffer_load_dwordx4 v{vx[i]}, s[{X_}:{X_+3}], s49 offen offset:{1024*i} lds", tag=tag)
    for ci in range(4): issue_x(ci, 'cx')
    I(f"v_lshrrev_b32 v{t1}, 1, v{vM}")
    I(f"v_xor_b32 v{t0}, v{vG}, v{t1}")
    I(f"v_lshrrev_b32 v{t1}, 2, v{t0}")
    I(f"v_and_b32 v{t0}, 3, v{t0}")
    I(f"v_lshlrev_b32 v{t0}, 5, v{t0}")
    I(f"v_and_b32 v{t2}, 1, v{vM}")
    I(f"v_lshl_add_u32 v{t0}, v{t2}, 4, v{t0}")
    I(f"v_mul_u32_u24 v{t2}, 3072, v{vG}")
    I(f"v_add_u32 v{t0}, v{t0}, v{t2}")
    I(f"v_lshl_add_u32 v{t2}, v{t1}, 10, v{t0}")
    I(f"v_xor_b32 v{t1}, 1, v{t1}")
    I(f"v_lshl_add_u32 v{t3}, v{t1}, 10, v{t0}")
    for i in range(4):
        I(f"v_add_u32 v{vb[i]}, {1024 + 4*i*3072 - 1024*i}, v{t2 if i < 2 else t3}")
    srd(A, WQ_, 6, 1572864)
    I(f"s_mul_i32 s58, s{sL}, {16*3072}")
    I(f"s_lshl_b32 s60, s{sJ}, 7")
    I(f"s_add_u32 s58, s58, s60")
    def issue_b(ci, tag, lo=0, hi=2):
        for g_ in range(lo, hi):
            if g_ == 0:
                I(f"s_add_u32 s48, s{sC0}, {ci}")
                I(f"s_and_b32 s48, s48, 3")
                I(f"s_mul_i32 s60, s48, {128*3072}")
                I(f"s_add_u32 s60, s60, s58")
            else:
                I(f"s_add_u32 s60, s60, {64*3072}")
            I(f"s_add_u32 m0, s59, {LDS_B + 32768*(ci % 3) + 16384*g_}")
            for i in range(4):
                I(f"buffer_load_dwordx4 v{vb[i]}, s[{WQ_}:{WQ_+3}], s60 offen offset:{1024*i} lds", tag=tag)
    def sync(tag):
        A.wait_vm_tag(tag); A.barrier(); ST.stamp()
    WT = WTask(A, sL, 128, 136, 160, 161, (162, 163, 164, 165))
    WT.o = 144
    srd(A, WS_, 14, WS_BYTES)
    vq_ = list(A.vmq)
    WT.issue()
    A.vmq = vq_ + [(set(), 'w')] * 0
    srd(A, GW_, 12, 1024)
    gwr = P.alloc(8, 4); xr = P.alloc(8, 4); gl = P.alloc(8); pl = P.alloc(8); ph = P.alloc(8)
    I(f"v_and_b32 v{t0}, 31, v0")
    I(f"v_lshlrev_b32 v{t0}, 5, v{t0}")
    for k in range(2):
        I(f"buffer_load_dwordx4 v[{gwr+4*k}:{gwr+4*k+3}], v{t0}, s[{GW_}:{GW_+3}], 0 offen offset:{16*k}")
    issue_b(0, 'c0')
    issue_b(1, 'c1', 0, 1)
    sync('cx')
    issue_b(1, 'c1', 1, 2); issue_b(2, 'c2', 0, 1)
    sync('c0')
    issue_b(2, 'c2', 1, 2)
    vq_ = list(A.vmq)
    WT.finish()
    A.vmq = vq_
    sync('c1')
    issue_b(3, 'c3a', 0, 1); issue_b(3, 'c3b', 1, 2)
    I(f"s_lshl_b32 s48, s{sJ}, 3")
    I(f"s_lshl_b32 s49, s{sL}, 1")
    I(f"s_add_u32 s48, s48, s49")
    I(f"v_lshrrev_b32 v{t0}, 5, v0")
    I(f"v_add_u32 v{t0}, s48, v{t0}")
    I(f"v_and_b32 v{t1}, 7, v0")
    I(f"v_lshlrev_b32 v{t1}, 1, v{t1}")
    I(f"v_and_b32 v{t2}, 15, v{t0}")
    I(f"v_xor_b32 v{t1}, v{t1}, v{t2}")
    I(f"v_lshlrev_b32 v{t1}, 4, v{t1}")
    I(f"v_lshl_add_u32 v{t1}, v{t0}, 8, v{t1}")
    I(f"v_bfe_u32 v{t2}, v0, 3, 2")
    I(f"v_lshl_add_u32 v{t1}, v{t2}, 14, v{t1}")
    I(f"v_add_u32 v{vx[0]}, {LDS_X}, v{t1}")
    I(f"v_xor_b32 v{vx[1]}, 16, v{vx[0]}")
    sacc, ones = P.alloc(), P.alloc()
    I(f"v_mov_b32 v{sacc}, 0")
    I(f"v_mov_b32 v{ones}, 0x3f803f80")
    for i in range(8):
        I(f"v_mov_b32 v{pl+i}, 0"); I(f"v_mov_b32 v{ph+i}, 0")
    I(f"s_lshl_b32 s48, s{sS1}, 8")
    I(f"s_add_u32 s48, s48, {OFF_G}")
    I(f"v_lshlrev_b32 v{t0}, 2, v{t0}")
    for k in range(2): I(f"ds_read_b128 v[{xr+4*k}:{xr+4*k+3}], v{vx[k]}")
    for i in range(8):
        I(f"v_and_b32 v{gl+i}, 0xffff, v{gwr+i}")
        I(f"v_and_b32 v{gwr+i}, 0xffff0000, v{gwr+i}")
    for i in range(8):
        I(f"v_dot2c_f32_bf16 v{pl+i}, v{xr+i}, v{gl+i}")
        I(f"v_dot2c_f32_bf16 v{ph+i}, v{xr+i}, v{gwr+i}")
    for i in range(8): I(f"v_cvt_pk_bf16_f32 v{pl+i}, v{pl+i}, v{ph+i}")
    for i in range(8): I(f"v_dot2c_f32_bf16 v{sacc}, v{pl+i}, v{ones}")
    for sh in (8, 4, 2, 1):
        I(f"v_add_f32_dpp v{sacc}, v{sacc}, v{sacc} row_ror:{sh} row_mask:0xf bank_mask:0xf")
    I(f"v_mov_b32 v{t1}, v{sacc}")
    I(f"v_permlane16_swap_b32 v{sacc}, v{t1}")
    I(f"v_add_f32 v{sacc}, v{sacc}, v{t1}")
    I(f"v_cvt_pk_bf16_f32 v{sacc}, v{sacc}, v{sacc}")
    I(f"v_lshlrev_b32 v{sacc}, 16, v{sacc}")
    I(f"v_mul_f32 v{sacc}, 0xbfb8aa3b, v{sacc}")
    I(f"v_exp_f32 v{sacc}, v{sacc}")
    I(f"v_add_f32 v{sacc}, 1.0, v{sacc}")
    I(f"v_rcp_f32 v{sacc}, v{sacc}")
    I(f"v_cvt_pk_bf16_f32 v{sacc}, v{sacc}, v{sacc}")
    I(f"v_lshlrev_b32 v{sacc}, 16, v{sacc}")
    I("s_mov_b32 s50, 1"); I("s_mov_b32 s51, 1")
    I("s_mov_b64 exec, s[50:51]")
    vq_ = list(A.vmq)
    I(f"buffer_store_dword v{sacc}, v{t0}, s[{WS_}:{WS_+3}], s48 offen")
    A.vmq = vq_
    I("s_mov_b64 exec, -1")
    sync('c2'); sync('c3a'); sync('c3b')
    ST.dump(sW, WS_)
    I("s_endpgm")
    return P.hi

def gen_gemm(A, ST):
    I = A.I
    P = Pool('v', 3, 56)
    vl2 = P.alloc()
    t0, t1, t2, t3 = [P.alloc() for _ in range(4)]
    srd(A, WS_, 14, WS_BYTES)
    P2 = Pool('v', 56, 168)
    aaddr = [P2.alloc() for _ in range(4)]
    baddr = [P2.alloc() for _ in range(2)]
    I(f"s_lshl_b32 s48, s{sC0}, 14")
    I(f"s_add_u32 s48, s48, {LDS_X}")
    I(f"v_lshl_add_u32 v{t0}, v{vM}, 8, s48")
    I(f"v_xor_b32 v{t1}, v{vG}, v{vM}")
    I(f"v_lshl_add_u32 v{aaddr[0]}, v{t1}, 4, v{t0}")
    for ks in range(1, 4): I(f"v_xor_b32 v{aaddr[ks]}, {64*ks}, v{aaddr[0]}")
    I(f"v_bfe_u32 v{t0}, v0, 2, 2")
    I(f"v_and_b32 v{t1}, 1, v{vG}")
    I(f"v_lshl_or_b32 v{t1}, v{t1}, 2, v{t0}")
    I(f"v_xor_b32 v{t1}, s{sW}, v{t1}")
    I(f"v_lshl_add_u32 v{t0}, v{vG}, 3, v{t0}")
    I(f"v_lshlrev_b32 v{t0}, 8, v{t0}")
    I(f"v_lshl_add_u32 v{t0}, v{t1}, 5, v{t0}")
    I(f"v_and_b32 v{t1}, 3, v0")
    I(f"v_lshl_add_u32 v{baddr[0]}, v{t1}, 3, v{t0}")
    I(f"v_xor_b32 v{baddr[1]}, 0x80, v{baddr[0]}")
    acc = [[P2.alloc(4, 4) for seg in range(2)] for mt in range(4)]
    af = [[P2.alloc(4, 4) for mt in range(4)] for _ in range(3)]
    bf = [[P2.alloc(4, 4) for seg in range(2)] for _ in range(3)]
    pkq = [P.alloc(4, 4), P.alloc(4, 4)]; vq = [P.alloc(4, 4), P.alloc(4, 4)]; ones = P.alloc(4, 4)
    kvacc, zacc = P.alloc(4, 4), P.alloc(4, 4)
    vL2E, vza = P.alloc(), P.alloc()
    tt = [P.alloc() for _ in range(8)]
    for i in range(4): I(f"v_mov_b32 v{ones+i}, 0x3f803f80")
    I(f"v_mov_b32 v{vL2E}, {hex(LOG2E)}")
    I(f"s_lshl_b32 s48, s{sJ}, 2")
    I(f"s_add_u32 s48, s48, s{sW}")
    I(f"s_lshl_b32 s52, s48, 15")
    I(f"s_lshl_b32 s50, s{sS1}, 10")
    I(f"s_add_u32 s52, s52, s50")
    I(f"s_add_u32 s52, s52, {OFF_KVP}")
    I(f"s_lshl_b32 s51, s{sS1}, 11")
    I(f"s_lshl_b32 s50, s48, 6")
    I(f"s_add_u32 s51, s51, s50")
    I(f"s_add_u32 s51, s51, {OFF_ZP}")
    I(f"v_lshlrev_b32 v{vl2}, 4, v0")
    I(f"v_lshlrev_b32 v{vza}, 2, v{vM}")
    def read_list(gs):
        ks, buf = gs & 3, gs % 3
        L_ = []
        for seg in range(2):
            for half in range(2):
                L_.append(f"ds_read_b64_tr_b16 v[{bf[buf][seg]+2*half}:{bf[buf][seg]+2*half+1}], v{baddr[seg]} offset:{ks*8192+half*1024}")
        for mt in range(4):
            L_.append(f"ds_read_b128 v[{af[buf][mt]}:{af[buf][mt]+3}], v{aaddr[ks]} offset:{mt*4096}")
        return L_
    def mfma_list(gs):
        buf = gs % 3
        L_ = []
        for mt in range(4):
            for seg in range(2):
                c = acc[mt][seg]
                cs = "0" if gs == 0 else f"v[{c}:{c+3}]"
                L_.append(f"v_mfma_f32_16x16x32_bf16 v[{c}:{c+3}], v[{af[buf][mt]}:{af[buf][mt]+3}], v[{bf[buf][seg]}:{bf[buf][seg]+3}], {cs}")
        return L_
    def mfmas(gs):
        for x_ in mfma_list(gs): I(x_)
    def advance(ci):
        I(f"s_add_u32 s48, s{sC0}, {ci+1}")
        I(f"s_and_b32 s48, s48, 3")
        I(f"s_cmp_eq_u32 s48, 0")
        I(f"s_movk_i32 s49, 16384")
        I(f"s_cselect_b32 s48, {hex(-49152 & 0xffffffff)}, s49")
        for ks in range(4): I(f"v_add_u32 v{aaddr[ks]}, s48, v{aaddr[ks]}")
        d = 32768 if ci < 2 else (-65536 & 0xffffffff)
        for seg in range(2): I(f"v_add_u32 v{baddr[seg]}, {hex(d)}, v{baddr[seg]}")
    ST.stamp()
    A.barrier()
    done = 0
    for gs in range(16):
        if gs & 3 == 0 or gs == 14:
            if gs in (14,):
                while done < gs: mfmas(done); done += 1
            if gs & 3 == 0 and gs: advance((gs >> 2) - 1)
            A.barrier()
            if gs & 3 == 0: ST.stamp()
        rl = read_list(gs)
        if done <= gs - 2:
            ml = mfma_list(done); done += 1
            for r_, m_ in zip(rl, ml): I(m_); I(r_)
        else:
            for r_ in rl: I(r_)
    while done < 15: mfmas(done); done += 1
    ST.stamp()
    def last_mfma(mt):
        buf = 15 % 3
        for seg in range(2):
            c = acc[mt][seg]
            I(f"v_mfma_f32_16x16x32_bf16 v[{c}:{c+3}], v[{af[buf][mt]}:{af[buf][mt]+3}], v[{bf[buf][seg]}:{bf[buf][seg]+3}], v[{c}:{c+3}]")
    last_mfma(0); last_mfma(1); last_mfma(2); last_mfma(3)
    for mt in range(4):
        k0 = acc[mt][0]; v0_ = acc[mt][1]
        for pr in range(2):
            I(f"v_cvt_pk_bf16_f32 v{tt[pr]}, v{k0+2*pr}, v{k0+2*pr+1}")
            I(f"v_cvt_pk_bf16_f32 v{vq[mt>>1] + 2*(mt&1) + pr}, v{v0_+2*pr}, v{v0_+2*pr+1}")
        for pr in range(2):
            I(f"v_lshlrev_b32 v{k0+2*pr}, 16, v{tt[pr]}")
            I(f"v_and_b32 v{k0+2*pr+1}, 0xffff0000, v{tt[pr]}")
        for i in range(4): I(f"v_mul_f32 v{tt[4+i]}, v{vL2E}, v{k0+i}")
        for i in range(4): I(f"v_exp_f32 v{tt[4+i]}, v{tt[4+i]} clamp")
        for i in range(4): I(f"v_max_f32 v{k0+i}, 0x358637bd, v{k0+i}")
        for i in range(4): I(f"v_add_f32 v{k0+i}, v{k0+i}, v{tt[4+i]}")
        for pr in range(2):
            I(f"v_cvt_pk_bf16_f32 v{pkq[mt>>1] + 2*(mt&1) + pr}, v{k0+2*pr}, v{k0+2*pr+1}")
        if mt & 1:
            h2 = mt >> 1
            cs = "0" if h2 == 0 else f"v[{kvacc}:{kvacc+3}]"
            cz = "0" if h2 == 0 else f"v[{zacc}:{zacc+3}]"
            I(f"v_mfma_f32_16x16x32_bf16 v[{kvacc}:{kvacc+3}], v[{vq[h2]}:{vq[h2]+3}], v[{pkq[h2]}:{pkq[h2]+3}], {cs}")
            I(f"v_mfma_f32_16x16x32_bf16 v[{zacc}:{zacc+3}], v[{ones}:{ones+3}], v[{pkq[h2]}:{pkq[h2]+3}], {cz}")
    I(f"buffer_store_dwordx4 v[{kvacc}:{kvacc+3}], v{vl2}, s[{WS_}:{WS_+3}], s52 offen {SC}")
    I("s_mov_b64 exec, 0xffff")
    I(f"buffer_store_dword v{zacc}, v{vza}, s[{WS_}:{WS_+3}], s51 offen {SC}")
    ST.stamp()
    ST.dump(sW, WS_)
    I("s_endpgm")
    return max(P.hi, P2.hi)

class WTask:
    def __init__(self, A, sH, R_, Iq, orr, oii, temps):
        self.A, self.sH = A, sH
        self.R_, self.Iq, self.orr, self.oii = R_, Iq, orr, oii
        self.t0, self.t1, self.t2, self.t3 = temps
    def issue(self):
        A = self.A; I = A.I; sH = self.sH
        R_, Iq, orr, oii, t0, t1, t2, t3 = self.R_, self.Iq, self.orr, self.oii, self.t0, self.t1, self.t2, self.t3
        srd(A, WR_, 8, 1052672)
        srd(A, WI_, 10, 1052672)
        I(f"s_lshl_b32 s68, s2, 1")
        I(f"s_add_u32 s68, s68, s{sH}")
        I(f"s_add_u32 s49, s2, 512")
        I(f"s_cmp_eq_u32 s{sH}, 2")
        I(f"s_cselect_b32 s68, s49, s68")
        I(f"s_cmp_eq_u32 s{sH}, 3")
        I(f"s_cselect_b32 s68, 1024, s68")
        I(f"s_cmp_ge_u32 s68, 528")
        A.wait_lg_all()
        I("s_cbranch_scc1 K1_WISSUED")
        I(f"s_lshr_b32 s49, s68, 1")
        I(f"s_lshr_b32 s50, s49, 3")
        I(f"s_and_b32 s51, s49, 7")
        I(f"s_lshl_b32 s51, s51, 8")
        I(f"s_add_u32 s50, s50, s51")
        I(f"v_lshl_add_u32 v{t0}, v{vG}, 6, s50")
        I(f"v_sub_u32 v{t1}, 2048, v{t0}")
        I(f"v_and_b32 v{t1}, 2047, v{t1}")
        I(f"v_mul_u32_u24 v{t0}, 514, v{t0}")
        I(f"v_mul_u32_u24 v{t1}, 514, v{t1}")
        I(f"s_lshl_b32 s69, s49, 13")
        I(f"s_add_u32 s69, s69, {OFF_WEFF}")
        I(f"v_lshlrev_b32 v{t3}, 5, v{vM}")
        I(f"v_add_u32 v{t2}, v{t0}, v{t3}")
        I(f"v_sub_u32 v{t3}, v{t1}, v{t3}")
        I(f"v_add_u32 v{t3}, 482, v{t3}")
        I(f"v_add_u32 v{t0}, 512, v{t0}")
        I(f"s_bitcmp1_b32 s68, 0")
        I(f"s_cselect_b64 s[70:71], -1, 0")
        I(f"v_cndmask_b32 v{t2}, v{t2}, v{t3}, s[70:71]")
        I(f"v_cndmask_b32 v{t1}, v{t1}, v{t0}, s[70:71]")
        for k in range(2):
            I(f"buffer_load_dwordx4 v[{R_+4*k}:{R_+4*k+3}], v{t2}, s[{WR_}:{WR_+3}], 0 offen offset:{16*k}")
            I(f"buffer_load_dwordx4 v[{Iq+4*k}:{Iq+4*k+3}], v{t2}, s[{WI_}:{WI_+3}], 0 offen offset:{16*k}")
        I(f"buffer_load_ushort v{orr}, v{t1}, s[{WR_}:{WR_+3}], 0 offen")
        I(f"buffer_load_ushort v{oii}, v{t1}, s[{WI_}:{WI_+3}], 0 offen")
        A.drain_hazards()
        A.label("K1_WISSUED")
    def finish(self):
        A = self.A; I = A.I
        R_, Iq, o, orr, oii, t0, t1, t2, t3 = self.R_, self.Iq, self.o, self.orr, self.oii, self.t0, self.t1, self.t2, self.t3
        I(f"s_cmp_ge_u32 s68, 528")
        A.drain_hazards()
        I("s_cbranch_scc1 K1_WDONE")
        I(f"v_lshlrev_b32 v{t3}, 11, v{vG}")
        I(f"v_lshl_add_u32 v{t3}, v{vM}, 4, v{t3}")
        I("s_mov_b32 s72, 0x05040100"); I("s_mov_b32 s73, 0x07060302")
        I("s_mov_b32 s74, 0x00010001"); I("s_mov_b32 s75, 0x00010001")
        I(f"s_bitcmp1_b32 s68, 0")
        I("s_cbranch_scc1 K1_WMIR")
        for mir in range(2):
            if mir: A.label("K1_WMIR")
            if mir:
                for k in range(8): I(f"v_xor_b32 v{Iq+k}, 0x80008000, v{Iq+k}")
            for c in range(16):
                tq = 15 - c if mir else c
                I(f"v_perm_b32 v{o + 4*(c&3) + (c>>2)}, v{Iq+(tq>>1)}, v{R_+(tq>>1)}, s{72+(tq&1)}")
            I("s_mov_b64 exec, s[74:75]")
            I(f"v_lshlrev_b32 v{t0}, 16, v{o}")
            I(f"v_and_b32 v{t1}, 0xffff0000, v{o}")
            I(f"v_lshlrev_b32 v{orr}, 16, v{orr}")
            I(f"v_lshlrev_b32 v{oii}, 16, v{oii}")
            I(f"v_add_f32 v{t0}, v{t0}, v{orr}")
            I(f"v_add_f32 v{t1}, v{t1}, v{oii}" if mir else f"v_sub_f32 v{t1}, v{t1}, v{oii}")
            I(f"v_mul_f32 v{t0}, 0.5, v{t0}")
            I(f"v_mul_f32 v{t1}, 0.5, v{t1}")
            I(f"v_cvt_pk_bf16_f32 v{o}, v{t0}, v{t1}")
            I("s_mov_b64 exec, -1")
            for k4 in range(4):
                I(f"buffer_store_dwordx4 v[{o+4*k4}:{o+4*k4+3}], v{t3}, s[{WS_}:{WS_+3}], s69 offen offset:{512*k4 + 256*mir} {SC}")
            A.nop(2)
            A.drain_hazards()
            if not mir: I("s_branch K1_WDONE")
        A.label("K1_WDONE")

def gen_fft(A, ST):
    I = A.I
    P = Pool('v', 3, 168)
    sH = 21
    I(f"s_sub_u32 s{sH}, s{sW}, 4")
    t0, t1, t2, t3 = [P.alloc() for _ in range(4)]
    kA, kB = P.alloc(), P.alloc()
    split_consts(A, kA, kB)
    srd(A, WS_, 14, WS_BYTES)
    tr1 = [[P.alloc(4, 4) for hl in range(2)] for u in range(2)]
    cv = P.alloc(8, 4)
    vP0, vP1, vK, vSg = P.alloc(), P.alloc(), P.alloc(), P.alloc()
    I(f"v_lshrrev_b32 v{t0}, 1, v{vM}")
    I(f"s_lshl_b32 s53, s{sH}, 3")
    I(f"v_add_u32 v{t0}, s53, v{t0}")
    I(f"v_and_b32 v{t1}, 1, v{vM}")
    I(f"v_mul_u32_u24 v{vP0}, s{sS1}, v{t0}")
    I(f"v_lshl_add_u32 v{vP0}, v{t1}, 9, v{vP0}")
    I(f"v_lshlrev_b32 v{vP1}, 5, v{t0}")
    I(f"v_and_b32 v{vSg}, 1, v{t0}")
    I(f"v_mul_u32_u24 v{vSg}, 0x8000, v{vSg}")
    I(f"v_lshl_or_b32 v{vSg}, v{vSg}, 16, v{vSg}")
    I(f"s_cmp_eq_u32 s{sH}, 0")
    I(f"s_cselect_b32 s54, 0x00020002, 0")
    I(f"s_mov_b32 s55, s54")
    I(f"s_mov_b64 exec, s[54:55]")
    I(f"v_mov_b32 v{vP1}, 1024")
    I(f"v_mov_b32 v{vP0}, 0")
    I(f"s_mov_b64 exec, -1")
    I(f"v_lshlrev_b32 v{t0}, 3, v{vG}")
    I(f"v_mad_u32_u24 v{vP0}, v{t0}, v{vP1}, v{vP0}")
    I(f"v_cvt_f32_u32 v{vP0}, v{vP0}")
    I(f"v_cvt_f32_u32 v{vP1}, v{vP1}")
    I(f"v_mul_f32 v{vP0}, 0x3a000000, v{vP0}")
    I(f"v_mul_f32 v{vP1}, 0x3a000000, v{vP1}")
    I(f"v_add_f32 v{t0}, v{vP0}, v{vP1}")
    I(f"v_cos_f32 v{vK}, v{vP1}")
    I(f"v_cos_f32 v{cv}, v{vP0}")
    I(f"v_cos_f32 v{cv+1}, v{t0}")
    I(f"v_add_f32 v{vK}, v{vK}, v{vK}")
    for j_ in range(2, 8): I(f"v_fma_f32 v{cv+j_}, v{vK}, v{cv+j_-1}, -v{cv+j_-2}")
    split_many(A, [(tr1[0][0] + pr, tr1[0][1] + pr, cv + 2*pr, cv + 2*pr + 1, None, None) for pr in range(4)], kA, kB)
    for hl in range(2):
        for pr in range(4): I(f"v_xor_b32 v{tr1[1][hl]+pr}, v{vSg}, v{tr1[0][hl]+pr}")
    tr2 = [[P.alloc(4, 4) for cs in range(2)] for e in range(4)]
    cd, sd, rc, rs = P.alloc(), P.alloc(), P.alloc(), P.alloc()
    cs8 = P.alloc(8, 4)
    ce = [cs8 + k for k in range(4)]; se = [cs8 + 4 + k for k in range(4)]
    c1 = [cv + e for e in range(4)]; s1_ = [cv + 4 + e for e in range(4)]
    I(f"s_lshl_b32 s53, s{sJ}, 2")
    I(f"v_lshl_add_u32 v{t0}, v{vG}, 5, s53")
    I(f"v_mul_u32_u24 v{vP0}, v{t0}, v{vM}")
    I(f"v_cvt_f32_u32 v{vP0}, v{vP0}")
    I(f"v_mul_f32 v{vP0}, 0x3b000000, v{vP0}")
    I(f"v_cvt_f32_u32 v{vP1}, v{vM}")
    I(f"v_mul_f32 v{t0}, 0x3e800000, v{vP1}")
    I(f"v_mul_f32 v{vP1}, 0x3b000000, v{vP1}")
    I(f"v_cos_f32 v{ce[0]}, v{vP0}"); I(f"v_sin_f32 v{se[0]}, v{vP0}")
    I(f"v_cos_f32 v{cd}, v{vP1}"); I(f"v_sin_f32 v{sd}, v{vP1}")
    I(f"v_cos_f32 v{rc}, v{t0}"); I(f"v_sin_f32 v{rs}, v{t0}")
    I(f"v_rndne_f32 v{rc}, v{rc}"); I(f"v_rndne_f32 v{rs}, v{rs}")
    I(f"v_and_b32 v{vSg}, 1, v{vM}")
    I(f"v_mul_u32_u24 v{vSg}, 0x8000, v{vSg}")
    I(f"v_lshl_or_b32 v{vSg}, v{vSg}, 16, v{vSg}")
    for e in range(1, 4):
        I(f"v_mul_f32 v{t0}, v{se[e-1]}, v{sd}")
        I(f"v_mul_f32 v{t1}, v{ce[e-1]}, v{sd}")
        I(f"v_fma_f32 v{ce[e]}, v{ce[e-1]}, v{cd}, -v{t0}")
        I(f"v_fma_f32 v{se[e]}, v{se[e-1]}, v{cd}, v{t1}")
    for e in range(4):
        I(f"v_mul_f32 v{t0}, v{se[e]}, v{rs}")
        I(f"v_mul_f32 v{t1}, v{ce[e]}, v{rs}")
        I(f"v_fma_f32 v{c1[e]}, v{ce[e]}, v{rc}, -v{t0}")
        I(f"v_fma_f32 v{s1_[e]}, v{se[e]}, v{rc}, v{t1}")
    split_many(A, [(tr2[e][0], tr2[e][0] + 2, ce[e], c1[e], None, None) for e in range(4)] +
                  [(tr2[e][1], tr2[e][1] + 2, se[e], s1_[e], None, None) for e in range(4)], kA, kB)
    for e in range(4):
        for cs in range(2):
            I(f"v_xor_b32 v{tr2[e][cs]+1}, v{vSg}, v{tr2[e][cs]}")
            I(f"v_xor_b32 v{tr2[e][cs]+3}, v{vSg}, v{tr2[e][cs]+2}")
    a0, a1 = P.alloc(), P.alloc()
    I(f"v_bfe_u32 v{t0}, v0, 2, 2")
    I(f"v_lshl_add_u32 v{t0}, v{vG}, 3, v{t0}")
    I(f"v_and_b32 v{t1}, 3, v0")
    I(f"s_lshr_b32 s53, s{sJ}, 1")
    I(f"v_lshl_add_u32 v{t1}, v{t1}, 2, s53")
    I(f"v_and_b32 v{t2}, 15, v{t0}")
    I(f"v_xor_b32 v{t1}, v{t1}, v{t2}")
    I(f"v_lshlrev_b32 v{t1}, 4, v{t1}")
    I(f"v_lshl_add_u32 v{t1}, v{t0}, 8, v{t1}")
    I(f"s_and_b32 s53, s{sJ}, 1")
    I(f"s_lshl_b32 s53, s53, 3")
    I(f"s_add_u32 s53, s53, {LDS_X}")
    I(f"v_add_u32 v{a0}, s53, v{t1}")
    I(f"v_xor_b32 v{a1}, 64, v{a0}")
    vcs, vsn, vaddr, vaddr2 = cd, sd, rc, rs
    I(f"v_cvt_f32_u32 v{vcs}, s{sS1}")
    I(f"v_mul_f32 v{vcs}, 0x3c800000, v{vcs}")
    I(f"v_sin_f32 v{vsn}, v{vcs}")
    I(f"v_cos_f32 v{vcs}, v{vcs}")
    I(f"v_and_b32 v{t0}, 3, v0")
    I(f"v_lshlrev_b32 v{vaddr2}, 7, v{t0}")
    I(f"v_bfe_u32 v{t0}, v0, 2, 2")
    I(f"v_lshl_add_u32 v{vaddr2}, v{t0}, 4, v{vaddr2}")
    I(f"v_and_b32 v{t0}, 1, v{vG}")
    I(f"v_lshl_add_u32 v{vaddr2}, v{t0}, 6, v{vaddr2}")
    I(f"v_and_b32 v{t0}, 2, v{vG}")
    I(f"v_lshl_add_u32 v{vaddr}, v{t0}, 18, v{vaddr2}")
    I(f"s_lshl_b32 s62, s{sH}, 20")
    I(f"s_lshl_b32 s53, s{sS1}, 12")
    I(f"s_lshl_b32 s66, s{sJ}, 9")
    I(f"s_add_u32 s66, s66, s53")
    if OFF_T2: I(f"s_add_u32 s66, s66, {OFF_T2}")
    I(f"s_add_u32 s62, s62, s66")
    I(f"s_add_u32 s63, s62, {131072}")
    I(f"s_add_u32 s64, s62, {2*131072}")
    I(f"s_add_u32 s65, s62, {3*131072}")
    I(f"s_add_u32 s66, s66, {32*131072}")
    I(f"s_cmp_eq_u32 s{sH}, 0")
    I(f"s_cselect_b64 s[54:55], 0xffff, 0")
    ST.stamp()
    A.barrier()
    ST.stamp()
    F = Rec(); FI = F.I
    xa = [[P.alloc(4, 4) for u in range(2)] for tt in range(4)]
    d1 = [P.alloc(4, 4) for tt in range(4)]
    for tt in range(4):
        for u in range(2):
            FI(f"ds_read_b64_tr_b16 v[{xa[tt][u]}:{xa[tt][u]+1}], v{a0} offset:{tt*16384+u*8192}")
            FI(f"ds_read_b64_tr_b16 v[{xa[tt][u]+2}:{xa[tt][u]+3}], v{a1} offset:{tt*16384+u*8192+1024}")
    for tt in range(4):
        for u in range(2):
            for hl in range(2):
                cs = "0" if (u == 0 and hl == 0) else f"v[{d1[tt]}:{d1[tt]+3}]"
                FI(f"v_mfma_f32_16x16x32_bf16 v[{d1[tt]}:{d1[tt]+3}], v[{xa[tt][u]}:{xa[tt][u]+3}], v[{tr1[u][hl]}:{tr1[u][hl]+3}], {cs}")
    F.barrier()
    dh = [P.alloc(4, 4) for e in range(4)]; dl = [P.alloc(4, 4) for e in range(4)]
    pc = [xa[e][0] for e in range(4)]; ps = [xa[e][1] for e in range(4)]
    for eh in range(2):
        split_many(F, [(dh[e] + pr, dl[e] + pr, d1[2*pr] + e, d1[2*pr+1] + e, dh[e] + 2 + pr, dl[e] + 2 + pr) for e in (2*eh, 2*eh+1) for pr in range(2)], kA, kB)
        for e in (2*eh, 2*eh+1):
            for (acc_, cs_) in ((pc[e], 0), (ps[e], 1)):
                FI(f"v_mfma_f32_16x16x32_bf16 v[{acc_}:{acc_+3}], v[{dh[e]}:{dh[e]+3}], v[{tr2[e][cs_]}:{tr2[e][cs_]+3}], 0")
                FI(f"v_mfma_f32_16x16x32_bf16 v[{acc_}:{acc_+3}], v[{dl[e]}:{dl[e]+3}], v[{tr2[e][cs_]}:{tr2[e][cs_]+3}], v[{acc_}:{acc_+3}]")
        if eh == 1: F.barrier()
    rq = [tr1[0][0], tr1[0][1], tr1[1][0]]; iq = [tr1[1][1], d1[0], d1[1]]
    re = [[rq[ks2] + e for e in range(4)] for ks2 in range(3)]
    im = [[iq[ks2] + e for e in range(4)] for ks2 in range(3)]
    for e in range(4):
        for ks2 in range(2):
            FI(f"v_add_f32 v{re[ks2][e]}, v{pc[e]+2*ks2}, v{ps[e]+2*ks2+1}")
            FI(f"v_sub_f32 v{im[ks2][e]}, v{pc[e]+2*ks2+1}, v{ps[e]+2*ks2}")
    FI("s_mov_b64 exec, s[54:55]")
    for e in range(4):
        FI(f"v_mov_b32 v{re[0][e]}, v{pc[e]}")
        FI(f"v_xor_b32 v{im[0][e]}, 0x80000000, v{ps[e]}")
    FI("s_mov_b64 exec, -1")
    gr = [(dh[0], dh[1]), (dh[2], dh[3]), (dl[0], dl[1])]
    def granule(R, ks2):
        gh, gl = gr[ks2]
        split_many(R, [(gh + pr, gl + pr, re[ks2][2*pr], re[ks2][2*pr+1], None, None) for pr in range(2)] +
                      [(gh + 2 + pr, gl + 2 + pr, im[ks2][2*pr], im[ks2][2*pr+1], None, None) for pr in range(2)], kA, kB)
        for i in range(4): R.I(f"v_permlane16_swap_b32 v{gh+i}, v{gl+i}")
    for ks2 in range(2):
        gh, gl = gr[ks2]
        granule(F, ks2)
        if ks2 == 1: F.barrier()
        FI(f"buffer_store_dwordx4 v[{gh}:{gh+3}], v{vaddr}, s[{WS_}:{WS_+3}], s{62+ks2} offen {SC}")
        FI(f"buffer_store_dwordx4 v[{gl}:{gl+3}], v{vaddr}, s[{WS_}:{WS_+3}], s{64+ks2} offen {SC}")
    NOFFT = int(os.environ.get("NOFFT", "0"))
    for u in F.units():
        if NOFFT and not (u[0][0] == 'C'): continue
        play(A, u)
    ST.stamp()
    I(f"s_cmp_lg_u32 s{sH}, 0")
    A.drain_hazards()
    I("s_cbranch_scc1 K1_NOSP")
    for e in range(4):
        I(f"v_mul_f32 v{t2}, v{ps[e]+1}, v{vsn}")
        I(f"v_fma_f32 v{re[2][e]}, v{pc[e]+1}, v{vcs}, -v{t2}")
        I(f"v_mul_f32 v{t3}, v{ps[e]+1}, v{vcs}")
        I(f"v_fma_f32 v{im[2][e]}, -v{pc[e]+1}, v{vsn}, -v{t3}")
    granule(A, 2)
    I("s_mov_b64 exec, 0xffffffff")
    gh, gl = gr[2]
    I(f"buffer_store_dwordx4 v[{gh}:{gh+3}], v{vaddr2}, s[{WS_}:{WS_+3}], s66 offen {SC}")
    vmq_save = list(A.vmq)
    I("s_mov_b64 exec, -1")
    A.label("K1_NOSP")
    A.vmq = vmq_save
    ST.stamp()
    if STAMPS: A.barrier(); A.barrier()
    ST.dump(sW, WS_)
    return P.hi

def gen_k1():
    A = Asm(); I = A.I
    I("s_cmp_ge_u32 s2, 256")
    I("s_cbranch_scc1 K1_END")
    ST = Stamper(A, 0); ST.first()
    I("s_load_dwordx4 s[4:7], s[0:1], 0")
    I("s_load_dwordx4 s[8:11], s[0:1], 32")
    I("s_load_dwordx2 s[12:13], s[0:1], 48")
    I("s_load_dwordx2 s[14:15], s[0:1], 72")
    I("v_lshrrev_b32 v1, 6, v0")
    I("v_and_b32 v0, 63, v0")
    I(f"v_readfirstlane_b32 s{sW}, v1")
    decode_wg(A, "s2", sJ, sS1)
    I(f"s_add_u32 s{sC0}, s{sS1}, s{sJ}")
    I(f"s_and_b32 s{sC0}, s{sC0}, 3")
    I(f"v_lshrrev_b32 v{vG}, 4, v0")
    I(f"v_and_b32 v{vM}, 15, v0")
    I(f"s_cmp_lt_u32 s{sW}, 8")
    A.drain_hazards()
    I("s_cbranch_scc1 K1_NOTL")
    lg_save = list(A.lgq)
    h1 = gen_loader(A, ST)
    A.label("K1_NOTL"); A.lgq = list(lg_save); ST.begin_role()
    I(f"s_cmp_ge_u32 s{sW}, 4")
    I("s_cbranch_scc1 K1_FFT")
    h2 = gen_gemm(A, ST)
    A.label("K1_FFT"); A.lgq = list(lg_save); ST.begin_role()
    h3 = gen_fft(A, ST)
    A.label("K1_END")
    I("s_endpgm")
    return A.text(), max(h1, h2, h3), A.ninst

if __name__ == "__main__":
    t, vg, n = gen_k1()
    print(vg, n)
```

```python
from common_k import *
import struct, os
def f32(x): return hex(struct.unpack('<I', struct.pack('<f', x))[0])

K2_LDS = 65536
N_FFT, N_KV = 136, 32
K2_GRID = N_FFT + N_KV + 256
SC = "sc1"
sW = 20
X_, WQ_, WO_, WS_ = 24, 28, 32, 44
LDS_W = 32768

def merge(A, mf, va, per):
    vi = 0
    for m_ in mf:
        A.I(m_)
        for _ in range(per):
            if vi < len(va): A.I(va[vi]); vi += 1
    while vi < len(va): A.I(va[vi]); vi += 1

class L_:
    def __init__(self): self.l = []
    def I(self, t, tag=None): self.l.append(t)

def gen_fft(A, ST):
    I = A.I
    P = Pool('v', 1, 256)
    sK2, sKB4, sKB = 16, 17, 18
    I(f"s_lshr_b32 s{sK2}, s2, 2")
    I(f"s_and_b32 s{sKB4}, s2, 3")
    t0, t1, t2, t3 = [P.alloc() for _ in range(4)]
    vN, vH = P.alloc(), P.alloc()
    vo = [P.alloc() for _ in range(4)]
    I(f"s_and_b32 s48, s{sW}, 1")
    I(f"s_lshl_b32 s48, s48, 3")
    I(f"v_xor_b32 v{t0}, s48, v0")
    I(f"v_lshrrev_b32 v{t1}, 3, v{t0}")
    I(f"v_and_b32 v{t0}, 7, v{t0}")
    I(f"v_lshlrev_b32 v{t0}, 4, v{t0}")
    I(f"v_lshl_add_u32 v{vo[0]}, v{t1}, 9, v{t0}")
    for i in range(1, 4):
        I(f"v_xor_b32 v{vo[i]}, {16*i}, v{vo[0]}")
        I(f"v_add_u32 v{vo[i]}, {3072*i}, v{vo[i]}")
    I(f"s_lshl_b32 s48, s{sK2}, 17")
    I(f"s_lshl_b32 s49, s{sW}, 15")
    I(f"s_add_u32 s48, s48, s49")
    I(f"s_lshl_b32 s49, s{sKB4}, 7")
    I(f"s_add_u32 s48, s48, s49")
    if OFF_T2: I(f"s_add_u32 s48, s48, {OFF_T2}")
    I(f"s_lshl_b32 m0, s{sW}, 13")
    for hgrp in range(2):
        if hgrp:
            for i in range(4): I(f"v_xor_b32 v{vo[i]}, 64, v{vo[i]}")
            I(f"s_add_u32 s48, s48, 16384")
            I(f"s_add_u32 m0, m0, 4096")
        for i in range(4):
            I(f"buffer_load_dwordx4 v{vo[i]}, s[{WS_}:{WS_+3}], s48 offen offset:{1024*i} lds", tag='t2')
    I(f"v_and_b32 v{vN}, 31, v0")
    I(f"v_lshrrev_b32 v{vH}, 5, v0")
    I(f"v_lshlrev_b32 v{t0}, 4, v{vN}")
    I(f"v_lshl_add_u32 v{t0}, v{vH}, 11, v{t0}")
    I(f"s_lshl_b32 s48, s{sK2}, 16")
    I(f"s_lshl_b32 s49, s{sW}, 14")
    I(f"s_add_u32 s48, s48, s49")
    I(f"s_lshl_b32 s49, s{sKB4}, 9")
    I(f"s_add_u32 s48, s48, s49")
    I(f"s_add_u32 s48, s48, {OFF_WEFF}")
    I(f"s_mul_i32 s49, s{sW}, 4160")
    I(f"s_add_u32 m0, s49, {LDS_W}")
    for i in range(4):
        if i:
            I(f"s_add_u32 m0, m0, 1040")
            I(f"s_add_u32 s48, s48, 4096")
        I(f"buffer_load_dwordx4 v{t0}, s[{WS_}:{WS_+3}], s48 offen lds", tag='w')
    I(f"s_lshl_b32 s{sKB}, s{sW}, 2")
    I(f"s_add_u32 s{sKB}, s{sKB}, s{sKB4}")
    kA, kB = P.alloc(), P.alloc()
    split_consts(A, kA, kB)
    nterm = 2 if NT2 >= 2 else 1
    sets = [[dict(C=P.alloc(8, 4), S=P.alloc(8, 4), N=P.alloc(8, 4)) for _ in range(nterm)] for _ in range(2)]
    D = [(P.alloc(16, 4), P.alloc(16, 4)) for _ in range(2)]
    cw, sw = D[1][0], D[1][1]
    vst, vsd, cd, sd, rc, rs, vSg, vNeg = [P.alloc() for _ in range(8)]
    I(f"v_cvt_f32_u32 v{t0}, v{vN}")
    I(f"v_mul_f32 v{vst}, 0x3d000000, v{t0}")
    I(f"v_mul_f32 v{t1}, 0x3e800000, v{t0}")
    I(f"v_cos_f32 v{cd}, v{vst}"); I(f"v_sin_f32 v{sd}, v{vst}")
    I(f"v_cos_f32 v{rc}, v{t1}"); I(f"v_sin_f32 v{rs}, v{t1}")
    I(f"v_lshlrev_b32 v{t2}, 2, v{vH}")
    I(f"v_cvt_f32_u32 v{t2}, v{t2}")
    I(f"v_mul_f32 v{vsd}, v{t2}, v{vst}")
    I(f"v_rndne_f32 v{rc}, v{rc}"); I(f"v_rndne_f32 v{rs}, v{rs}")
    I(f"v_and_b32 v{vSg}, 1, v{vN}")
    I(f"v_mul_u32_u24 v{vSg}, 0x8000, v{vSg}")
    I(f"v_lshl_or_b32 v{vSg}, v{vSg}, 16, v{vSg}")
    I(f"v_mov_b32 v{vNeg}, 0x80008000")
    for si in range(2):
        if si == 1:
            I(f"v_cvt_f32_u32 v{t1}, s{sKB}")
            I(f"v_mul_f32 v{t1}, 0x3d800000, v{t1}")
            I(f"v_fmac_f32 v{vsd}, v{t1}, v{vst}")
        I(f"v_cos_f32 v{cw}, v{vsd}"); I(f"v_sin_f32 v{sw}, v{vsd}")
        for jj in range(1, 4):
            I(f"v_mul_f32 v{t0}, v{sw+jj-1}, v{sd}")
            I(f"v_mul_f32 v{t1}, v{cw+jj-1}, v{sd}")
            I(f"v_fma_f32 v{cw+jj}, v{cw+jj-1}, v{cd}, -v{t0}")
            I(f"v_fma_f32 v{sw+jj}, v{sw+jj-1}, v{cd}, v{t1}")
        for jj in range(4):
            I(f"v_mul_f32 v{t0}, v{sw+jj}, v{rs}")
            I(f"v_mul_f32 v{t1}, v{cw+jj}, v{rs}")
            I(f"v_fma_f32 v{cw+4+jj}, v{cw+jj}, v{rc}, -v{t0}")
            I(f"v_fma_f32 v{sw+4+jj}, v{sw+jj}, v{rc}, v{t1}")
        S_ = sets[si]
        if nterm == 2:
            split_many(A, [(S_[0]['C'] + k, S_[1]['C'] + k, cw + 2*k, cw + 2*k + 1, None, None) for k in range(4)] +
                          [(S_[0]['S'] + k, S_[1]['S'] + k, sw + 2*k, sw + 2*k + 1, None, None) for k in range(4)], kA, kB)
        else:
            for k in range(4):
                I(f"v_cvt_pk_bf16_f32 v{S_[0]['C']+k}, v{cw+2*k}, v{cw+2*k+1}")
                I(f"v_cvt_pk_bf16_f32 v{S_[0]['S']+k}, v{sw+2*k}, v{sw+2*k+1}")
        for T_ in S_:
            for k in range(4):
                I(f"v_xor_b32 v{T_['C']+4+k}, v{vSg}, v{T_['C']+k}")
                I(f"v_xor_b32 v{T_['S']+4+k}, v{vSg}, v{T_['S']+k}")
            for k in range(8): I(f"v_xor_b32 v{T_['N']+k}, v{vNeg}, v{T_['S']+k}")
    RE = [P.alloc(8, 4) for _ in range(2)]; IM = [P.alloc(8, 4) for _ in range(2)]
    wf = P.alloc(16, 2)
    va, vw = vo[0], vo[1]
    I(f"v_lshlrev_b32 v{t0}, 3, v{vH}")
    I(f"v_add_u32 v{t0}, s{sW}, v{t0}")
    I(f"v_and_b32 v{t1}, 15, v{vN}")
    I(f"v_xor_b32 v{t0}, v{t0}, v{t1}")
    I(f"v_lshlrev_b32 v{t0}, 4, v{t0}")
    I(f"v_lshl_add_u32 v{va}, v{vN}, 10, v{t0}")
    I(f"v_xor_b32 v{vo[2]}, 64, v{va}")
    I(f"v_lshrrev_b32 v{t0}, 1, v{vN}")
    I(f"v_mul_u32_u24 v{t0}, 1040, v{t0}")
    I(f"v_and_b32 v{t1}, 1, v{vN}")
    I(f"v_lshl_add_u32 v{t0}, v{t1}, 9, v{t0}")
    I(f"v_lshl_add_u32 v{t0}, v{vH}, 6, v{t0}")
    I(f"s_lshl_b32 s48, s{sW}, 2")
    I(f"s_add_u32 s48, s48, {LDS_W}")
    I(f"v_add_u32 v{vw}, s48, v{t0}")
    ST.stamp()
    A.wait_vm_all(); A.barrier()
    ST.stamp()
    for (X, off) in ((RE, 0), (IM, 8)):
        for hl in range(2 if NT2 >= 3 else 1):
            for p in range(4):
                I(f"ds_read_b64 v[{X[hl]+2*p}:{X[hl]+2*p+1}], v{va if hl == 0 else vo[2]} offset:{256*p + off}")
    wreads = [f"ds_read2_b32 v[{wf+i}:{wf+i+1}], v{vw} offset0:{32*(i>>2) + 4*(i&3)} offset1:{32*(i>>2) + 4*(i&3) + 4}" for i in range(0, 16, 2)]
    def prods(X, S_, key):
        out = [(X[0], S_[0][key])]
        if NT2 >= 3: out.append((X[1], S_[0][key]))
        if NT2 >= 2: out.append((X[0], S_[1][key]))
        return out
    def chain(Dq, X, S_, key, first):
        L = []
        for (a_, b_) in prods(X, S_, key):
            for h in range(2):
                c = "0" if first else f"v[{Dq}:{Dq+15}]"
                L.append(f"v_mfma_f32_32x32x16_bf16 v[{Dq}:{Dq+15}], v[{a_+4*h}:{a_+4*h+3}], v[{b_+4*h}:{b_+4*h+3}], {c}")
                first = False
        return L
    def conv(Dq, X):
        R = L_()
        if NT2 >= 3:
            split_many(R, [(X[0] + k, X[1] + k, Dq + 2*k, Dq + 2*k + 1, None, None) for k in range(8)], kA, kB)
        else:
            for k in range(8): R.I(f"v_cvt_pk_bf16_f32 v{X[0]+k}, v{Dq+2*k}, v{Dq+2*k+1}")
        return R.l
    per = 6
    pend = wreads
    for st in range(4):
        dre, dim = D[st & 1]
        S_ = sets[1 if st == 2 else 0]
        merge(A, chain(dre, RE, S_, 'C', True) + chain(dim, RE, S_, 'N', True), pend, per)
        for m_ in chain(dre, IM, S_, 'S', False): I(m_)
        if st == 0 or st == 2:
            merge(A, chain(dim, IM, S_, 'C', False), conv(dre, RE), per)
            pend = conv(dim, IM)
        elif st == 1:
            for m_ in chain(dim, IM, S_, 'C', False): I(m_)
            ore = D[0][0]; wr_ = D[0][1]
            for i in range(16):
                I(f"v_lshlrev_b32 v{wr_+i}, 16, v{wf+i}")
                I(f"v_and_b32 v{wf+i}, 0xffff0000, v{wf+i}")
            for i in range(16):
                I(f"v_mul_f32 v{ore+i}, v{dre+i}, v{wr_+i}")
                I(f"v_fma_f32 v{ore+i}, -v{dim+i}, v{wf+i}, v{ore+i}")
            R = L_()
            for i in range(16):
                R.I(f"v_mul_f32 v{dim+i}, v{dim+i}, v{wr_+i}")
            pre = R.l
            for x_ in pre: I(x_)
            for x_ in conv(ore, RE): I(x_)
            R = L_()
            for i in range(16):
                R.I(f"v_fma_f32 v{dim+i}, -v{dre+i}, v{wf+i}, -v{dim+i}")
            pend = R.l + conv(dim, IM)
        else:
            for m_ in chain(dim, IM, S_, 'C', False): I(m_)
        if st == 0: A.barrier()
    ST.stamp()
    dre, dim = D[1]
    wa = [vo[0], vo[1]]
    I(f"s_lshl_b32 s48, s{sW}, 13")
    for pe in range(2):
        I(f"v_lshl_add_u32 v{t0}, v{vH}, 2, v{vN}")
        if pe: I(f"v_add_u32 v{t0}, 8, v{t0}")
        I(f"v_and_b32 v{t0}, 31, v{t0}")
        I(f"v_lshlrev_b32 v{t0}, 4, v{t0}")
        I(f"v_lshl_add_u32 v{t0}, v{vH}, 9, v{t0}")
        I(f"v_add_u32 v{wa[pe]}, s48, v{t0}")
    for p in range(4):
        I(f"ds_write_b128 v{wa[p&1]}, v[{dre+4*p}:{dre+4*p+3}] offset:{p*2048}")
    for p in range(4):
        I(f"ds_write_b128 v{wa[p&1]}, v[{dim+4*p}:{dim+4*p+3}] offset:{p*2048+1024}")
    vs1, vra = vo[2], vo[3]
    I(f"s_lshr_b32 s48, s{sW}, 1")
    I(f"s_lshl_b32 s48, s48, 4")
    I(f"v_lshrrev_b32 v{vs1}, 2, v0")
    I(f"v_add_u32 v{vs1}, s48, v{vs1}")
    I(f"v_and_b32 v{t1}, 3, v0")
    I(f"v_lshl_add_u32 v{t0}, v{t1}, 2, v{vs1}")
    I(f"v_and_b32 v{t0}, 31, v{t0}")
    I(f"v_lshlrev_b32 v{t0}, 4, v{t0}")
    I(f"v_and_b32 v{t2}, 1, v0")
    I(f"v_lshl_add_u32 v{t0}, v{t2}, 9, v{t0}")
    I(f"v_bfe_u32 v{t2}, v0, 1, 1")
    I(f"v_lshl_add_u32 v{t0}, v{t2}, 11, v{t0}")
    I(f"s_and_b32 s49, s{sW}, 1")
    I(f"s_lshl_b32 s48, s49, 12")
    I(f"v_add_u32 v{vra}, s48, v{t0}")
    tw = P.alloc(8)
    I(f"s_cmp_eq_u32 s{sK2}, 32")
    I(f"s_cselect_b32 s50, 0x3c800000, 0")
    I(f"v_cvt_f32_u32 v{t0}, v{vs1}")
    I(f"v_mul_f32 v{t0}, s50, v{t0}")
    I(f"v_cvt_f32_u32 v{t2}, s{sKB4}")
    I(f"v_mul_f32 v{t2}, 0x3d800000, v{t2}")
    for b0 in range(4):
        if b0: I(f"v_add_f32 v{t0}, v{t0}, v{t2}")
        I(f"v_cos_f32 v{tw+2*b0}, v{t0}"); I(f"v_sin_f32 v{tw+2*b0+1}, v{t0}")
    I(f"s_mov_b32 s48, 135168")
    I(f"v_mul_lo_u32 v{vs1}, v{vs1}, s48")
    I(f"v_lshl_add_u32 v{vs1}, v{t1}, 4, v{vs1}")
    I(f"s_mul_i32 s48, s49, 16896")
    I(f"s_lshl_b32 s49, s{sK2}, 9")
    I(f"s_add_u32 s48, s48, s49")
    I(f"s_lshl_b32 s49, s{sKB4}, 7")
    I(f"s_add_u32 s48, s48, s49")
    I(f"s_add_u32 s48, s48, {OFF_V}")
    A.barrier()
    cr = [D[0][0] + 4*k for k in range(4)]; ci = [D[0][1] + 4*k for k in range(4)]
    for k in range(4):
        I(f"ds_read_b128 v[{cr[k]}:{cr[k]+3}], v{vra} offset:{k*8192}")
        I(f"ds_read_b128 v[{ci[k]}:{ci[k]+3}], v{vra} offset:{k*8192+1024}")
    ar = [dre + 4*k for k in range(4)]; ai = [dim + 4*k for k in range(4)]
    for e in range(4):
        I(f"v_add_f32 v{ar[0]+e}, v{cr[0]+e}, v{cr[2]+e}"); I(f"v_sub_f32 v{ar[1]+e}, v{cr[0]+e}, v{cr[2]+e}")
        I(f"v_add_f32 v{ai[0]+e}, v{ci[0]+e}, v{ci[2]+e}"); I(f"v_sub_f32 v{ai[1]+e}, v{ci[0]+e}, v{ci[2]+e}")
        I(f"v_add_f32 v{ar[2]+e}, v{cr[1]+e}, v{cr[3]+e}"); I(f"v_sub_f32 v{ar[3]+e}, v{cr[1]+e}, v{cr[3]+e}")
        I(f"v_add_f32 v{ai[2]+e}, v{ci[1]+e}, v{ci[3]+e}"); I(f"v_sub_f32 v{ai[3]+e}, v{ci[1]+e}, v{ci[3]+e}")
    orq = [RE[0], RE[0] + 4, RE[1], RE[1] + 4]; oiq = [IM[0], IM[0] + 4, IM[1], IM[1] + 4]
    for b0 in range(4):
        xr, xi = cr[b0], ci[b0]
        for e in range(4):
            if b0 == 0:
                I(f"v_add_f32 v{xr+e}, v{ar[0]+e}, v{ar[2]+e}"); I(f"v_add_f32 v{xi+e}, v{ai[0]+e}, v{ai[2]+e}")
            elif b0 == 2:
                I(f"v_sub_f32 v{xr+e}, v{ar[0]+e}, v{ar[2]+e}"); I(f"v_sub_f32 v{xi+e}, v{ai[0]+e}, v{ai[2]+e}")
            elif b0 == 1:
                I(f"v_add_f32 v{xr+e}, v{ar[1]+e}, v{ai[3]+e}"); I(f"v_sub_f32 v{xi+e}, v{ai[1]+e}, v{ar[3]+e}")
            else:
                I(f"v_sub_f32 v{xr+e}, v{ar[1]+e}, v{ai[3]+e}"); I(f"v_add_f32 v{xi+e}, v{ai[1]+e}, v{ar[3]+e}")
        c_, s_ = tw + 2*b0, tw + 2*b0 + 1
        for e in range(4):
            I(f"v_mul_f32 v{orq[b0]+e}, v{xr+e}, v{c_}")
            I(f"v_mul_f32 v{oiq[b0]+e}, v{xi+e}, v{c_}")
            I(f"v_fmac_f32 v{orq[b0]+e}, v{xi+e}, v{s_}")
            I(f"v_fma_f32 v{oiq[b0]+e}, -v{xr+e}, v{s_}, v{oiq[b0]+e}")
        I(f"buffer_store_dwordx4 v[{orq[b0]}:{orq[b0]+3}], v{vs1}, s[{WS_}:{WS_+3}], s48 offen {SC}")
        I(f"buffer_store_dwordx4 v[{oiq[b0]}:{oiq[b0]+3}], v{vs1}, s[{WS_}:{WS_+3}], s48 offen offset:64 {SC}")
        if b0 < 3: I(f"s_add_u32 s48, s48, 33792")
    ST.stamp(); ST.dump(sW, WS_)
    I("s_endpgm")
    return P.hi

def gen_kv(A, ST):
    I = A.I
    P = Pool('v', 1, 256)
    sHp, sG = 16, 17
    I(f"s_sub_u32 s48, s2, {N_FFT}")
    I(f"s_lshr_b32 s{sHp}, s48, 1")
    I(f"s_and_b32 s{sG}, s48, 1")
    I(f"s_lshl_b32 s{sG}, s{sG}, 2")
    I(f"s_add_u32 s{sG}, s{sG}, s{sW}")
    vG, vM = P.alloc(), P.alloc()
    I(f"v_lshrrev_b32 v{vG}, 4, v0")
    I(f"v_and_b32 v{vM}, 15, v0")
    t0, t1, t2, t3 = [P.alloc() for _ in range(4)]
    part = P.alloc(64, 4)
    I(f"v_lshlrev_b32 v{t0}, 4, v0")
    I(f"s_lshl_b32 s48, s{sHp}, 16")
    I(f"s_lshl_b32 s49, s{sW}, 13")
    I(f"s_add_u32 s48, s48, s49")
    I(f"s_add_u32 s48, s48, {OFF_KVP}")
    I(f"s_add_u32 s49, s48, 4096")
    I(f"s_add_u32 s50, s48, 32768")
    I(f"s_add_u32 s51, s48, 36864")
    for i in range(16):
        I(f"buffer_load_dwordx4 v[{part+4*i}:{part+4*i+3}], v{t0}, s[{WS_}:{WS_+3}], s{48 + (i>>2)} offen offset:{1024*(i&3)}")
    wo = P.alloc(16, 2)
    I(f"v_lshlrev_b32 v{t1}, 12, v{vG}")
    I(f"v_lshl_add_u32 v{t1}, v{vM}, 3, v{t1}")
    I(f"s_lshl_b32 s54, s{sHp}, 15")
    I(f"s_lshl_b32 s55, s{sG}, 7")
    I(f"s_add_u32 s54, s54, s55")
    I(f"s_add_u32 s55, s54, 16384")
    for h in range(2):
        for jj in range(4):
            r = wo + 8 * h + 2 * jj
            I(f"buffer_load_dwordx2 v[{r}:{r+1}], v{t1}, s[{WO_}:{WO_+3}], s{54+h} offen offset:{1024*jj}")
    I(f"s_lshl_b32 s48, s{sW}, 11")
    I(f"v_add_u32 v{t2}, s48, v{t0}")
    for h in range(2):
        b_ = part + 32 * h
        for i in range(1, 8):
            for c in range(4): I(f"v_add_f32 v{b_+c}, v{b_+c}, v{b_+4*i+c}")
        I(f"ds_write_b128 v{t2}, v[{b_}:{b_+3}] offset:{1024*h}")
    A.barrier()
    kva = P.alloc(4, 2)
    for h in range(2):
        b_ = part + 32 * h + 4
        for i in range(4):
            I(f"ds_read_b128 v[{b_+4*i}:{b_+3+4*i}], v{t0} offset:{2048*i + 1024*h}")
    I("s_mov_b32 s52, 0x05040100"); I("s_mov_b32 s53, 0x07060302")
    bq = P.alloc(16, 2); dd = P.alloc(32, 4); oo = P.alloc(16, 4)
    for h in range(2):
        for e in range(4):
            b_ = bq + 8 * h + 2 * e
            for hp in range(2):
                r0 = wo + 8 * h + 4 * hp + (e >> 1); r1 = r0 + 2
                I(f"v_perm_b32 v{b_+hp}, v{r1}, v{r0}, s{52 + (e & 1)}")
    for h in range(2):
        b_ = part + 32 * h + 4
        for c in range(4):
            I(f"v_add_f32 v{b_+c}, v{b_+c}, v{b_+4+c}")
            I(f"v_add_f32 v{b_+8+c}, v{b_+8+c}, v{b_+12+c}")
            I(f"v_add_f32 v{b_+c}, v{b_+c}, v{b_+8+c}")
        I(f"v_cvt_pk_bf16_f32 v{kva+2*h}, v{b_}, v{b_+1}")
        I(f"v_cvt_pk_bf16_f32 v{kva+2*h+1}, v{b_+2}, v{b_+3}")
    I(f"v_lshrrev_b32 v{t2}, 2, v{vM}")
    I(f"v_lshlrev_b32 v{t2}, 14, v{t2}")
    I(f"v_and_b32 v{t3}, 3, v{vM}")
    I(f"v_lshl_add_u32 v{t2}, v{t3}, 6, v{t2}")
    I(f"v_lshl_add_u32 v{t2}, v{vG}, 8, v{t2}")
    I(f"s_lshl_b32 s48, s{sG}, 16")
    I(f"s_lshl_b32 s49, s{sHp}, 10")
    I(f"s_add_u32 s48, s48, s49")
    I(f"s_add_u32 s48, s48, {OFF_KVWO}")
    for e in range(4):
        for h in range(2):
            b_ = bq + 8 * h + 2 * e; d_ = dd + 8 * e + 4 * h
            I(f"v_mfma_f32_16x16x16_bf16 v[{d_}:{d_+3}], v[{kva+2*h}:{kva+2*h+1}], v[{b_}:{b_+1}], 0")
    for e in range(4):
        for k in range(4):
            I(f"v_cvt_pk_bf16_f32 v{oo+4*e+k}, v{dd+8*e+2*k}, v{dd+8*e+2*k+1}")
        I(f"buffer_store_dwordx4 v[{oo+4*e}:{oo+4*e+3}], v{t2}, s[{WS_}:{WS_+3}], s48 offen offset:{16*e}")
    ST.stamp(); ST.dump(sW, WS_)
    I("s_endpgm")
    return P.hi

def gen_q(A, ST):
    I = A.I
    P = Pool('v', 1, 256)
    sJ, sT, sS1 = 16, 17, 18
    I(f"s_sub_u32 s23, s2, {N_FFT + N_KV}")
    decode_wg(A, "s23", sJ, sS1)
    vG, vM = P.alloc(), P.alloc()
    I(f"v_lshrrev_b32 v{vG}, 4, v0")
    I(f"v_and_b32 v{vM}, 15, v0")
    t0, t1, t2, t3, t4, t5 = [P.alloc() for _ in range(6)]
    vd = [P.alloc() for _ in range(4)]
    I(f"v_lshrrev_b32 v{t0}, 3, v0")
    I(f"v_bfe_u32 v{t1}, v0, 4, 1")
    I(f"v_bfe_u32 v{t2}, v0, 1, 2")
    I(f"v_xor_b32 v{t1}, v{t1}, v{t2}")
    I(f"v_lshlrev_b32 v{t1}, 5, v{t1}")
    I(f"v_and_b32 v{t2}, 1, v0")
    I(f"v_lshl_add_u32 v{t1}, v{t2}, 4, v{t1}")
    I(f"v_mul_u32_u24 v{t0}, 3072, v{t0}")
    I(f"v_add_u32 v{vd[0]}, v{t0}, v{t1}")
    I(f"v_xor_b32 v{t0}, 64, v{vd[0]}")
    for i in range(1, 4):
        I(f"v_add_u32 v{vd[i]}, {i*(8*3072 - 1024)}, v{t0 if i & 1 else vd[0]}")
    I(f"s_mul_i32 s48, s{sW}, {128*3072}")
    I(f"s_lshl_b32 s49, s{sJ}, 7")
    I(f"s_add_u32 s48, s48, s49")
    I(f"s_lshl_b32 s60, s{sW}, 14")
    vx = [P.alloc(), P.alloc()]
    I(f"v_lshrrev_b32 v{t0}, 3, v0")
    I(f"v_lshrrev_b32 v{t1}, 4, v0")
    I(f"v_and_b32 v{t2}, 7, v0")
    I(f"v_xor_b32 v{t1}, v{t1}, v{t2}")
    I(f"v_lshlrev_b32 v{t1}, 4, v{t1}")
    I(f"v_lshl_add_u32 v{vx[0]}, v{t0}, 15, v{t1}")
    I(f"v_xor_b32 v{vx[1]}, 64, v{vx[0]}")
    I(f"v_add_u32 v{vx[1]}, {8*32768 - 1024}, v{vx[1]}")
    I(f"s_lshl_b32 s58, s{sS1}, 10")
    I(f"s_lshl_b32 s59, s{sW}, 8")
    I(f"s_add_u32 s58, s58, s59")
    for a_ in range(4):
        I(f"s_add_u32 s{54+a_}, s{sW}, {a_}")
        I(f"s_and_b32 s{54+a_}, s{54+a_}, 3")
        I(f"s_lshl_b32 s{54+a_}, s{54+a_}, 19")
        I(f"s_add_u32 s{54+a_}, s{54+a_}, s58")
    def issue(h):
        for g_ in range(2):
            I(f"s_add_u32 m0, s60, {8192 + 4096*g_}")
            for i in range(4):
                I(f"buffer_load_dwordx4 v{vd[i]}, s[{WQ_}:{WQ_+3}], s48 offen offset:{1024*i} lds", tag=f"p{h}")
            I(f"s_add_u32 s48, s48, {32*3072}")
        for a_ in range(4):
            I(f"s_add_u32 m0, s60, {2048*a_}")
            for i in range(2):
                I(f"buffer_load_dwordx4 v{vx[i]}, s[{X_}:{X_+3}], s{54+a_} offen offset:{1024*i} lds", tag=f"p{h}")
            if h == 0: I(f"s_add_u32 s{54+a_}, s{54+a_}, 128")
    issue(0)
    zr = P.alloc(8, 4); gv = P.alloc()
    I(f"s_lshl_b32 s58, s{sJ}, 2")
    I(f"s_add_u32 s58, s58, s{sW}")
    I(f"v_lshlrev_b32 v{t0}, 11, v{vM}")
    I(f"v_lshl_add_u32 v{t0}, v{vG}, 4, v{t0}")
    I(f"s_lshl_b32 s50, s58, 6")
    I(f"s_add_u32 s50, s50, {OFF_ZP}")
    I(f"s_add_u32 s51, s50, 32768")
    I(f"buffer_load_dwordx4 v[{zr}:{zr+3}], v{t0}, s[{WS_}:{WS_+3}], s50 offen")
    I(f"buffer_load_dwordx4 v[{zr+4}:{zr+7}], v{t0}, s[{WS_}:{WS_+3}], s51 offen")
    I(f"v_lshlrev_b32 v{t1}, 2, v{vM}")
    I(f"s_lshl_b32 s50, s{sS1}, 8")
    I(f"s_lshl_b32 s51, s{sW}, 6")
    I(f"s_add_u32 s50, s50, s51")
    I(f"s_add_u32 s50, s50, {OFF_G}")
    I(f"buffer_load_dword v{gv}, v{t1}, s[{WS_}:{WS_+3}], s50 offen")
    baddr = [P.alloc() for _ in range(4)]; xaddr = [P.alloc(), P.alloc()]
    I(f"v_bfe_u32 v{t0}, v0, 2, 2")
    I(f"v_bfe_u32 v{t1}, v0, 3, 1")
    I(f"v_and_b32 v{t2}, 1, v{vG}")
    I(f"v_lshl_or_b32 v{t1}, v{t2}, 1, v{t1}")
    I(f"v_lshl_add_u32 v{t0}, v{vG}, 3, v{t0}")
    I(f"v_lshlrev_b32 v{t0}, 7, v{t0}")
    I(f"v_and_b32 v{t2}, 3, v0")
    I(f"v_lshl_add_u32 v{t0}, v{t2}, 3, v{t0}")
    I(f"v_add_u32 v{t0}, s60, v{t0}")
    I(f"v_lshl_add_u32 v{baddr[0]}, v{t1}, 5, v{t0}")
    for hd in range(1, 4): I(f"v_xor_b32 v{baddr[hd]}, {32*hd}, v{baddr[0]}")
    I(f"v_lshrrev_b32 v{t0}, 1, v{vM}")
    I(f"v_xor_b32 v{t0}, v{t0}, v{vG}")
    I(f"v_lshlrev_b32 v{t0}, 4, v{t0}")
    I(f"v_lshl_add_u32 v{t0}, v{vM}, 7, v{t0}")
    I(f"v_add_u32 v{xaddr[0]}, s60, v{t0}")
    I(f"v_xor_b32 v{xaddr[1]}, 64, v{xaddr[0]}")
    acc = [[P.alloc(4, 4) for hd in range(4)] for a_ in range(4)]
    xf = [[P.alloc(4, 4) for a_ in range(4)] for ks in range(4)]
    bfr = [[P.alloc(4, 4) for hd in range(4)] for ks in range(4)]
    def read_list(ks):
        L = []
        for hd in range(4):
            for half in range(2):
                r = bfr[ks][hd] + 2 * half
                L.append(f"ds_read_b64_tr_b16 v[{r}:{r+1}], v{baddr[hd]} offset:{8192 + (ks&1)*4096 + half*512}")
        for a_ in range(4):
            L.append(f"ds_read_b128 v[{xf[ks][a_]}:{xf[ks][a_]+3}], v{xaddr[ks&1]} offset:{2048*a_}")
        return L
    def mfma_list(ks):
        ml = []
        order = [1, 2, 3, 0] if ks == 3 else [0, 1, 2, 3]
        for a_ in order:
            for hd in range(4):
                c = acc[a_][hd]; b_ = bfr[ks][hd]
                cs = "0" if ks == 0 else f"v[{c}:{c+3}]"
                ml.append(f"v_mfma_f32_16x16x32_bf16 v[{c}:{c+3}], v[{b_}:{b_+3}], v[{xf[ks][a_]}:{xf[ks][a_]+3}], {cs}")
        return ml
    ST.stamp()
    A.wait_vm_tag("p0")
    for r_ in read_list(0) + read_list(1): I(r_)
    A.wait_lg_all()
    issue(1)
    ST.stamp()
    for m_ in mfma_list(0) + mfma_list(1): I(m_)
    for c in range(4): I(f"v_add_f32 v{zr+c}, v{zr+c}, v{zr+4+c}")
    for sh in (8, 4, 2, 1):
        for c in range(4):
            I(f"v_add_f32_dpp v{zr+c}, v{zr+c}, v{zr+c} row_ror:{sh} row_mask:0xf bank_mask:0xf")
    I(f"v_cvt_pk_bf16_f32 v{zr+4}, v{zr}, v{zr+1}")
    I(f"v_cvt_pk_bf16_f32 v{zr+5}, v{zr+2}, v{zr+3}")
    I(f"v_lshlrev_b32 v{zr}, 16, v{zr+4}"); I(f"v_and_b32 v{zr+1}, 0xffff0000, v{zr+4}")
    I(f"v_lshlrev_b32 v{zr+2}, 16, v{zr+5}"); I(f"v_and_b32 v{zr+3}, 0xffff0000, v{zr+5}")
    A.wait_vm_tag("p1")
    for r_ in read_list(2): I(r_)
    merge(A, mfma_list(2), read_list(3), 1)
    for m_ in mfma_list(3): I(m_)
    ST.stamp()
    I(f"s_lshl_b32 s48, s{sW}, 14")
    I(f"v_lshl_add_u32 v{t0}, v0, 4, s48")
    for a_ in range(1, 4):
        for hd in range(4):
            c = acc[a_][hd]
            I(f"ds_write_b128 v{t0}, v[{c}:{c+3}] offset:{(a_-1)*4096 + hd*1024}")
    I(f"ds_write_b128 v{t0}, v[{zr}:{zr+3}] offset:12288")
    va, vL2E = P.alloc(), P.alloc()
    I(f"v_lshlrev_b32 v{va}, 4, v0")
    I(f"v_mov_b32 v{vL2E}, {hex(LOG2E)}")
    I(f"s_lshl_b32 s50, s{sS1}, 16")
    I(f"s_lshl_b32 s49, s{sW}, 14")
    I(f"s_add_u32 s50, s50, s49")
    I(f"s_lshl_b32 s49, s{sJ}, 11")
    I(f"s_add_u32 s50, s50, s49")
    I(f"s_add_u32 s50, s50, {OFF_APP}")
    for a_ in range(1, 4):
        I(f"s_sub_u32 s48, s{sW}, {a_}")
        I(f"s_and_b32 s48, s48, 3")
        I(f"s_lshl_b32 s48, s48, 14")
        I(f"v_lshl_add_u32 v{t1+a_-1}, v0, 4, s48")
    I(f"v_lshlrev_b32 v{t4}, 4, v0")
    A.barrier()
    zq = [xf[0][hd] for hd in range(4)]
    for hd in range(4):
        for a_ in range(1, 4):
            c = acc[a_][hd]
            I(f"ds_read_b128 v[{c}:{c+3}], v{t1+a_-1} offset:{(a_-1)*4096 + hd*1024}")
        I(f"ds_read_b128 v[{zq[hd]}:{zq[hd]+3}], v{t4} offset:{hd*16384 + 12288}")
    ST.stamp()
    den = xf[1][0]; den2 = xf[1][1]; ex = xf[1][2]; oq = [xf[2][0], xf[2][1]]
    for hd in range(4):
        c = acc[0][hd]
        for i in range(4):
            I(f"v_add_f32 v{c+i}, v{c+i}, v{acc[1][hd]+i}")
            I(f"v_add_f32 v{acc[2][hd]+i}, v{acc[2][hd]+i}, v{acc[3][hd]+i}")
        for i in range(4): I(f"v_add_f32 v{c+i}, v{c+i}, v{acc[2][hd]+i}")
        for pr in range(2): I(f"v_cvt_pk_bf16_f32 v{ex+pr}, v{c+2*pr}, v{c+2*pr+1}")
        for pr in range(2):
            I(f"v_lshlrev_b32 v{c+2*pr}, 16, v{ex+pr}")
            I(f"v_and_b32 v{c+2*pr+1}, 0xffff0000, v{ex+pr}")
        for i in range(4): I(f"v_mul_f32 v{ex+i}, v{vL2E}, v{c+i}")
        for i in range(4): I(f"v_exp_f32 v{ex+i}, v{ex+i} clamp")
        for i in range(4): I(f"v_max_f32 v{c+i}, 0x358637bd, v{c+i}")
        for i in range(4): I(f"v_add_f32 v{c+i}, v{c+i}, v{ex+i}")
        for pr in range(2): I(f"v_cvt_pk_bf16_f32 v{ex+pr}, v{c+2*pr}, v{c+2*pr+1}")
        for pr in range(2):
            I(f"v_lshlrev_b32 v{c+2*pr}, 16, v{ex+pr}")
            I(f"v_and_b32 v{c+2*pr+1}, 0xffff0000, v{ex+pr}")
        I(f"v_mul_f32 v{den+hd}, v{c}, v{zq[hd]}")
        for i in range(1, 4): I(f"v_fmac_f32 v{den+hd}, v{c+i}, v{zq[hd]+i}")
    I(f"v_permlane32_swap_b32 v{den}, v{den+2}")
    I(f"v_permlane32_swap_b32 v{den+1}, v{den+3}")
    I(f"v_add_f32 v{den}, v{den}, v{den+2}")
    I(f"v_add_f32 v{den+1}, v{den+1}, v{den+3}")
    I(f"v_permlane16_swap_b32 v{den}, v{den+1}")
    I(f"v_add_f32 v{den}, v{den}, v{den+1}")
    I(f"v_add_f32 v{den}, 0x358637bd, v{den}")
    I(f"v_rcp_f32 v{den}, v{den}")
    I(f"v_mul_f32 v{den}, v{den}, v{gv}")
    I(f"v_mov_b32 v{den+1}, v{den}")
    I(f"v_permlane16_swap_b32 v{den}, v{den+1}")
    I(f"v_mov_b32 v{den+2}, v{den}"); I(f"v_mov_b32 v{den+3}, v{den+1}")
    I(f"v_permlane32_swap_b32 v{den}, v{den+2}")
    I(f"v_permlane32_swap_b32 v{den+1}, v{den+3}")
    for hd in range(4):
        c = acc[0][hd]
        for i in range(4): I(f"v_mul_f32 v{c+i}, v{c+i}, v{den+hd}")
        o_ = oq[hd >> 1] + 2 * (hd & 1)
        I(f"v_cvt_pk_bf16_f32 v{o_}, v{c}, v{c+1}")
        I(f"v_cvt_pk_bf16_f32 v{o_+1}, v{c+2}, v{c+3}")
        if hd & 1:
            q_ = oq[hd >> 1]
            I(f"buffer_store_dwordx4 v[{q_}:{q_+3}], v{va}, s[{WS_}:{WS_+3}], s50 offen offset:{1024*(hd>>1)} {SC}")
    ST.stamp(); ST.dump(sW, WS_)
    return P.hi

def gen_k2():
    A = Asm(); I = A.I
    I(f"s_cmp_ge_u32 s2, {K2_GRID}")
    I("s_cbranch_scc1 K2_END")
    ST = Stamper(A, 1); ST.first()
    I("s_load_dwordx4 s[4:7], s[0:1], 0")
    I("s_load_dwordx2 s[8:9], s[0:1], 16")
    I("s_load_dwordx2 s[14:15], s[0:1], 72")
    I("v_lshrrev_b32 v1, 6, v0")
    I("v_and_b32 v0, 63, v0")
    I(f"v_readfirstlane_b32 s{sW}, v1")
    srd(A, WS_, 14, WS_BYTES)
    srd(A, X_, 4, 2097152)
    srd(A, WQ_, 6, 1572864)
    srd(A, WO_, 8, 524288)
    I(f"s_cmp_ge_u32 s2, {N_FFT + N_KV}")
    A.drain_hazards()
    I("s_cbranch_scc1 K2_Q" if not os.environ.get("NOQ") else "s_cbranch_scc1 K2_END")
    I(f"s_cmp_ge_u32 s2, {N_FFT}")
    I("s_cbranch_scc1 K2_KV")
    I(f"s_cmp_ge_u32 s2, {132 if not os.environ.get('NOF') else 0}")
    I("s_cbranch_scc1 K2_END")
    h1 = gen_fft(A, ST)
    A.label("K2_KV"); ST.begin_role()
    h2 = gen_kv(A, ST)
    A.label("K2_Q"); ST.begin_role()
    h3 = gen_q(A, ST)
    A.label("K2_END")
    I("s_endpgm")
    return A.text(), max(h1, h2, h3), 0, A.ninst

if __name__ == "__main__":
    t, vg, ag, n = gen_k2(); print(vg, ag, n)
```

```python
from common_k import *
import struct, os
def f32(x): return hex(struct.unpack('<I', struct.pack('<f', x))[0])
LDS_V = 49152
K3_LDS = 49152 + 4 * 4096 + 1024

def gen_k3():
    A = Asm(); I = A.I
    I("s_cmp_ge_u32 s2, 256")
    I("s_cbranch_scc1 K3_END")
    ST = Stamper(A, 2); ST.first()
    I("s_load_dwordx2 s[12:13], s[0:1], 56")
    I("s_load_dwordx2 s[14:15], s[0:1], 72")
    sJ, sS1, sW = 16, 18, 20
    I("v_lshrrev_b32 v1, 6, v0")
    I("v_and_b32 v0, 63, v0")
    I(f"v_readfirstlane_b32 s{sW}, v1")
    decode_wg(A, "s2", sJ, sS1)
    OUT_, WS_ = 40, 44
    P = Pool('v', 1, 256); PA = Pool('a', 0, 256)
    vG, vM, vL16 = P.alloc(), P.alloc(), P.alloc()
    I(f"v_lshlrev_b32 v{vL16}, 4, v0")
    I(f"v_lshrrev_b32 v{vG}, 4, v0")
    I(f"v_and_b32 v{vM}, 15, v0")
    t0, t1, t2, t3, t4, t5 = [P.alloc() for _ in range(6)]
    I(f"s_lshl_b32 s48, s{sS1}, 3")
    I(f"s_add_u32 s48, s48, s{sJ}")
    I(f"s_mul_i32 s48, s48, 16896")
    I(f"s_lshl_b32 s49, s{sW}, 12")
    I(f"s_add_u32 s51, s48, {OFF_V + 16384 - 512}")
    I(f"s_add_u32 s48, s48, s49")
    I(f"s_add_u32 s48, s48, {OFF_V}")
    I(f"s_add_u32 m0, s49, {LDS_V}")
    srd(A, WS_, 14, WS_BYTES)
    for i in range(4):
        I(f"buffer_load_dwordx4 v{vL16}, s[{WS_}:{WS_+3}], s48 offen offset:{1024*i} lds", tag='v')
    I(f"s_mov_b32 m0, {LDS_V + 16384}")
    I(f"s_cmp_lg_u32 s{sW}, 0")
    I("s_cbranch_scc1 K3_NOSPL")
    A.raw(f"    buffer_load_dwordx4 v{vL16}, s[{WS_}:{WS_+3}], s51 offen lds")
    A.raw("K3_NOSPL:")
    for a_ in range(4):
        I(f"s_add_u32 s{66+a_}, s{sW}, {a_}")
        I(f"s_and_b32 s{66+a_}, s{66+a_}, 3")
    gv = P.alloc(4)
    I(f"v_lshlrev_b32 v{t1}, 2, v{vM}")
    I(f"s_lshl_b32 s48, s{sS1}, 8")
    I(f"s_add_u32 s48, s48, {OFF_G}")
    for a_ in range(4):
        I(f"s_lshl_b32 s50, s{66+a_}, 6")
        I(f"s_add_u32 s50, s50, s48")
        I(f"buffer_load_dword v{gv+a_}, v{t1}, s[{WS_}:{WS_+3}], s50 offen", tag='g')
    af = [[PA.alloc(4, 4) for a_ in range(4)] for ks in range(4)]
    bf = [[PA.alloc(4, 4) for e in range(4)] for ks in range(4)]
    acc = [[PA.alloc(4, 4) for e in range(4)] for a_ in range(4)]
    I(f"s_lshl_b32 s48, s{sS1}, 16")
    I(f"s_add_u32 s48, s48, s49")
    I(f"s_add_u32 s48, s48, {OFF_APP}")
    for a_ in range(4):
        I(f"s_lshl_b32 s{70+a_}, s{66+a_}, 14")
        I(f"s_add_u32 s{70+a_}, s{70+a_}, s48")
    I(f"s_lshl_b32 s54, s{sJ}, 14")
    I(f"s_add_u32 s54, s54, s49")
    I(f"s_add_u32 s54, s54, {OFF_KVWO}")
    for e in range(1, 4): I(f"s_add_u32 s{54+e}, s54, {131072*e}")
    L = Rec()
    for ks in range(4):
        for i in range(4):
            L.I(f"buffer_load_dwordx4 a[{af[ks][i]}:{af[ks][i]+3}], v{vL16}, s[{WS_}:{WS_+3}], s{70+i} offen offset:{1024*ks}")
            L.I(f"buffer_load_dwordx4 a[{bf[ks][i]}:{bf[ks][i]+3}], v{vL16}, s[{WS_}:{WS_+3}], s{54+i} offen offset:{1024*ks}")
    lu = L.units()
    for u in lu[:10]: play(A, u)
    L2 = Rec(); L2.ops = L.ops[10:]
    ST.stamp()
    T = Rec(); TI = T.I
    kA, kB = P.alloc(), P.alloc()
    split_consts(T, kA, kB)
    srd(T, OUT_, 12, 2097152)
    T.group()
    TI(f"s_cmp_eq_u32 s{sW}, 0")
    TI("s_cselect_b64 s[64:65], 0xffff, 0")
    T.endgroup()
    gf = [[P.alloc(4, 4) for hl in range(2)] for a_ in range(4)]
    vk = [P.alloc(), P.alloc()]; vph = [P.alloc(), P.alloc()]; vpm = P.alloc()
    cs = P.alloc(16, 2)
    TI(f"s_lshl_b32 s52, s{sW}, 3")
    TI(f"v_lshl_add_u32 v{t0}, v{vG}, 1, s52")
    TI(f"v_lshl_add_u32 v{t1}, v{vM}, 5, s{sS1}")
    TI(f"v_cvt_f32_u32 v{t1}, v{t1}")
    TI(f"v_mul_f32 v{t1}, 0x3a000000, v{t1}")
    TI(f"v_cvt_f32_u32 v{vk[0]}, v{t0}")
    TI(f"v_add_f32 v{vk[1]}, 1.0, v{vk[0]}")
    for kk in range(2):
        TI(f"v_mul_f32 v{vph[kk]}, v{t1}, v{vk[kk]}")
        TI(f"v_mul_f32 v{vk[kk]}, 0x3e800000, v{vk[kk]}")
    TI(f"v_lshlrev_b32 v{vpm}, 31, v{vM}")
    TI(f"v_or_b32 v{vpm}, 0.5, v{vpm}")
    for a_ in range(4):
        TI(f"v_cvt_f32_u32 v{t2}, s{66+a_}")
        for kk in range(2):
            TI(f"v_fma_f32 v{t0}, v{t2}, v{vk[kk]}, v{vph[kk]}")
            TI(f"v_cos_f32 v{cs+4*a_+2*kk}, v{t0}")
            TI(f"v_sin_f32 v{cs+4*a_+2*kk+1}, v{t0}")
    T.group()
    TI("s_mov_b64 exec, s[64:65]")
    for a_ in range(4):
        TI(f"v_mov_b32 v{cs+4*a_}, 0.5")
        TI(f"v_mov_b32 v{cs+4*a_+1}, v{vpm}")
    TI("s_mov_b64 exec, -1")
    T.endgroup()
    for a_ in range(4):
        TI(f"v_sub_f32 v{t0}, 1.0, v{gv+a_}")
        TI(f"v_cvt_pk_bf16_f32 v{t0}, v{t0}, v{t0}")
        TI(f"v_and_b32 v{t0}, 0xffff0000, v{t0}")
        TI(f"v_mul_f32 v{t0}, {f32(2.0**-19)}, v{t0}")
        for i in range(4): TI(f"v_mul_f32 v{cs+4*a_+i}, v{cs+4*a_+i}, v{t0}")
    split_many(T, [(gf[a_][0] + kk, gf[a_][1] + kk, cs + 4*a_ + 2*kk, cs + 4*a_ + 2*kk + 1, gf[a_][0] + 2 + kk, gf[a_][1] + 2 + kk)
                   for a_ in range(4) for kk in range(2)], kA, kB)
    vv, vv2 = P.alloc(), P.alloc()
    TI(f"v_lshlrev_b32 v{t0}, 2, v{vM}")
    TI(f"v_add_u32 v{vv2}, {LDS_V + 16384 + 512}, v{t0}")
    TI(f"v_lshl_add_u32 v{t0}, v{vG}, 10, v{t0}")
    TI(f"s_add_u32 s52, s49, {LDS_V}")
    TI(f"v_add_u32 v{vv}, s52, v{t0}")
    nT = len(T.units())
    interleave(A, T, L2, max(1, nT // 23))
    ST.stamp()
    c = [[P.alloc(2, 2) for k4 in range(4)] for kk in range(3)]
    A.wait_vm_tag('g')
    for kk in range(2):
        for k4 in range(4):
            I(f"ds_read2_b32 v[{c[kk][k4]}:{c[kk][k4]+1}], v{vv} offset0:{kk*128 + k4*32} offset1:{kk*128 + k4*32 + 16}")
    for k4 in range(4):
        I(f"ds_read2_b32 v[{c[2][k4]}:{c[2][k4]+1}], v{vv2} offset0:{k4*32} offset1:{k4*32 + 16}")
    u = P.alloc(16, 2)
    sd = P.alloc(8)
    for kk in range(2):
        cc = c[kk]
        for ri in range(2):
            I(f"v_add_f32 v{sd+ri}, v{cc[0]+ri}, v{cc[2]+ri}")
            I(f"v_sub_f32 v{sd+2+ri}, v{cc[0]+ri}, v{cc[2]+ri}")
            I(f"v_add_f32 v{sd+4+ri}, v{cc[1]+ri}, v{cc[3]+ri}")
            I(f"v_sub_f32 v{sd+6+ri}, v{cc[1]+ri}, v{cc[3]+ri}")
        for ri in range(2):
            I(f"v_add_f32 v{u+2*kk+ri}, v{sd+ri}, v{sd+4+ri}")
            I(f"v_sub_f32 v{u+8+2*kk+ri}, v{sd+ri}, v{sd+4+ri}")
        I(f"v_add_f32 v{u+4+2*kk}, v{sd+2}, v{sd+7}")
        I(f"v_sub_f32 v{u+4+2*kk+1}, v{sd+3}, v{sd+6}")
        I(f"v_sub_f32 v{u+12+2*kk}, v{sd+2}, v{sd+7}")
        I(f"v_add_f32 v{u+12+2*kk+1}, v{sd+3}, v{sd+6}")
    cc = c[2]
    I("s_mov_b64 exec, s[64:65]")
    I(f"v_add_f32 v{sd}, v{cc[0]}, v{cc[2]}")
    I(f"v_sub_f32 v{sd+2}, v{cc[0]}, v{cc[2]}")
    I(f"v_add_f32 v{sd+4}, v{cc[1]}, v{cc[3]}")
    I(f"v_sub_f32 v{sd+7}, v{cc[1]+1}, v{cc[3]+1}")
    I(f"v_add_f32 v{u+1}, v{sd}, v{sd+4}")
    I(f"v_sub_f32 v{u+9}, v{sd}, v{sd+4}")
    I(f"v_add_f32 v{u+5}, v{sd+2}, v{sd+7}")
    I(f"v_sub_f32 v{u+13}, v{sd+2}, v{sd+7}")
    I("s_mov_b64 exec, -1")
    uq = [P.alloc(4, 4) for e in range(4)]
    split_many(A, [(uq[e] + kk, uq[e] + 2 + kk, u + 4*e + 2*kk, u + 4*e + 2*kk + 1, None, None) for e in range(4) for kk in range(2)], kA, kB)
    for e in range(4):
        for a_ in range(4):
            c_ = acc[a_][e]
            I(f"v_mfma_f32_16x16x32_bf16 a[{c_}:{c_+3}], v[{uq[e]}:{uq[e]+3}], v[{gf[a_][0]}:{gf[a_][0]+3}], 0")
    for e in range(4):
        for a_ in range(4):
            c_ = acc[a_][e]
            I(f"v_mfma_f32_16x16x32_bf16 a[{c_}:{c_+3}], v[{uq[e]}:{uq[e]+3}], v[{gf[a_][1]}:{gf[a_][1]+3}], a[{c_}:{c_+3}]")
    ST.stamp()
    vf = P.alloc()
    I(f"s_mul_i32 s48, s{sW}, 12288")
    I(f"v_add_u32 v{t0}, s48, v{vL16}")
    for a_ in range(1, 4):
        I(f"s_sub_u32 s48, s{sW}, {a_}")
        I(f"s_and_b32 s48, s48, 3")
        I(f"s_mul_i32 s48, s48, 12288")
        I(f"v_add_u32 v{t1+a_-1}, s48, v{vL16}")
    I(f"v_lshlrev_b32 v{vf}, 15, v{vM}")
    I(f"v_lshl_add_u32 v{vf}, v{vG}, 3, v{vf}")
    I(f"s_lshl_b32 s48, s{sW}, 9")
    I(f"s_add_u32 s48, s48, s{sS1}")
    I(f"s_lshl_b32 s48, s48, 10")
    I(f"s_lshl_b32 s49, s{sJ}, 5")
    I(f"s_add_u32 s48, s48, s49")
    for ks in range(4):
        for a_ in ([1, 2, 3, 0] if ks == 3 else range(4)):
            for e in range(4):
                c_ = acc[a_][e]
                I(f"v_mfma_f32_16x16x32_bf16 a[{c_}:{c_+3}], a[{bf[ks][e]}:{bf[ks][e]+3}], a[{af[ks][a_]}:{af[ks][a_]+3}], a[{c_}:{c_+3}]")
            if ks == 3 and a_ in (2, 3, 0):
                pa = {2: 1, 3: 2, 0: 3}[a_]
                for e in range(4):
                    c_ = acc[pa][e]
                    I(f"ds_write_b128 v{t0}, a[{c_}:{c_+3}] offset:{(pa-1)*4096 + e*1024}")
    ST.stamp()
    own = [P.alloc(4, 4) for e in range(4)]
    for e in range(4):
        for i in range(4): I(f"v_accvgpr_read_b32 v{own[e]+i}, a{acc[0][e]+i}")
    A.barrier()
    rd = [[P.alloc(4, 4) for _ in range(3)] for e in range(4)]
    for e in range(4):
        for a_ in range(1, 4):
            c_ = rd[e][a_-1]
            I(f"ds_read_b128 v[{c_}:{c_+3}], v{t1+a_-1} offset:{(a_-1)*4096 + e*1024}")
    for e in range(4):
        for i in range(4):
            I(f"v_add_f32 v{own[e]+i}, v{own[e]+i}, v{rd[e][0]+i}")
            I(f"v_add_f32 v{rd[e][1]+i}, v{rd[e][1]+i}, v{rd[e][2]+i}")
        for i in range(4): I(f"v_add_f32 v{own[e]+i}, v{own[e]+i}, v{rd[e][1]+i}")
        o_ = rd[e][0]
        I(f"v_cvt_pk_bf16_f32 v{o_}, v{own[e]}, v{own[e]+1}")
        I(f"v_cvt_pk_bf16_f32 v{o_+1}, v{own[e]+2}, v{own[e]+3}")
        I(f"buffer_store_dwordx2 v[{o_}:{o_+1}], v{vf}, s[{OUT_}:{OUT_+3}], s48 offen offset:{256*e}")
    ST.stamp(); ST.dump(sW, WS_)
    A.label("K3_END")
    I("s_endpgm")
    return A.text(), P.hi, PA.hi, A.ninst

if __name__ == "__main__":
    t, vg, ag, n = gen_k3(); print(vg, ag, n)
```

```python
import os
NT2 = int(os.environ.get("NT2", "1"))
OFF_T2   = 0
SZ_T2    = 33 * 65536
OFF_PQ   = 0x280000
OFF_WEFF = 0x500000
OFF_KVP  = 0x800000
OFF_ZP   = 0x900000
OFF_G    = 0x920000
OFF_APP  = 0xA00000
OFF_KVWO = 0xC00000
OFF_V    = 0xD00000
WS_BYTES = 0x1400000
```

```python
from common_k import *
import struct
def f32(x): return hex(struct.unpack('<I', struct.pack('<f', x))[0])

LDS_B = 0
LDS_X = 98304
K1_LDS = 163840
K1_THREADS = 768
SC = "sc1"
sJ, sT, sS1, sC0, sW = 16, 17, 18, 19, 20
X_, WQ_, WR_, WI_, GW_, WS_ = 24, 28, 32, 36, 40, 44
vG, vM = 1, 2

def gen_loader(A, ST):
    I = A.I
    P = Pool('v', 3, 168)
    sL = 21
    I(f"s_sub_u32 s{sL}, s{sW}, 8")
    t0, t1, t2, t3 = [P.alloc() for _ in range(4)]
    vx = [P.alloc() for _ in range(4)]; vb = [P.alloc() for _ in range(4)]
    I(f"v_xor_b32 v{t0}, v{vG}, v{vM}")
    I(f"v_lshlrev_b32 v{t0}, 4, v{t0}")
    I(f"v_lshl_add_u32 v{vx[0]}, v{vG}, 15, v{t0}")
    I(f"s_lshl_b32 s56, s{sS1}, 10")
    I(f"s_lshl_b32 s57, s{sL}, 19")
    I(f"s_add_u32 s56, s56, s57")
    I(f"s_lshl_b32 s59, s{sL}, 12")
    I(f"s_add_u32 s57, s59, {LDS_X}")
    for i in range(1, 4):
        I(f"v_xor_b32 v{vx[i]}, {64*i}, v{vx[0]}")
        I(f"v_add_u32 v{vx[i]}, {i*131072 - 1024*i}, v{vx[i]}")
    srd(A, X_, 4, 2097152)
    def issue_x(ci, tag):
        I(f"s_add_u32 s48, s{sC0}, {ci}")
        I(f"s_and_b32 s48, s48, 3")
        I(f"s_lshl_b32 s49, s48, 8")
        I(f"s_add_u32 s49, s49, s56")
        I(f"s_lshl_b32 s50, s48, 14")
        I(f"s_add_u32 m0, s50, s57")
        for i in range(4):
            I(f"buffer_load_dwordx4 v{vx[i]}, s[{X_}:{X_+3}], s49 offen offset:{1024*i} lds", tag=tag)
    for ci in range(4): issue_x(ci, 'cx')
    I(f"v_lshrrev_b32 v{t1}, 1, v{vM}")
    I(f"v_xor_b32 v{t0}, v{vG}, v{t1}")
    I(f"v_lshrrev_b32 v{t1}, 2, v{t0}")
    I(f"v_and_b32 v{t0}, 3, v{t0}")
    I(f"v_lshlrev_b32 v{t0}, 5, v{t0}")
    I(f"v_and_b32 v{t2}, 1, v{vM}")
    I(f"v_lshl_add_u32 v{t0}, v{t2}, 4, v{t0}")
    I(f"v_mul_u32_u24 v{t2}, 3072, v{vG}")
    I(f"v_add_u32 v{t0}, v{t0}, v{t2}")
    I(f"v_lshl_add_u32 v{t2}, v{t1}, 10, v{t0}")
    I(f"v_xor_b32 v{t1}, 1, v{t1}")
    I(f"v_lshl_add_u32 v{t3}, v{t1}, 10, v{t0}")
    for i in range(4):
        I(f"v_add_u32 v{vb[i]}, {1024 + 4*i*3072 - 1024*i}, v{t2 if i < 2 else t3}")
    srd(A, WQ_, 6, 1572864)
    I(f"s_mul_i32 s58, s{sL}, {16*3072}")
    I(f"s_lshl_b32 s60, s{sJ}, 7")
    I(f"s_add_u32 s58, s58, s60")
    def issue_b(ci, tag, lo=0, hi=2):
        for g_ in range(lo, hi):
            if g_ == 0:
                I(f"s_add_u32 s48, s{sC0}, {ci}")
                I(f"s_and_b32 s48, s48, 3")
                I(f"s_mul_i32 s60, s48, {128*3072}")
                I(f"s_add_u32 s60, s60, s58")
            else:
                I(f"s_add_u32 s60, s60, {64*3072}")
            I(f"s_add_u32 m0, s59, {LDS_B + 32768*(ci % 3) + 16384*g_}")
            for i in range(4):
                I(f"buffer_load_dwordx4 v{vb[i]}, s[{WQ_}:{WQ_+3}], s60 offen offset:{1024*i} lds", tag=tag)
    def sync(tag):
        A.wait_vm_tag(tag); A.barrier(); ST.stamp()
    WT = WTask(A, sL, 128, 136, 160, 161, (162, 163, 164, 165))
    WT.o = 144
    srd(A, WS_, 14, WS_BYTES)
    vq_ = list(A.vmq)
    WT.issue()
    A.vmq = vq_ + [(set(), 'w')] * 0
    srd(A, GW_, 12, 1024)
    gwr = P.alloc(8, 4); xr = P.alloc(8, 4); gl = P.alloc(8); pl = P.alloc(8); ph = P.alloc(8)
    I(f"v_and_b32 v{t0}, 31, v0")
    I(f"v_lshlrev_b32 v{t0}, 5, v{t0}")
    for k in range(2):
        I(f"buffer_load_dwordx4 v[{gwr+4*k}:{gwr+4*k+3}], v{t0}, s[{GW_}:{GW_+3}], 0 offen offset:{16*k}")
    issue_b(0, 'c0')
    issue_b(1, 'c1', 0, 1)
    sync('cx')
    issue_b(1, 'c1', 1, 2); issue_b(2, 'c2', 0, 1)
    sync('c0')
    issue_b(2, 'c2', 1, 2)
    vq_ = list(A.vmq)
    WT.finish()
    A.vmq = vq_
    sync('c1')
    issue_b(3, 'c3a', 0, 1); issue_b(3, 'c3b', 1, 2)

    I(f"s_lshl_b32 s48, s{sJ}, 3")
    I(f"s_lshl_b32 s49, s{sL}, 1")
    I(f"s_add_u32 s48, s48, s49")
    I(f"v_lshrrev_b32 v{t0}, 5, v0")
    I(f"v_add_u32 v{t0}, s48, v{t0}")
    I(f"v_and_b32 v{t1}, 7, v0")
    I(f"v_lshlrev_b32 v{t1}, 1, v{t1}")
    I(f"v_and_b32 v{t2}, 15, v{t0}")
    I(f"v_xor_b32 v{t1}, v{t1}, v{t2}")
    I(f"v_lshlrev_b32 v{t1}, 4, v{t1}")
    I(f"v_lshl_add_u32 v{t1}, v{t0}, 8, v{t1}")
    I(f"v_bfe_u32 v{t2}, v0, 3, 2")
    I(f"v_lshl_add_u32 v{t1}, v{t2}, 14, v{t1}")
    I(f"v_add_u32 v{vx[0]}, {LDS_X}, v{t1}")
    I(f"v_xor_b32 v{vx[1]}, 16, v{vx[0]}")
    sacc, ones = P.alloc(), P.alloc()
    I(f"v_mov_b32 v{sacc}, 0")
    I(f"v_mov_b32 v{ones}, 0x3f803f80")
    for i in range(8):
        I(f"v_mov_b32 v{pl+i}, 0"); I(f"v_mov_b32 v{ph+i}, 0")
    I(f"s_lshl_b32 s48, s{sS1}, 8")
    I(f"s_add_u32 s48, s48, {OFF_G}")
    I(f"v_lshlrev_b32 v{t0}, 2, v{t0}")
    for k in range(2): I(f"ds_read_b128 v[{xr+4*k}:{xr+4*k+3}], v{vx[k]}")
    for i in range(8):
        I(f"v_and_b32 v{gl+i}, 0xffff, v{gwr+i}")
        I(f"v_and_b32 v{gwr+i}, 0xffff0000, v{gwr+i}")
    for i in range(8):
        I(f"v_dot2c_f32_bf16 v{pl+i}, v{xr+i}, v{gl+i}")
        I(f"v_dot2c_f32_bf16 v{ph+i}, v{xr+i}, v{gwr+i}")
    for i in range(8): I(f"v_cvt_pk_bf16_f32 v{pl+i}, v{pl+i}, v{ph+i}")
    for i in range(8): I(f"v_dot2c_f32_bf16 v{sacc}, v{pl+i}, v{ones}")
    for sh in (8, 4, 2, 1):
        I(f"v_add_f32_dpp v{sacc}, v{sacc}, v{sacc} row_ror:{sh} row_mask:0xf bank_mask:0xf")
    I(f"v_mov_b32 v{t1}, v{sacc}")
    I(f"v_permlane16_swap_b32 v{sacc}, v{t1}")
    I(f"v_add_f32 v{sacc}, v{sacc}, v{t1}")
    I(f"v_cvt_pk_bf16_f32 v{sacc}, v{sacc}, v{sacc}")
    I(f"v_lshlrev_b32 v{sacc}, 16, v{sacc}")
    I(f"v_mul_f32 v{sacc}, 0xbfb8aa3b, v{sacc}")
    I(f"v_exp_f32 v{sacc}, v{sacc}")
    I(f"v_add_f32 v{sacc}, 1.0, v{sacc}")
    I(f"v_rcp_f32 v{sacc}, v{sacc}")
    I(f"v_cvt_pk_bf16_f32 v{sacc}, v{sacc}, v{sacc}")
    I(f"v_lshlrev_b32 v{sacc}, 16, v{sacc}")
    I("s_mov_b32 s50, 1"); I("s_mov_b32 s51, 1")
    I("s_mov_b64 exec, s[50:51]")
    vq_ = list(A.vmq)
    I(f"buffer_store_dword v{sacc}, v{t0}, s[{WS_}:{WS_+3}], s48 offen")
    A.vmq = vq_
    I("s_mov_b64 exec, -1")
    sync('c2'); sync('c3a'); sync('c3b')
    if int(os.environ.get("PREF", "1")):
        vq_ = list(A.vmq)
        pf = 100
        I(f"s_lshr_b32 s48, s2, 3")
        I(f"s_lshl_b32 s49, s48, 2")
        I(f"s_add_u32 s49, s49, s{sL}")
        I(f"s_mul_i32 s49, s49, {4*3072}")
        I(f"s_lshr_b32 s50, s{sJ}, 2")
        I(f"s_lshl_b32 s50, s50, 9")
        I(f"s_add_u32 s49, s49, s50")
        I(f"v_lshrrev_b32 v{t1}, 5, v0")
        I(f"v_mul_u32_u24 v{t1}, 3072, v{t1}")
        I(f"v_and_b32 v{t2}, 31, v0")
        I(f"v_lshl_add_u32 v{t1}, v{t2}, 4, v{t1}")
        I(f"s_add_u32 s50, s49, {2*3072}")
        I(f"buffer_load_dwordx4 v[{pf}:{pf+3}], v{t1}, s[{WQ_}:{WQ_+3}], s49 offen")
        I(f"buffer_load_dwordx4 v[{pf+4}:{pf+7}], v{t1}, s[{WQ_}:{WQ_+3}], s50 offen")
        I(f"v_lshlrev_b32 v{t2}, 4, v0")
        I(f"s_lshl_b32 s49, s48, 2")
        I(f"s_add_u32 s49, s49, s{sL}")
        I(f"s_cmp_ge_u32 s49, (GM_CODE_END - gm_k2_kernel) / 1024")
        I("s_cbranch_scc1 K1_NOCODE")
        A.raw("    s_getpc_b64 s[50:51]")
        A.raw("K1_PC:")
        I(f"s_lshl_b32 s49, s49, 10")
        I(f"s_add_u32 s49, s49, gm_k2_kernel - K1_PC")
        I(f"s_add_u32 s50, s50, s49")
        I(f"s_addc_u32 s51, s51, 0")
        I(f"global_load_dwordx4 v[{pf+8}:{pf+11}], v{t2}, s[50:51]")
        A.raw("K1_NOCODE:")
        I(f"s_sub_u32 s49, s2, 160")
        I(f"s_cmp_ge_u32 s49, 16")
        I("s_cbranch_scc1 K1_NOWO")
        I("s_load_dwordx2 s[50:51], s[0:1], 16")
        I(f"s_lshl_b32 s49, s49, 15")
        I(f"s_lshl_b32 s48, s{sL}, 13")
        I(f"s_add_u32 s49, s49, s48")
        srd(A, 72, 50, 524288)
        I(f"s_add_u32 s48, s49, 4096")
        for k in range(8):
            I(f"buffer_load_dwordx4 v[{pf+12}:{pf+15}], v{t2}, s[72:75], s{49 if k < 4 else 48} offen offset:{1024*(k&3)}") if k == 0 else A.raw(f"    buffer_load_dwordx4 v[{pf+12}:{pf+15}], v{t2}, s[72:75], s{49 if k < 4 else 48} offen offset:{1024*(k&3)}")
        A.raw("K1_NOWO:")
        A.vmq = vq_
    ST.dump(sW, WS_)
    I("s_endpgm")
    return P.hi

def gen_gemm(A, ST):
    I = A.I
    P = Pool('v', 3, 56)
    vl2 = P.alloc()
    t0, t1, t2, t3 = [P.alloc() for _ in range(4)]
    srd(A, WS_, 14, WS_BYTES)
    if int(os.environ.get("TLBW", "1")):
        I(f"v_lshlrev_b32 v{t0}, 18, v0")
        srd(A, WR_, 8, 1052672)
        srd(A, WI_, 10, 1052672)
        srd(A, WQ_, 6, 1572864)
        I(f"s_cmp_lg_u32 s{sW}, 0")
        I("s_cbranch_scc1 K1_NOTLB")
        A.raw(f"    buffer_load_dword v50, v{t0}, s[{WS_}:{WS_+3}], 0 offen")
        A.raw(f"    buffer_load_dword v51, v{t0}, s[{WR_}:{WR_+3}], 0 offen")
        A.raw(f"    buffer_load_dword v52, v{t0}, s[{WI_}:{WI_+3}], 0 offen")
        A.raw(f"    buffer_load_dword v53, v{t0}, s[{WQ_}:{WQ_+3}], 0 offen")
        A.raw("K1_NOTLB:")
    P2 = Pool('v', 56, 168)
    aaddr = [P2.alloc() for _ in range(4)]
    baddr = [P2.alloc() for _ in range(2)]
    I(f"s_lshl_b32 s48, s{sC0}, 14")
    I(f"s_add_u32 s48, s48, {LDS_X}")
    I(f"v_lshl_add_u32 v{t0}, v{vM}, 8, s48")
    I(f"v_xor_b32 v{t1}, v{vG}, v{vM}")
    I(f"v_lshl_add_u32 v{aaddr[0]}, v{t1}, 4, v{t0}")
    for ks in range(1, 4): I(f"v_xor_b32 v{aaddr[ks]}, {64*ks}, v{aaddr[0]}")
    I(f"v_bfe_u32 v{t0}, v0, 2, 2")
    I(f"v_and_b32 v{t1}, 1, v{vG}")
    I(f"v_lshl_or_b32 v{t1}, v{t1}, 2, v{t0}")
    I(f"v_xor_b32 v{t1}, s{sW}, v{t1}")
    I(f"v_lshl_add_u32 v{t0}, v{vG}, 3, v{t0}")
    I(f"v_lshlrev_b32 v{t0}, 8, v{t0}")
    I(f"v_lshl_add_u32 v{t0}, v{t1}, 5, v{t0}")
    I(f"v_and_b32 v{t1}, 3, v0")
    I(f"v_lshl_add_u32 v{baddr[0]}, v{t1}, 3, v{t0}")
    I(f"v_xor_b32 v{baddr[1]}, 0x80, v{baddr[0]}")
    acc = [[P2.alloc(4, 4) for seg in range(2)] for mt in range(4)]
    af = [[P2.alloc(4, 4) for mt in range(4)] for _ in range(3)]
    bf = [[P2.alloc(4, 4) for seg in range(2)] for _ in range(3)]
    pkq = [P.alloc(4, 4), P.alloc(4, 4)]; vq = [P.alloc(4, 4), P.alloc(4, 4)]; ones = P.alloc(4, 4)
    kvacc, zacc = P.alloc(4, 4), P.alloc(4, 4)
    vL2E, vza = P.alloc(), P.alloc()
    tt = [P.alloc() for _ in range(8)]
    for i in range(4): I(f"v_mov_b32 v{ones+i}, 0x3f803f80")
    I(f"v_mov_b32 v{vL2E}, {hex(LOG2E)}")
    I(f"s_lshl_b32 s48, s{sJ}, 2")
    I(f"s_add_u32 s48, s48, s{sW}")
    I(f"s_lshl_b32 s52, s48, 15")
    I(f"s_lshl_b32 s50, s{sS1}, 10")
    I(f"s_add_u32 s52, s52, s50")
    I(f"s_add_u32 s52, s52, {OFF_KVP}")
    I(f"s_lshl_b32 s51, s{sS1}, 11")
    I(f"s_lshl_b32 s50, s48, 6")
    I(f"s_add_u32 s51, s51, s50")
    I(f"s_add_u32 s51, s51, {OFF_ZP}")
    I(f"v_lshlrev_b32 v{vl2}, 4, v0")
    I(f"v_lshlrev_b32 v{vza}, 2, v{vM}")
    def read_list(gs):
        ks, buf = gs & 3, gs % 3
        L_ = []
        for seg in range(2):
            for half in range(2):
                L_.append(f"ds_read_b64_tr_b16 v[{bf[buf][seg]+2*half}:{bf[buf][seg]+2*half+1}], v{baddr[seg]} offset:{ks*8192+half*1024}")
        for mt in range(4):
            L_.append(f"ds_read_b128 v[{af[buf][mt]}:{af[buf][mt]+3}], v{aaddr[ks]} offset:{mt*4096}")
        return L_
    def mfma_list(gs):
        buf = gs % 3
        L_ = []
        for mt in range(4):
            for seg in range(2):
                c = acc[mt][seg]
                cs = "0" if gs == 0 else f"v[{c}:{c+3}]"
                L_.append(f"v_mfma_f32_16x16x32_bf16 v[{c}:{c+3}], v[{af[buf][mt]}:{af[buf][mt]+3}], v[{bf[buf][seg]}:{bf[buf][seg]+3}], {cs}")
        return L_
    def mfmas(gs):
        for x_ in mfma_list(gs): I(x_)
    def advance(ci):
        I(f"s_add_u32 s48, s{sC0}, {ci+1}")
        I(f"s_and_b32 s48, s48, 3")
        I(f"s_cmp_eq_u32 s48, 0")
        I(f"s_movk_i32 s49, 16384")
        I(f"s_cselect_b32 s48, {hex(-49152 & 0xffffffff)}, s49")
        for ks in range(4): I(f"v_add_u32 v{aaddr[ks]}, s48, v{aaddr[ks]}")
        d = 32768 if ci < 2 else (-65536 & 0xffffffff)
        for seg in range(2): I(f"v_add_u32 v{baddr[seg]}, {hex(d)}, v{baddr[seg]}")
    ST.stamp()
    A.barrier()
    done = 0
    for gs in range(16):
        if gs & 3 == 0 or gs == 14:
            if gs in (14,):
                while done < gs: mfmas(done); done += 1
            if gs & 3 == 0 and gs: advance((gs >> 2) - 1)
            A.barrier()
            if gs & 3 == 0: ST.stamp()
        rl = read_list(gs)
        if done <= gs - 2:
            ml = mfma_list(done); done += 1
            for r_, m_ in zip(rl, ml): I(m_); I(r_)
        else:
            for r_ in rl: I(r_)
    while done < 15: mfmas(done); done += 1
    ST.stamp()
    def last_mfma(mt):
        buf = 15 % 3
        for seg in range(2):
            c = acc[mt][seg]
            I(f"v_mfma_f32_16x16x32_bf16 v[{c}:{c+3}], v[{af[buf][mt]}:{af[buf][mt]+3}], v[{bf[buf][seg]}:{bf[buf][seg]+3}], v[{c}:{c+3}]")
    last_mfma(0); last_mfma(1); last_mfma(2); last_mfma(3)
    for mt in range(4):
        k0 = acc[mt][0]; v0_ = acc[mt][1]
        for pr in range(2):
            I(f"v_cvt_pk_bf16_f32 v{tt[pr]}, v{k0+2*pr}, v{k0+2*pr+1}")
            I(f"v_cvt_pk_bf16_f32 v{vq[mt>>1] + 2*(mt&1) + pr}, v{v0_+2*pr}, v{v0_+2*pr+1}")
        for pr in range(2):
            I(f"v_lshlrev_b32 v{k0+2*pr}, 16, v{tt[pr]}")
            I(f"v_and_b32 v{k0+2*pr+1}, 0xffff0000, v{tt[pr]}")
        for i in range(4): I(f"v_mul_f32 v{tt[4+i]}, v{vL2E}, v{k0+i}")
        for i in range(4): I(f"v_exp_f32 v{tt[4+i]}, v{tt[4+i]} clamp")
        for i in range(4): I(f"v_max_f32 v{k0+i}, 0x358637bd, v{k0+i}")
        for i in range(4): I(f"v_add_f32 v{k0+i}, v{k0+i}, v{tt[4+i]}")
        for pr in range(2):
            I(f"v_cvt_pk_bf16_f32 v{pkq[mt>>1] + 2*(mt&1) + pr}, v{k0+2*pr}, v{k0+2*pr+1}")
        if mt & 1:
            h2 = mt >> 1
            cs = "0" if h2 == 0 else f"v[{kvacc}:{kvacc+3}]"
            cz = "0" if h2 == 0 else f"v[{zacc}:{zacc+3}]"
            I(f"v_mfma_f32_16x16x32_bf16 v[{kvacc}:{kvacc+3}], v[{vq[h2]}:{vq[h2]+3}], v[{pkq[h2]}:{pkq[h2]+3}], {cs}")
            I(f"v_mfma_f32_16x16x32_bf16 v[{zacc}:{zacc+3}], v[{ones}:{ones+3}], v[{pkq[h2]}:{pkq[h2]+3}], {cz}")
    I(f"buffer_store_dwordx4 v[{kvacc}:{kvacc+3}], v{vl2}, s[{WS_}:{WS_+3}], s52 offen {SC}")
    I("s_mov_b64 exec, 0xffff")
    I(f"buffer_store_dword v{zacc}, v{vza}, s[{WS_}:{WS_+3}], s51 offen {SC}")
    ST.stamp()
    ST.dump(sW, WS_)
    I("s_endpgm")
    return max(P.hi, P2.hi)

class WTask:
    def __init__(self, A, sH, R_, Iq, orr, oii, temps):
        self.A, self.sH = A, sH
        self.R_, self.Iq, self.orr, self.oii = R_, Iq, orr, oii
        self.t0, self.t1, self.t2, self.t3 = temps
    def issue(self):
        A = self.A; I = A.I; sH = self.sH
        R_, Iq, orr, oii, t0, t1, t2, t3 = self.R_, self.Iq, self.orr, self.oii, self.t0, self.t1, self.t2, self.t3
        srd(A, WR_, 8, 1052672)
        srd(A, WI_, 10, 1052672)
        I(f"s_lshl_b32 s68, s2, 1")
        I(f"s_add_u32 s68, s68, s{sH}")
        I(f"s_add_u32 s49, s2, 512")
        I(f"s_cmp_eq_u32 s{sH}, 2")
        I(f"s_cselect_b32 s68, s49, s68")
        I(f"s_cmp_eq_u32 s{sH}, 3")
        I(f"s_cselect_b32 s68, 1024, s68")
        I(f"s_cmp_ge_u32 s68, 528")
        A.wait_lg_all()
        I("s_cbranch_scc1 K1_WISSUED")
        I(f"s_lshr_b32 s49, s68, 1")
        I(f"s_lshr_b32 s50, s49, 3")
        I(f"s_and_b32 s51, s49, 7")
        I(f"s_lshl_b32 s51, s51, 8")
        I(f"s_add_u32 s50, s50, s51")
        I(f"v_lshl_add_u32 v{t0}, v{vG}, 6, s50")
        I(f"v_sub_u32 v{t1}, 2048, v{t0}")
        I(f"v_and_b32 v{t1}, 2047, v{t1}")
        I(f"v_mul_u32_u24 v{t0}, 514, v{t0}")
        I(f"v_mul_u32_u24 v{t1}, 514, v{t1}")
        I(f"s_lshl_b32 s69, s49, 13")
        I(f"s_add_u32 s69, s69, {OFF_WEFF}")
        I(f"v_lshlrev_b32 v{t3}, 5, v{vM}")
        I(f"v_add_u32 v{t2}, v{t0}, v{t3}")
        I(f"v_sub_u32 v{t3}, v{t1}, v{t3}")
        I(f"v_add_u32 v{t3}, 482, v{t3}")
        I(f"v_add_u32 v{t0}, 512, v{t0}")
        I(f"s_bitcmp1_b32 s68, 0")
        I(f"s_cselect_b64 s[70:71], -1, 0")
        I(f"v_cndmask_b32 v{t2}, v{t2}, v{t3}, s[70:71]")
        I(f"v_cndmask_b32 v{t1}, v{t1}, v{t0}, s[70:71]")
        for k in range(2):
            I(f"buffer_load_dwordx4 v[{R_+4*k}:{R_+4*k+3}], v{t2}, s[{WR_}:{WR_+3}], 0 offen offset:{16*k}")
            I(f"buffer_load_dwordx4 v[{Iq+4*k}:{Iq+4*k+3}], v{t2}, s[{WI_}:{WI_+3}], 0 offen offset:{16*k}")
        I(f"buffer_load_ushort v{orr}, v{t1}, s[{WR_}:{WR_+3}], 0 offen")
        I(f"buffer_load_ushort v{oii}, v{t1}, s[{WI_}:{WI_+3}], 0 offen")
        A.drain_hazards()
        A.label("K1_WISSUED")
    def finish(self):
        A = self.A; I = A.I
        R_, Iq, o, orr, oii, t0, t1, t2, t3 = self.R_, self.Iq, self.o, self.orr, self.oii, self.t0, self.t1, self.t2, self.t3
        I(f"s_cmp_ge_u32 s68, 528")
        A.drain_hazards()
        I("s_cbranch_scc1 K1_WDONE")
        I(f"v_lshlrev_b32 v{t3}, 11, v{vG}")
        I(f"v_lshl_add_u32 v{t3}, v{vM}, 4, v{t3}")
        I("s_mov_b32 s72, 0x05040100"); I("s_mov_b32 s73, 0x07060302")
        I("s_mov_b32 s74, 0x00010001"); I("s_mov_b32 s75, 0x00010001")
        I(f"s_bitcmp1_b32 s68, 0")
        I("s_cbranch_scc1 K1_WMIR")
        for mir in range(2):
            if mir: A.label("K1_WMIR")
            if mir:
                for k in range(8): I(f"v_xor_b32 v{Iq+k}, 0x80008000, v{Iq+k}")
            for c in range(16):
                tq = 15 - c if mir else c
                I(f"v_perm_b32 v{o + 4*(c&3) + (c>>2)}, v{Iq+(tq>>1)}, v{R_+(tq>>1)}, s{72+(tq&1)}")
            I("s_mov_b64 exec, s[74:75]")
            I(f"v_lshlrev_b32 v{t0}, 16, v{o}")
            I(f"v_and_b32 v{t1}, 0xffff0000, v{o}")
            I(f"v_lshlrev_b32 v{orr}, 16, v{orr}")
            I(f"v_lshlrev_b32 v{oii}, 16, v{oii}")
            I(f"v_add_f32 v{t0}, v{t0}, v{orr}")
            I(f"v_add_f32 v{t1}, v{t1}, v{oii}" if mir else f"v_sub_f32 v{t1}, v{t1}, v{oii}")
            I(f"v_mul_f32 v{t0}, 0.5, v{t0}")
            I(f"v_mul_f32 v{t1}, 0.5, v{t1}")
            I(f"v_cvt_pk_bf16_f32 v{o}, v{t0}, v{t1}")
            I("s_mov_b64 exec, -1")
            for k4 in range(4):
                I(f"buffer_store_dwordx4 v[{o+4*k4}:{o+4*k4+3}], v{t3}, s[{WS_}:{WS_+3}], s69 offen offset:{512*k4 + 256*mir} {SC}")
            A.nop(2)
            A.drain_hazards()
            if not mir: I("s_branch K1_WDONE")
        A.label("K1_WDONE")

def gen_fft(A, ST):
    I = A.I
    P = Pool('v', 3, 168)
    sH = 21
    I(f"s_sub_u32 s{sH}, s{sW}, 4")
    t0, t1, t2, t3 = [P.alloc() for _ in range(4)]
    kA, kB = P.alloc(), P.alloc()
    split_consts(A, kA, kB)
    srd(A, WS_, 14, WS_BYTES)
    tr1 = [[P.alloc(4, 4) for hl in range(2)] for u in range(2)]
    cv = P.alloc(8, 4)
    vP0, vP1, vK, vSg = P.alloc(), P.alloc(), P.alloc(), P.alloc()
    I(f"v_lshrrev_b32 v{t0}, 1, v{vM}")
    I(f"s_lshl_b32 s53, s{sH}, 3")
    I(f"v_add_u32 v{t0}, s53, v{t0}")
    I(f"v_and_b32 v{t1}, 1, v{vM}")
    I(f"v_mul_u32_u24 v{vP0}, s{sS1}, v{t0}")
    I(f"v_lshl_add_u32 v{vP0}, v{t1}, 9, v{vP0}")
    I(f"v_lshlrev_b32 v{vP1}, 5, v{t0}")
    I(f"v_and_b32 v{vSg}, 1, v{t0}")
    I(f"v_mul_u32_u24 v{vSg}, 0x8000, v{vSg}")
    I(f"v_lshl_or_b32 v{vSg}, v{vSg}, 16, v{vSg}")
    I(f"s_cmp_eq_u32 s{sH}, 0")
    I(f"s_cselect_b32 s54, 0x00020002, 0")
    I(f"s_mov_b32 s55, s54")
    I(f"s_mov_b64 exec, s[54:55]")
    I(f"v_mov_b32 v{vP1}, 1024")
    I(f"v_mov_b32 v{vP0}, 0")
    I(f"s_mov_b64 exec, -1")
    I(f"v_lshlrev_b32 v{t0}, 3, v{vG}")
    I(f"v_mad_u32_u24 v{vP0}, v{t0}, v{vP1}, v{vP0}")
    I(f"v_cvt_f32_u32 v{vP0}, v{vP0}")
    I(f"v_cvt_f32_u32 v{vP1}, v{vP1}")
    I(f"v_mul_f32 v{vP0}, 0x3a000000, v{vP0}")
    I(f"v_mul_f32 v{vP1}, 0x3a000000, v{vP1}")
    I(f"v_add_f32 v{t0}, v{vP0}, v{vP1}")
    I(f"v_cos_f32 v{vK}, v{vP1}")
    I(f"v_cos_f32 v{cv}, v{vP0}")
    I(f"v_cos_f32 v{cv+1}, v{t0}")
    I(f"v_add_f32 v{vK}, v{vK}, v{vK}")
    for j_ in range(2, 8): I(f"v_fma_f32 v{cv+j_}, v{vK}, v{cv+j_-1}, -v{cv+j_-2}")
    split_many(A, [(tr1[0][0] + pr, tr1[0][1] + pr, cv + 2*pr, cv + 2*pr + 1, None, None) for pr in range(4)], kA, kB)
    for hl in range(2):
        for pr in range(4): I(f"v_xor_b32 v{tr1[1][hl]+pr}, v{vSg}, v{tr1[0][hl]+pr}")
    tr2 = [[P.alloc(4, 4) for cs in range(2)] for e in range(4)]
    cd, sd, rc, rs = P.alloc(), P.alloc(), P.alloc(), P.alloc()
    cs8 = P.alloc(8, 4)
    ce = [cs8 + k for k in range(4)]; se = [cs8 + 4 + k for k in range(4)]
    c1 = [cv + e for e in range(4)]; s1_ = [cv + 4 + e for e in range(4)]
    I(f"s_lshl_b32 s53, s{sJ}, 2")
    I(f"v_lshl_add_u32 v{t0}, v{vG}, 5, s53")
    I(f"v_mul_u32_u24 v{vP0}, v{t0}, v{vM}")
    I(f"v_cvt_f32_u32 v{vP0}, v{vP0}")
    I(f"v_mul_f32 v{vP0}, 0x3b000000, v{vP0}")
    I(f"v_cvt_f32_u32 v{vP1}, v{vM}")
    I(f"v_mul_f32 v{t0}, 0x3e800000, v{vP1}")
    I(f"v_mul_f32 v{vP1}, 0x3b000000, v{vP1}")
    I(f"v_cos_f32 v{ce[0]}, v{vP0}"); I(f"v_sin_f32 v{se[0]}, v{vP0}")
    I(f"v_cos_f32 v{cd}, v{vP1}"); I(f"v_sin_f32 v{sd}, v{vP1}")
    I(f"v_cos_f32 v{rc}, v{t0}"); I(f"v_sin_f32 v{rs}, v{t0}")
    I(f"v_rndne_f32 v{rc}, v{rc}"); I(f"v_rndne_f32 v{rs}, v{rs}")
    I(f"v_and_b32 v{vSg}, 1, v{vM}")
    I(f"v_mul_u32_u24 v{vSg}, 0x8000, v{vSg}")
    I(f"v_lshl_or_b32 v{vSg}, v{vSg}, 16, v{vSg}")
    for e in range(1, 4):
        I(f"v_mul_f32 v{t0}, v{se[e-1]}, v{sd}")
        I(f"v_mul_f32 v{t1}, v{ce[e-1]}, v{sd}")
        I(f"v_fma_f32 v{ce[e]}, v{ce[e-1]}, v{cd}, -v{t0}")
        I(f"v_fma_f32 v{se[e]}, v{se[e-1]}, v{cd}, v{t1}")
    for e in range(4):
        I(f"v_mul_f32 v{t0}, v{se[e]}, v{rs}")
        I(f"v_mul_f32 v{t1}, v{ce[e]}, v{rs}")
        I(f"v_fma_f32 v{c1[e]}, v{ce[e]}, v{rc}, -v{t0}")
        I(f"v_fma_f32 v{s1_[e]}, v{se[e]}, v{rc}, v{t1}")
    split_many(A, [(tr2[e][0], tr2[e][0] + 2, ce[e], c1[e], None, None) for e in range(4)] +
                  [(tr2[e][1], tr2[e][1] + 2, se[e], s1_[e], None, None) for e in range(4)], kA, kB)
    for e in range(4):
        for cs in range(2):
            I(f"v_xor_b32 v{tr2[e][cs]+1}, v{vSg}, v{tr2[e][cs]}")
            I(f"v_xor_b32 v{tr2[e][cs]+3}, v{vSg}, v{tr2[e][cs]+2}")
    a0, a1 = P.alloc(), P.alloc()
    I(f"v_bfe_u32 v{t0}, v0, 2, 2")
    I(f"v_lshl_add_u32 v{t0}, v{vG}, 3, v{t0}")
    I(f"v_and_b32 v{t1}, 3, v0")
    I(f"s_lshr_b32 s53, s{sJ}, 1")
    I(f"v_lshl_add_u32 v{t1}, v{t1}, 2, s53")
    I(f"v_and_b32 v{t2}, 15, v{t0}")
    I(f"v_xor_b32 v{t1}, v{t1}, v{t2}")
    I(f"v_lshlrev_b32 v{t1}, 4, v{t1}")
    I(f"v_lshl_add_u32 v{t1}, v{t0}, 8, v{t1}")
    I(f"s_and_b32 s53, s{sJ}, 1")
    I(f"s_lshl_b32 s53, s53, 3")
    I(f"s_add_u32 s53, s53, {LDS_X}")
    I(f"v_add_u32 v{a0}, s53, v{t1}")
    I(f"v_xor_b32 v{a1}, 64, v{a0}")
    vcs, vsn, vaddr, vaddr2 = cd, sd, rc, rs
    I(f"v_cvt_f32_u32 v{vcs}, s{sS1}")
    I(f"v_mul_f32 v{vcs}, 0x3c800000, v{vcs}")
    I(f"v_sin_f32 v{vsn}, v{vcs}")
    I(f"v_cos_f32 v{vcs}, v{vcs}")
    I(f"v_and_b32 v{t0}, 3, v0")
    I(f"v_lshlrev_b32 v{vaddr2}, 6, v{t0}")
    I(f"v_bfe_u32 v{t0}, v0, 2, 2")
    I(f"v_lshl_add_u32 v{vaddr2}, v{t0}, 4, v{vaddr2}")
    I(f"v_lshl_add_u32 v{vaddr}, v{vG}, 17, v{vaddr2}")
    I(f"s_lshl_b32 s62, s{sH}, 19")
    I(f"s_lshl_b32 s53, s{sS1}, 11")
    I(f"s_lshl_b32 s66, s{sJ}, 8")
    I(f"s_add_u32 s66, s66, s53")
    if OFF_T2: I(f"s_add_u32 s66, s66, {OFF_T2}")
    I(f"s_add_u32 s62, s62, s66")
    I(f"s_add_u32 s63, s62, {65536}")
    I(f"s_add_u32 s66, s66, {32*65536}")
    I(f"s_cmp_eq_u32 s{sH}, 0")
    I(f"s_cselect_b64 s[54:55], 0xffff, 0")
    ST.stamp()
    A.barrier()
    ST.stamp()
    F = Rec(); FI = F.I
    xa = [[P.alloc(4, 4) for u in range(2)] for tt in range(4)]
    d1 = [P.alloc(4, 4) for tt in range(4)]
    for tt in range(4):
        for u in range(2):
            FI(f"ds_read_b64_tr_b16 v[{xa[tt][u]}:{xa[tt][u]+1}], v{a0} offset:{tt*16384+u*8192}")
            FI(f"ds_read_b64_tr_b16 v[{xa[tt][u]+2}:{xa[tt][u]+3}], v{a1} offset:{tt*16384+u*8192+1024}")
    for tt in range(4):
        for u in range(2):
            for hl in range(2):
                cs = "0" if (u == 0 and hl == 0) else f"v[{d1[tt]}:{d1[tt]+3}]"
                FI(f"v_mfma_f32_16x16x32_bf16 v[{d1[tt]}:{d1[tt]+3}], v[{xa[tt][u]}:{xa[tt][u]+3}], v[{tr1[u][hl]}:{tr1[u][hl]+3}], {cs}")
    F.barrier()
    dh = [P.alloc(4, 4) for e in range(4)]; dl = [P.alloc(4, 4) for e in range(4)]
    pc = [xa[e][0] for e in range(4)]; ps = [xa[e][1] for e in range(4)]
    for eh in range(2):
        split_many(F, [(dh[e] + pr, dl[e] + pr, d1[2*pr] + e, d1[2*pr+1] + e, dh[e] + 2 + pr, dl[e] + 2 + pr) for e in (2*eh, 2*eh+1) for pr in range(2)], kA, kB)
        for e in (2*eh, 2*eh+1):
            for (acc_, cs_) in ((pc[e], 0), (ps[e], 1)):
                FI(f"v_mfma_f32_16x16x32_bf16 v[{acc_}:{acc_+3}], v[{dh[e]}:{dh[e]+3}], v[{tr2[e][cs_]}:{tr2[e][cs_]+3}], 0")
                FI(f"v_mfma_f32_16x16x32_bf16 v[{acc_}:{acc_+3}], v[{dl[e]}:{dl[e]+3}], v[{tr2[e][cs_]}:{tr2[e][cs_]+3}], v[{acc_}:{acc_+3}]")
        if eh == 1: F.barrier()
    rq = [tr1[0][0], tr1[0][1], tr1[1][0]]; iq = [tr1[1][1], d1[0], d1[1]]
    re = [[rq[ks2] + e for e in range(4)] for ks2 in range(3)]
    im = [[iq[ks2] + e for e in range(4)] for ks2 in range(3)]
    for e in range(4):
        for ks2 in range(2):
            FI(f"v_add_f32 v{re[ks2][e]}, v{pc[e]+2*ks2}, v{ps[e]+2*ks2+1}")
            FI(f"v_sub_f32 v{im[ks2][e]}, v{pc[e]+2*ks2+1}, v{ps[e]+2*ks2}")
    FI("s_mov_b64 exec, s[54:55]")
    for e in range(4):
        FI(f"v_mov_b32 v{re[0][e]}, v{pc[e]}")
        FI(f"v_xor_b32 v{im[0][e]}, 0x80000000, v{ps[e]}")
    FI("s_mov_b64 exec, -1")
    gr = [(dh[0], dh[1]), (dh[2], dh[3]), (dl[0], dl[1])]
    def granule(R, ks2):
        gh, gl = gr[ks2]
        for pr in range(2):
            R.I(f"v_cvt_pk_bf16_f32 v{gh+pr}, v{re[ks2][2*pr]}, v{re[ks2][2*pr+1]}")
            R.I(f"v_cvt_pk_bf16_f32 v{gh+2+pr}, v{im[ks2][2*pr]}, v{im[ks2][2*pr+1]}")
    for ks2 in range(2):
        gh, gl = gr[ks2]
        granule(F, ks2)
        FI(f"buffer_store_dwordx4 v[{gh}:{gh+3}], v{vaddr}, s[{WS_}:{WS_+3}], s{62+ks2} offen {SC}")
    NOFFT = int(os.environ.get("NOFFT", "0"))
    for u in F.units():
        if NOFFT and not (u[0][0] == 'C'): continue
        play(A, u)
    ST.stamp()
    I(f"s_cmp_lg_u32 s{sH}, 0")
    A.drain_hazards()
    I("s_cbranch_scc1 K1_NOSP")
    for e in range(4):
        I(f"v_mul_f32 v{t2}, v{ps[e]+1}, v{vsn}")
        I(f"v_fma_f32 v{re[2][e]}, v{pc[e]+1}, v{vcs}, -v{t2}")
        I(f"v_mul_f32 v{t3}, v{ps[e]+1}, v{vcs}")
        I(f"v_fma_f32 v{im[2][e]}, -v{pc[e]+1}, v{vsn}, -v{t3}")
    granule(A, 2)
    I("s_mov_b64 exec, 0xffff")
    gh, gl = gr[2]
    I(f"buffer_store_dwordx4 v[{gh}:{gh+3}], v{vaddr2}, s[{WS_}:{WS_+3}], s66 offen {SC}")
    vmq_save = list(A.vmq)
    I("s_mov_b64 exec, -1")
    A.label("K1_NOSP")
    A.vmq = vmq_save
    ST.stamp()
    if STAMPS: A.barrier(); A.barrier(); A.barrier()
    ST.dump(sW, WS_)
    return P.hi

def gen_k1():
    A = Asm(); I = A.I
    I("s_cmp_ge_u32 s2, 256")
    I("s_cbranch_scc1 K1_END")
    ST = Stamper(A, 0); ST.first()
    I("s_load_dwordx4 s[4:7], s[0:1], 0")
    I("s_load_dwordx4 s[8:11], s[0:1], 32")
    I("s_load_dwordx2 s[12:13], s[0:1], 48")
    I("s_load_dwordx2 s[14:15], s[0:1], 72")
    I("v_lshrrev_b32 v1, 6, v0")
    I("v_and_b32 v0, 63, v0")
    I(f"v_readfirstlane_b32 s{sW}, v1")
    decode_wg(A, "s2", sJ, sS1)
    I(f"s_add_u32 s{sC0}, s{sS1}, s{sJ}")
    I(f"s_and_b32 s{sC0}, s{sC0}, 3")
    I(f"v_lshrrev_b32 v{vG}, 4, v0")
    I(f"v_and_b32 v{vM}, 15, v0")
    I(f"s_cmp_lt_u32 s{sW}, 8")
    A.drain_hazards()
    I("s_cbranch_scc1 K1_NOTL")
    lg_save = list(A.lgq)
    h1 = gen_loader(A, ST)
    A.label("K1_NOTL"); A.lgq = list(lg_save); ST.begin_role()
    I(f"s_cmp_ge_u32 s{sW}, 4")
    I("s_cbranch_scc1 K1_FFT")
    h2 = gen_gemm(A, ST)
    A.label("K1_FFT"); A.lgq = list(lg_save); ST.begin_role()
    h3 = gen_fft(A, ST)
    A.label("K1_END")
    I("s_endpgm")
    return A.text(), max(h1, h2, h3), A.ninst

if __name__ == "__main__":
    t, vg, n = gen_k1()
    print(vg, n)
```

```python
from common_k import *
import struct, os
def f32(x): return hex(struct.unpack('<I', struct.pack('<f', x))[0])

LDS_T = 65536
LDS_E = 102400
LDS_FLAG = LDS_E + 32768
K2_LDS = LDS_FLAG + 64
K2_GRID = 256
K2_THREADS = 512
SC = "sc1"
sW = 20
sWV = 19
X_, WQ_, WO_, WS_ = 24, 28, 32, 44
LDS_W = 81920

def merge(A, mf, va, per):
    vi = 0
    for m_ in mf:
        A.I(m_)
        for _ in range(per):
            if vi < len(va): A.I(va[vi]); vi += 1
    while vi < len(va): A.I(va[vi]); vi += 1

def sw_barrier(A, idx, tag, vt, vone):
    I = A.I
    A.wait_lg_all()
    I(f"v_mov_b32 v{vt}, {LDS_FLAG + 4*idx}")
    I(f"v_mov_b32 v{vone}, 1")
    I("s_mov_b64 exec, 1")
    I(f"ds_add_u32 v{vt}, v{vone}")
    A.raw(f"SWB_{tag}:")
    I(f"ds_read_b32 v{vone}, v{vt}")
    I(f"v_readfirstlane_b32 s48, v{vone}")
    I(f"s_cmp_lt_u32 s48, 4")
    I(f"s_cbranch_scc1 SWB_{tag}")
    I("s_mov_b64 exec, -1")

class L_:
    def __init__(self): self.l = []
    def I(self, t, tag=None): self.l.append(t)

def gen_fft(A, ST):
    I = A.I
    P = Pool('v', 1, 256)
    sK2, sKB4, sKB = 16, 17, 18
    I("s_setprio 3")
    I(f"s_lshr_b32 s{sK2}, s2, 5")
    I(f"s_lshl_b32 s{sK2}, s{sK2}, 3")
    I(f"s_and_b32 s48, s2, 7")
    I(f"s_add_u32 s{sK2}, s{sK2}, s48")
    I(f"s_bfe_u32 s{sKB4}, s2, 0x20003")
    t0, t1, t2, t3 = [P.alloc() for _ in range(4)]
    vN, vH = P.alloc(), P.alloc()
    vo = [P.alloc() for _ in range(4)]
    I(f"v_and_b32 v{vN}, 31, v0")
    I(f"v_lshrrev_b32 v{vH}, 5, v0")
    I(f"s_and_b32 s48, s{sW}, 1")
    I(f"s_lshl_b32 s48, s48, 3")
    I(f"v_xor_b32 v{t0}, s48, v{vN}")
    I(f"v_xor_b32 v{t0}, v{t0}, v{vH}")
    I(f"v_lshrrev_b32 v{t1}, 2, v{t0}")
    I(f"v_and_b32 v{t0}, 3, v{t0}")
    I(f"v_lshlrev_b32 v{t0}, 4, v{t0}")
    I(f"v_lshl_add_u32 v{t0}, v{t1}, 8, v{t0}")
    I(f"v_lshl_add_u32 v{vo[0]}, v{vH}, 11, v{t0}")
    for i in range(1, 4):
        I(f"v_xor_b32 v{vo[i]}, {32*(i&1) + 256*(i>>1)}, v{vo[0]}")
        I(f"v_add_u32 v{vo[i]}, {3072*i}, v{vo[i]}")
    I(f"s_lshl_b32 s48, s{sK2}, 16")
    I(f"s_lshl_b32 s49, s{sW}, 14")
    I(f"s_add_u32 s48, s48, s49")
    I(f"s_lshl_b32 s50, s{sKB4}, 9")
    I(f"s_add_u32 s51, s48, s50")
    I(f"s_add_u32 s51, s51, {OFF_WEFF}")
    I(f"s_lshl_b32 s49, s{sKB4}, 6")
    I(f"s_add_u32 s48, s48, s49")
    if OFF_T2: I(f"s_add_u32 s48, s48, {OFF_T2}")
    I(f"s_lshl_b32 s49, s{sW}, 12")
    I(f"s_add_u32 m0, s49, {LDS_T}")
    for i in range(4):
        I(f"buffer_load_dwordx4 v{vo[i]}, s[{WS_}:{WS_+3}], s48 offen offset:{1024*i} lds", tag='t2')
    I(f"v_lshlrev_b32 v{t0}, 4, v{vN}")
    I(f"v_lshl_add_u32 v{t0}, v{vH}, 11, v{t0}")
    I(f"s_mul_i32 s49, s{sW}, 4160")
    I(f"s_add_u32 m0, s49, {LDS_W}")
    for i in range(4):
        if i:
            I(f"s_add_u32 m0, m0, 1040")
            I(f"s_add_u32 s51, s51, 4096")
        I(f"buffer_load_dwordx4 v{t0}, s[{WS_}:{WS_+3}], s51 offen lds", tag='w')
    I(f"s_lshl_b32 s{sKB}, s{sW}, 2")
    I(f"s_add_u32 s{sKB}, s{sKB}, s{sKB4}")
    kA, kB = P.alloc(), P.alloc()
    nterm = 2 if NT2 >= 2 else 1
    if nterm == 2: split_consts(A, kA, kB)
    sets = [[dict(C=P.alloc(8, 4), S=P.alloc(8, 4), N=P.alloc(8, 4)) for _ in range(nterm)] for _ in range(2)]
    D = [(P.alloc(16, 4), P.alloc(16, 4)) for _ in range(2)]
    cw, sw = D[1][0], D[1][1]
    vst, vsd, cd, sd, rc, rs, vSg, vNeg = [P.alloc() for _ in range(8)]
    I(f"v_cvt_f32_u32 v{t0}, v{vN}")
    I(f"v_mul_f32 v{vst}, 0x3d000000, v{t0}")
    I(f"v_mul_f32 v{t1}, 0x3e800000, v{t0}")
    I(f"v_cos_f32 v{cd}, v{vst}"); I(f"v_sin_f32 v{sd}, v{vst}")
    I(f"v_cos_f32 v{rc}, v{t1}"); I(f"v_sin_f32 v{rs}, v{t1}")
    I(f"v_lshlrev_b32 v{t2}, 2, v{vH}")
    I(f"v_cvt_f32_u32 v{t2}, v{t2}")
    I(f"v_mul_f32 v{vsd}, v{t2}, v{vst}")
    I(f"v_rndne_f32 v{rc}, v{rc}"); I(f"v_rndne_f32 v{rs}, v{rs}")
    I(f"v_and_b32 v{vSg}, 1, v{vN}")
    I(f"v_mul_u32_u24 v{vSg}, 0x8000, v{vSg}")
    I(f"v_lshl_or_b32 v{vSg}, v{vSg}, 16, v{vSg}")
    I(f"v_mov_b32 v{vNeg}, 0x80008000")
    for si in range(2):
        if si == 1:
            I(f"v_cvt_f32_u32 v{t1}, s{sKB}")
            I(f"v_mul_f32 v{t1}, 0x3d800000, v{t1}")
            I(f"v_fmac_f32 v{vsd}, v{t1}, v{vst}")
        I(f"v_cos_f32 v{cw}, v{vsd}"); I(f"v_sin_f32 v{sw}, v{vsd}")
        for jj in range(1, 4):
            I(f"v_mul_f32 v{t0}, v{sw+jj-1}, v{sd}")
            I(f"v_mul_f32 v{t1}, v{cw+jj-1}, v{sd}")
            I(f"v_fma_f32 v{cw+jj}, v{cw+jj-1}, v{cd}, -v{t0}")
            I(f"v_fma_f32 v{sw+jj}, v{sw+jj-1}, v{cd}, v{t1}")
        for jj in range(4):
            I(f"v_mul_f32 v{t0}, v{sw+jj}, v{rs}")
            I(f"v_mul_f32 v{t1}, v{cw+jj}, v{rs}")
            I(f"v_fma_f32 v{cw+4+jj}, v{cw+jj}, v{rc}, -v{t0}")
            I(f"v_fma_f32 v{sw+4+jj}, v{sw+jj}, v{rc}, v{t1}")
        S_ = sets[si]
        if nterm == 2:
            split_many(A, [(S_[0]['C'] + k, S_[1]['C'] + k, cw + 2*k, cw + 2*k + 1, None, None) for k in range(4)] +
                          [(S_[0]['S'] + k, S_[1]['S'] + k, sw + 2*k, sw + 2*k + 1, None, None) for k in range(4)], kA, kB)
        else:
            for k in range(4):
                I(f"v_cvt_pk_bf16_f32 v{S_[0]['C']+k}, v{cw+2*k}, v{cw+2*k+1}")
                I(f"v_cvt_pk_bf16_f32 v{S_[0]['S']+k}, v{sw+2*k}, v{sw+2*k+1}")
        for T_ in S_:
            for k in range(4):
                I(f"v_xor_b32 v{T_['C']+4+k}, v{vSg}, v{T_['C']+k}")
                I(f"v_xor_b32 v{T_['S']+4+k}, v{vSg}, v{T_['S']+k}")
            for k in range(8): I(f"v_xor_b32 v{T_['N']+k}, v{vNeg}, v{T_['S']+k}")
    RE, IM = P.alloc(8, 4), P.alloc(8, 4)
    wf = P.alloc(16, 2); wr_ = P.alloc(16, 2)
    va, va1, vw = vo[0], vo[1], vo[2]
    I(f"v_lshlrev_b32 v{t0}, 2, v{vH}")
    I(f"v_add_u32 v{t0}, s{sW}, v{t0}")
    I(f"v_and_b32 v{t1}, 15, v{vN}")
    I(f"v_xor_b32 v{t0}, v{t0}, v{t1}")
    I(f"v_lshlrev_b32 v{t0}, 4, v{t0}")
    I(f"v_lshl_add_u32 v{t0}, v{vN}, 9, v{t0}")
    I(f"v_add_u32 v{va}, {LDS_T}, v{t0}")
    I(f"v_xor_b32 v{va1}, 128, v{va}")
    I(f"v_lshrrev_b32 v{t0}, 1, v{vN}")
    I(f"v_mul_u32_u24 v{t0}, 1040, v{t0}")
    I(f"v_and_b32 v{t1}, 1, v{vN}")
    I(f"v_lshl_add_u32 v{t0}, v{t1}, 9, v{t0}")
    I(f"v_lshl_add_u32 v{t0}, v{vH}, 6, v{t0}")
    I(f"s_lshl_b32 s48, s{sW}, 2")
    I(f"s_add_u32 s48, s48, {LDS_W}")
    I(f"v_add_u32 v{vw}, s48, v{t0}")
    wa = [cd, sd, vst, vsd]; vs1, vra = rc, rs
    I(f"s_lshl_b32 s48, s{sW}, 13")
    I(f"s_add_u32 s48, s48, {LDS_E}")
    I(f"v_lshl_add_u32 v{t1}, v{vH}, 1, v{vN}")
    I(f"v_lshlrev_b32 v{t2}, 9, v{vH}")
    I(f"v_add_u32 v{t2}, s48, v{t2}")
    for p in range(4):
        I(f"v_add_u32 v{t0}, {4*p}, v{t1}")
        I(f"v_and_b32 v{t0}, 31, v{t0}")
        I(f"v_lshl_add_u32 v{wa[p]}, v{t0}, 4, v{t2}")
    I(f"s_lshl_b32 s48, s{sW}, 3")
    I(f"v_lshrrev_b32 v{vs1}, 3, v0")
    I(f"v_add_u32 v{vs1}, s48, v{vs1}")
    I(f"v_and_b32 v{t1}, 7, v0")
    I(f"v_lshl_add_u32 v{t0}, v{t1}, 1, v{vs1}")
    I(f"v_and_b32 v{t0}, 31, v{t0}")
    I(f"v_lshlrev_b32 v{t0}, 4, v{t0}")
    I(f"v_and_b32 v{t2}, 1, v0")
    I(f"v_lshl_add_u32 v{t0}, v{t2}, 9, v{t0}")
    I(f"v_bfe_u32 v{t2}, v0, 1, 2")
    I(f"v_lshl_add_u32 v{t0}, v{t2}, 11, v{t0}")
    I(f"v_add_u32 v{vra}, {LDS_E}, v{t0}")
    tw = P.alloc(8)
    I(f"s_cmp_eq_u32 s{sK2}, 32")
    I(f"s_cselect_b32 s50, 0x3c800000, 0")
    I(f"v_cvt_f32_u32 v{t0}, v{vs1}")
    I(f"v_mul_f32 v{t0}, s50, v{t0}")
    I(f"v_cvt_f32_u32 v{t2}, s{sKB4}")
    I(f"v_mul_f32 v{t2}, 0x3d800000, v{t2}")
    for b0 in range(4):
        if b0: I(f"v_add_f32 v{t0}, v{t0}, v{t2}")
        I(f"v_cos_f32 v{tw+2*b0}, v{t0}"); I(f"v_sin_f32 v{tw+2*b0+1}, v{t0}")
    I(f"s_mov_b32 s48, 67584")
    I(f"v_mul_lo_u32 v{vs1}, v{vs1}, s48")
    I(f"v_lshl_add_u32 v{vs1}, v{t1}, 4, v{vs1}")
    I(f"s_lshl_b32 s52, s{sK2}, 9")
    I(f"s_lshl_b32 s49, s{sKB4}, 7")
    I(f"s_add_u32 s52, s52, s49")
    I(f"s_add_u32 s52, s52, {OFF_V}")
    ST.stamp()
    A.wait_vm_all(); sw_barrier(A, 2, "F0", t0, t1)
    ST.stamp()
    for (X, off) in ((RE, 0), (IM, 8)):
        for p in range(4):
            I(f"ds_read_b64 v[{X+2*p}:{X+2*p+1}], v{va1 if p & 1 else va} offset:{256*(p>>1) + off}")
    wreads = [f"ds_read2_b32 v[{wf+i}:{wf+i+1}], v{vw} offset0:{32*(i>>2) + 4*(i&3)} offset1:{32*(i>>2) + 4*(i&3) + 4}" for i in range(0, 16, 2)]
    wunp = []
    for i in range(16):
        wunp.append(f"v_lshlrev_b32 v{wr_+i}, 16, v{wf+i}")
        wunp.append(f"v_and_b32 v{wf+i}, 0xffff0000, v{wf+i}")
    def chain(Dq, X, S_, key, first):
        L = []
        for T_ in S_:
            for h in range(2):
                c = "0" if first else f"v[{Dq}:{Dq+15}]"
                L.append(f"v_mfma_f32_32x32x16_bf16 v[{Dq}:{Dq+15}], v[{X+4*h}:{X+4*h+3}], v[{T_[key]+4*h}:{T_[key]+4*h+3}], {c}")
                first = False
        return L
    def conv(Dq, X):
        return [f"v_cvt_pk_bf16_f32 v{X+k}, v{Dq+2*k}, v{Dq+2*k+1}" for k in range(8)]
    per = 6
    pend = wreads
    for st in range(4):
        dre, dim = D[st & 1]
        S_ = sets[1 if st == 2 else 0]
        merge(A, chain(dre, RE, S_, 'C', True) + chain(dim, RE, S_, 'N', True), pend, per)
        extra = wunp[:12] if st == 0 else (wunp[12:] if st == 1 else [])
        if st == 0 or st == 2:
            merge(A, chain(dre, IM, S_, 'S', False), extra, per)
            merge(A, chain(dim, IM, S_, 'C', False), [], per)
            for x_ in conv(dre, RE): I(x_)
            pend = conv(dim, IM)
        elif st == 1:
            merge(A, chain(dre, IM, S_, 'S', False) + chain(dim, IM, S_, 'C', False), extra, per)
            ore, oim = D[0]
            for i in range(16): I(f"v_mul_f32 v{ore+i}, v{dre+i}, v{wr_+i}")
            for i in range(16):
                I(f"v_fma_f32 v{ore+i}, -v{dim+i}, v{wf+i}, v{ore+i}")
                if i & 1: I(f"v_cvt_pk_bf16_f32 v{RE+(i>>1)}, v{ore+i-1}, v{ore+i}")
            pend = []
            for i in range(16):
                pend.append(f"v_mul_f32 v{dim+i}, v{dim+i}, v{wr_+i}")
                pend.append(f"v_fma_f32 v{dim+i}, -v{dre+i}, v{wf+i}, -v{dim+i}")
                if i & 1: pend.append(f"v_cvt_pk_bf16_f32 v{IM+(i>>1)}, v{dim+i-1}, v{dim+i}")
        else:
            for m_ in chain(dre, IM, S_, 'S', False) + chain(dim, IM, S_, 'C', False): I(m_)
    ST.stamp()
    dre, dim = D[1]
    for p in range(4):
        I(f"ds_write_b128 v{wa[p]}, v[{dre+4*p}:{dre+4*p+3}] offset:{p*2048}")
    for p in range(4):
        I(f"ds_write_b128 v{wa[p]}, v[{dim+4*p}:{dim+4*p+3}] offset:{p*2048+1024}")
    sw_barrier(A, 1, "F", t0, t1)
    cr = [D[0][0] + 4*k for k in range(4)]; ci = [D[0][1] + 4*k for k in range(4)]
    for k in (0, 2, 1, 3):
        I(f"ds_read_b128 v[{cr[k]}:{cr[k]+3}], v{vra} offset:{k*8192}")
        I(f"ds_read_b128 v[{ci[k]}:{ci[k]+3}], v{vra} offset:{k*8192+1024}")
    ar = [dre + 4*k for k in range(4)]; ai = [dim + 4*k for k in range(4)]
    for e in range(4):
        I(f"v_add_f32 v{ar[0]+e}, v{cr[0]+e}, v{cr[2]+e}"); I(f"v_sub_f32 v{ar[1]+e}, v{cr[0]+e}, v{cr[2]+e}")
        I(f"v_add_f32 v{ai[0]+e}, v{ci[0]+e}, v{ci[2]+e}"); I(f"v_sub_f32 v{ai[1]+e}, v{ci[0]+e}, v{ci[2]+e}")
    for e in range(4):
        I(f"v_add_f32 v{ar[2]+e}, v{cr[1]+e}, v{cr[3]+e}"); I(f"v_sub_f32 v{ar[3]+e}, v{cr[1]+e}, v{cr[3]+e}")
        I(f"v_add_f32 v{ai[2]+e}, v{ci[1]+e}, v{ci[3]+e}"); I(f"v_sub_f32 v{ai[3]+e}, v{ci[1]+e}, v{ci[3]+e}")
    oq = [RE, RE + 4, IM, IM + 4]
    for b0 in range(4):
        xr, xi = cr[b0], ci[b0]
        for e in range(4):
            if b0 == 0:
                I(f"v_add_f32 v{xr+e}, v{ar[0]+e}, v{ar[2]+e}"); I(f"v_add_f32 v{xi+e}, v{ai[0]+e}, v{ai[2]+e}")
            elif b0 == 2:
                I(f"v_sub_f32 v{xr+e}, v{ar[0]+e}, v{ar[2]+e}"); I(f"v_sub_f32 v{xi+e}, v{ai[0]+e}, v{ai[2]+e}")
            elif b0 == 1:
                I(f"v_add_f32 v{xr+e}, v{ar[1]+e}, v{ai[3]+e}"); I(f"v_sub_f32 v{xi+e}, v{ai[1]+e}, v{ar[3]+e}")
            else:
                I(f"v_sub_f32 v{xr+e}, v{ar[1]+e}, v{ai[3]+e}"); I(f"v_add_f32 v{xi+e}, v{ai[1]+e}, v{ar[3]+e}")
        c_, s_ = tw + 2*b0, tw + 2*b0 + 1
        for e in range(4):
            I(f"v_mul_f32 v{wf+2*e}, v{xr+e}, v{c_}")
            I(f"v_mul_f32 v{wf+2*e+1}, v{xi+e}, v{c_}")
            I(f"v_fmac_f32 v{wf+2*e}, v{xi+e}, v{s_}")
            I(f"v_fma_f32 v{wf+2*e+1}, -v{xr+e}, v{s_}, v{wf+2*e+1}")
            I(f"v_cvt_pk_bf16_f32 v{oq[b0]+e}, v{wf+2*e}, v{wf+2*e+1}")
        I(f"buffer_store_dwordx4 v[{oq[b0]}:{oq[b0]+3}], v{vs1}, s[{WS_}:{WS_+3}], s52 offen {SC}")
        if b0 < 3: I(f"s_add_u32 s52, s52, 16896")
    ST.stamp(); ST.dump(sWV, WS_)
    I("s_endpgm")
    return P.hi

def gen_kv(A, ST):
    I = A.I
    P = Pool('v', 1, 256)
    sHp = 16
    I(f"s_sub_u32 s{sHp}, s2, 160")
    vG, vM = P.alloc(), P.alloc()
    I(f"v_lshrrev_b32 v{vG}, 4, v0")
    I(f"v_and_b32 v{vM}, 15, v0")
    t0, t1, t2, t3 = [P.alloc() for _ in range(4)]
    part = P.alloc(64, 4)
    I(f"v_lshlrev_b32 v{t0}, 4, v0")
    I(f"s_lshl_b32 s48, s{sHp}, 16")
    I(f"s_lshl_b32 s49, s{sW}, 13")
    I(f"s_add_u32 s48, s48, s49")
    I(f"s_add_u32 s48, s48, {OFF_KVP}")
    I(f"s_add_u32 s49, s48, 4096")
    I(f"s_add_u32 s50, s48, 32768")
    I(f"s_add_u32 s51, s48, 36864")
    for i in range(16):
        I(f"buffer_load_dwordx4 v[{part+4*i}:{part+4*i+3}], v{t0}, s[{WS_}:{WS_+3}], s{48 + (i>>2)} offen offset:{1024*(i&3)}")
    wo = P.alloc(32, 2)
    I(f"v_lshlrev_b32 v{t1}, 12, v{vG}")
    I(f"v_lshl_add_u32 v{t1}, v{vM}, 3, v{t1}")
    I(f"s_lshl_b32 s54, s{sHp}, 15")
    I(f"s_lshl_b32 s55, s{sW}, 8")
    I(f"s_add_u32 s54, s54, s55")
    I(f"s_add_u32 s55, s54, 16384")
    for G in range(2):
        for h in range(2):
            for jj in range(4):
                r = wo + 16 * G + 8 * h + 2 * jj
                I(f"buffer_load_dwordx2 v[{r}:{r+1}], v{t1}, s[{WO_}:{WO_+3}], s{54+h} offen offset:{1024*jj + 128*G}")
    I(f"s_lshl_b32 s48, s{sW}, 11")
    I(f"v_add_u32 v{t0}, {LDS_T}, v{t0}")
    I(f"v_add_u32 v{t2}, s48, v{t0}")
    for h in range(2):
        b_ = part + 32 * h
        for i in range(1, 8):
            for c in range(4): I(f"v_add_f32 v{b_+c}, v{b_+c}, v{b_+4*i+c}")
        I(f"ds_write_b128 v{t2}, v[{b_}:{b_+3}] offset:{1024*h}")
    sw_barrier(A, 1, "KV", t2, t3)
    kva = P.alloc(4, 2)
    for h in range(2):
        b_ = part + 32 * h + 4
        for i in range(4):
            I(f"ds_read_b128 v[{b_+4*i}:{b_+3+4*i}], v{t0} offset:{2048*i + 1024*h}")
    I("s_mov_b32 s52, 0x05040100"); I("s_mov_b32 s53, 0x07060302")
    bq = P.alloc(32, 2); dd = P.alloc(64, 4); oo = P.alloc(32, 4)
    for G in range(2):
        for h in range(2):
            for e in range(4):
                b_ = bq + 16 * G + 8 * h + 2 * e
                for hp in range(2):
                    r0 = wo + 16 * G + 8 * h + 4 * hp + (e >> 1); r1 = r0 + 2
                    I(f"v_perm_b32 v{b_+hp}, v{r1}, v{r0}, s{52 + (e & 1)}")
    for h in range(2):
        b_ = part + 32 * h + 4
        for c in range(4):
            I(f"v_add_f32 v{b_+c}, v{b_+c}, v{b_+4+c}")
            I(f"v_add_f32 v{b_+8+c}, v{b_+8+c}, v{b_+12+c}")
            I(f"v_add_f32 v{b_+c}, v{b_+c}, v{b_+8+c}")
        I(f"v_cvt_pk_bf16_f32 v{kva+2*h}, v{b_}, v{b_+1}")
        I(f"v_cvt_pk_bf16_f32 v{kva+2*h+1}, v{b_+2}, v{b_+3}")
    I(f"v_lshrrev_b32 v{t2}, 2, v{vM}")
    I(f"v_lshlrev_b32 v{t2}, 14, v{t2}")
    I(f"v_and_b32 v{t3}, 3, v{vM}")
    I(f"v_lshl_add_u32 v{t2}, v{t3}, 6, v{t2}")
    I(f"v_lshl_add_u32 v{t2}, v{vG}, 8, v{t2}")
    I(f"s_lshl_b32 s48, s{sW}, 17")
    I(f"s_lshl_b32 s49, s{sHp}, 10")
    I(f"s_add_u32 s48, s48, s49")
    I(f"s_add_u32 s48, s48, {OFF_KVWO}")
    I(f"s_add_u32 s49, s48, 65536")
    for G in range(2):
        for e in range(4):
            for h in range(2):
                b_ = bq + 16 * G + 8 * h + 2 * e; d_ = dd + 32 * G + 8 * e + 4 * h
                I(f"v_mfma_f32_16x16x16_bf16 v[{d_}:{d_+3}], v[{kva+2*h}:{kva+2*h+1}], v[{b_}:{b_+1}], 0")
    for G in range(2):
        for e in range(4):
            o_ = oo + 16 * G + 4 * e
            for k in range(4):
                I(f"v_cvt_pk_bf16_f32 v{o_+k}, v{dd+32*G+8*e+2*k}, v{dd+32*G+8*e+2*k+1}")
            I(f"buffer_store_dwordx4 v[{o_}:{o_+3}], v{t2}, s[{WS_}:{WS_+3}], s{48+G} offen offset:{16*e}")
    ST.stamp(); ST.dump(sWV, WS_)
    I("s_endpgm")
    return P.hi

def gen_q(A, ST):
    I = A.I
    P = Pool('v', 1, 256)
    sJ, sT, sS1 = 16, 17, 18
    decode_wg(A, "s2", sJ, sS1)
    vG, vM = P.alloc(), P.alloc()
    I(f"v_lshrrev_b32 v{vG}, 4, v0")
    I(f"v_and_b32 v{vM}, 15, v0")
    t5 = P.alloc(); t0, t1 = P.alloc(), P.alloc(); t2 = P.alloc(2, 2); t3 = t2 + 1; t4 = P.alloc()
    vd = [P.alloc() for _ in range(4)]
    I(f"v_lshrrev_b32 v{t0}, 3, v0")
    I(f"v_bfe_u32 v{t1}, v0, 4, 1")
    I(f"v_bfe_u32 v{t2}, v0, 1, 2")
    I(f"v_xor_b32 v{t1}, v{t1}, v{t2}")
    I(f"v_lshlrev_b32 v{t1}, 5, v{t1}")
    I(f"v_and_b32 v{t2}, 1, v0")
    I(f"v_lshl_add_u32 v{t1}, v{t2}, 4, v{t1}")
    I(f"v_mul_u32_u24 v{t0}, 3072, v{t0}")
    I(f"v_add_u32 v{vd[0]}, v{t0}, v{t1}")
    I(f"v_xor_b32 v{t0}, 64, v{vd[0]}")
    for i in range(1, 4):
        I(f"v_add_u32 v{vd[i]}, {i*(8*3072 - 1024)}, v{t0 if i & 1 else vd[0]}")
    I(f"s_mul_i32 s48, s{sW}, {128*3072}")
    I(f"s_lshl_b32 s49, s{sJ}, 7")
    I(f"s_add_u32 s48, s48, s49")
    I(f"s_lshl_b32 s60, s{sW}, 14")
    vx = [P.alloc(), P.alloc()]
    I(f"v_lshrrev_b32 v{t0}, 3, v0")
    I(f"v_lshrrev_b32 v{t1}, 4, v0")
    I(f"v_and_b32 v{t2}, 7, v0")
    I(f"v_xor_b32 v{t1}, v{t1}, v{t2}")
    I(f"v_lshlrev_b32 v{t1}, 4, v{t1}")
    I(f"v_lshl_add_u32 v{vx[0]}, v{t0}, 15, v{t1}")
    I(f"v_xor_b32 v{vx[1]}, 64, v{vx[0]}")
    I(f"v_add_u32 v{vx[1]}, {8*32768 - 1024}, v{vx[1]}")
    I(f"s_lshl_b32 s58, s{sS1}, 10")
    I(f"s_lshl_b32 s59, s{sW}, 8")
    I(f"s_add_u32 s58, s58, s59")
    for a_ in range(4):
        I(f"s_add_u32 s{54+a_}, s{sW}, {a_}")
        I(f"s_and_b32 s{54+a_}, s{54+a_}, 3")
        I(f"s_lshl_b32 s{54+a_}, s{54+a_}, 19")
        I(f"s_add_u32 s{54+a_}, s{54+a_}, s58")
    def issue(h):
        for g_ in range(2):
            I(f"s_add_u32 m0, s60, {8192 + 4096*g_}")
            for i in range(4):
                I(f"buffer_load_dwordx4 v{vd[i]}, s[{WQ_}:{WQ_+3}], s48 offen offset:{1024*i} lds", tag=f"p{h}")
            I(f"s_add_u32 s48, s48, {32*3072}")
        for a_ in range(4):
            I(f"s_add_u32 m0, s60, {2048*a_}")
            for i in range(2):
                I(f"buffer_load_dwordx4 v{vx[i]}, s[{X_}:{X_+3}], s{54+a_} offen offset:{1024*i} lds", tag=f"p{h}")
            if h == 0: I(f"s_add_u32 s{54+a_}, s{54+a_}, 128")
    issue(0)
    zr = P.alloc(8, 4); gv = P.alloc()
    I(f"s_lshl_b32 s58, s{sJ}, 2")
    I(f"s_add_u32 s58, s58, s{sW}")
    I(f"v_lshlrev_b32 v{t0}, 11, v{vM}")
    I(f"v_lshl_add_u32 v{t0}, v{vG}, 4, v{t0}")
    I(f"s_lshl_b32 s50, s58, 6")
    I(f"s_add_u32 s50, s50, {OFF_ZP}")
    I(f"s_add_u32 s51, s50, 32768")
    I(f"buffer_load_dwordx4 v[{zr}:{zr+3}], v{t0}, s[{WS_}:{WS_+3}], s50 offen")
    I(f"buffer_load_dwordx4 v[{zr+4}:{zr+7}], v{t0}, s[{WS_}:{WS_+3}], s51 offen")
    I(f"v_lshlrev_b32 v{t1}, 2, v{vM}")
    I(f"s_lshl_b32 s50, s{sS1}, 8")
    I(f"s_lshl_b32 s51, s{sW}, 6")
    I(f"s_add_u32 s50, s50, s51")
    I(f"s_add_u32 s50, s50, {OFF_G}")
    I(f"buffer_load_dword v{gv}, v{t1}, s[{WS_}:{WS_+3}], s50 offen")
    baddr = [P.alloc() for _ in range(4)]; xaddr = [P.alloc(), P.alloc()]
    I(f"v_bfe_u32 v{t0}, v0, 2, 2")
    I(f"v_bfe_u32 v{t1}, v0, 3, 1")
    I(f"v_and_b32 v{t2}, 1, v{vG}")
    I(f"v_lshl_or_b32 v{t1}, v{t2}, 1, v{t1}")
    I(f"v_lshl_add_u32 v{t0}, v{vG}, 3, v{t0}")
    I(f"v_lshlrev_b32 v{t0}, 7, v{t0}")
    I(f"v_and_b32 v{t2}, 3, v0")
    I(f"v_lshl_add_u32 v{t0}, v{t2}, 3, v{t0}")
    I(f"v_add_u32 v{t0}, s60, v{t0}")
    I(f"v_lshl_add_u32 v{baddr[0]}, v{t1}, 5, v{t0}")
    for hd in range(1, 4): I(f"v_xor_b32 v{baddr[hd]}, {32*hd}, v{baddr[0]}")
    I(f"v_lshrrev_b32 v{t0}, 1, v{vM}")
    I(f"v_xor_b32 v{t0}, v{t0}, v{vG}")
    I(f"v_lshlrev_b32 v{t0}, 4, v{t0}")
    I(f"v_lshl_add_u32 v{t0}, v{vM}, 7, v{t0}")
    I(f"v_add_u32 v{xaddr[0]}, s60, v{t0}")
    I(f"v_xor_b32 v{xaddr[1]}, 64, v{xaddr[0]}")
    acc = [[P.alloc(4, 4) for hd in range(4)] for a_ in range(4)]
    xf = [[P.alloc(4, 4) for a_ in range(4)] for ks in range(4)]
    bfr = [[P.alloc(4, 4) for hd in range(4)] for ks in range(4)]
    def read_list(ks):
        L = []
        for hd in range(4):
            for half in range(2):
                r = bfr[ks][hd] + 2 * half
                L.append(f"ds_read_b64_tr_b16 v[{r}:{r+1}], v{baddr[hd]} offset:{8192 + (ks&1)*4096 + half*512}")
        for a_ in range(4):
            L.append(f"ds_read_b128 v[{xf[ks][a_]}:{xf[ks][a_]+3}], v{xaddr[ks&1]} offset:{2048*a_}")
        return L
    def mfma_list(ks):
        ml = []
        order = [1, 2, 3, 0] if ks == 3 else [0, 1, 2, 3]
        for a_ in order:
            for hd in range(4):
                c = acc[a_][hd]; b_ = bfr[ks][hd]
                cs = "0" if ks == 0 else f"v[{c}:{c+3}]"
                ml.append(f"v_mfma_f32_16x16x32_bf16 v[{c}:{c+3}], v[{b_}:{b_+3}], v[{xf[ks][a_]}:{xf[ks][a_]+3}], {cs}")
        return ml
    ST.stamp()
    A.wait_vm_tag("p0")
    for r_ in read_list(0) + read_list(1): I(r_)
    A.wait_lg_all()
    issue(1)
    ST.stamp()
    for m_ in mfma_list(0) + mfma_list(1): I(m_)
    for c in range(4): I(f"v_add_f32 v{zr+c}, v{zr+c}, v{zr+4+c}")
    for sh in (8, 4, 2, 1):
        for c in range(4):
            I(f"v_add_f32_dpp v{zr+c}, v{zr+c}, v{zr+c} row_ror:{sh} row_mask:0xf bank_mask:0xf")
    I(f"v_cvt_pk_bf16_f32 v{zr+4}, v{zr}, v{zr+1}")
    I(f"v_cvt_pk_bf16_f32 v{zr+5}, v{zr+2}, v{zr+3}")
    I(f"v_lshlrev_b32 v{zr}, 16, v{zr+4}"); I(f"v_and_b32 v{zr+1}, 0xffff0000, v{zr+4}")
    I(f"v_lshlrev_b32 v{zr+2}, 16, v{zr+5}"); I(f"v_and_b32 v{zr+3}, 0xffff0000, v{zr+5}")
    A.wait_vm_tag("p1")
    for r_ in read_list(2): I(r_)
    merge(A, mfma_list(2), read_list(3), 1)
    for m_ in mfma_list(3): I(m_)
    ST.stamp()
    I(f"s_lshl_b32 s48, s{sW}, 14")
    I(f"v_lshl_add_u32 v{t0}, v0, 4, s48")
    for a_ in range(1, 4):
        for hd in range(4):
            c = acc[a_][hd]
            I(f"ds_write_b128 v{t0}, v[{c}:{c+3}] offset:{(a_-1)*4096 + hd*1024}")
    I(f"ds_write_b128 v{t0}, v[{zr}:{zr+3}] offset:12288")
    va, vL2E = P.alloc(), P.alloc()
    I(f"v_lshlrev_b32 v{va}, 4, v0")
    I(f"v_mov_b32 v{vL2E}, {hex(LOG2E)}")
    I(f"s_lshl_b32 s50, s{sS1}, 16")
    I(f"s_lshl_b32 s49, s{sW}, 14")
    I(f"s_add_u32 s50, s50, s49")
    I(f"s_lshl_b32 s49, s{sJ}, 11")
    I(f"s_add_u32 s50, s50, s49")
    I(f"s_add_u32 s50, s50, {OFF_APP}")
    for a_ in range(1, 4):
        I(f"s_sub_u32 s48, s{sW}, {a_}")
        I(f"s_and_b32 s48, s48, 3")
        I(f"s_lshl_b32 s48, s48, 14")
        I(f"v_lshl_add_u32 v{t1+a_-1}, v0, 4, s48")
    I(f"v_lshlrev_b32 v{t4}, 4, v0")
    sw_barrier(A, 0, "Q", t5, t0)
    zq = [xf[0][hd] for hd in range(4)]
    for hd in range(4):
        for a_ in range(1, 4):
            c = acc[a_][hd]
            I(f"ds_read_b128 v[{c}:{c+3}], v{t1+a_-1} offset:{(a_-1)*4096 + hd*1024}")
        I(f"ds_read_b128 v[{zq[hd]}:{zq[hd]+3}], v{t4} offset:{hd*16384 + 12288}")
    ST.stamp()
    den = xf[1][0]; den2 = xf[1][1]; ex = xf[1][2]; oq = [xf[2][0], xf[2][1]]
    for hd in range(4):
        c = acc[0][hd]
        for i in range(4):
            I(f"v_add_f32 v{c+i}, v{c+i}, v{acc[1][hd]+i}")
            I(f"v_add_f32 v{acc[2][hd]+i}, v{acc[2][hd]+i}, v{acc[3][hd]+i}")
        for i in range(4): I(f"v_add_f32 v{c+i}, v{c+i}, v{acc[2][hd]+i}")
        for pr in range(2): I(f"v_cvt_pk_bf16_f32 v{ex+pr}, v{c+2*pr}, v{c+2*pr+1}")
        for pr in range(2):
            I(f"v_lshlrev_b32 v{c+2*pr}, 16, v{ex+pr}")
            I(f"v_and_b32 v{c+2*pr+1}, 0xffff0000, v{ex+pr}")
        for i in range(4): I(f"v_mul_f32 v{ex+i}, v{vL2E}, v{c+i}")
        for i in range(4): I(f"v_exp_f32 v{ex+i}, v{ex+i} clamp")
        for i in range(4): I(f"v_max_f32 v{c+i}, 0x358637bd, v{c+i}")
        for i in range(4): I(f"v_add_f32 v{c+i}, v{c+i}, v{ex+i}")
        for pr in range(2): I(f"v_cvt_pk_bf16_f32 v{ex+pr}, v{c+2*pr}, v{c+2*pr+1}")
        for pr in range(2):
            I(f"v_lshlrev_b32 v{c+2*pr}, 16, v{ex+pr}")
            I(f"v_and_b32 v{c+2*pr+1}, 0xffff0000, v{ex+pr}")
        I(f"v_mul_f32 v{den+hd}, v{c}, v{zq[hd]}")
        for i in range(1, 4): I(f"v_fmac_f32 v{den+hd}, v{c+i}, v{zq[hd]+i}")
    I(f"v_permlane32_swap_b32 v{den}, v{den+2}")
    I(f"v_permlane32_swap_b32 v{den+1}, v{den+3}")
    I(f"v_add_f32 v{den}, v{den}, v{den+2}")
    I(f"v_add_f32 v{den+1}, v{den+1}, v{den+3}")
    I(f"v_permlane16_swap_b32 v{den}, v{den+1}")
    I(f"v_add_f32 v{den}, v{den}, v{den+1}")
    I(f"v_add_f32 v{den}, 0x358637bd, v{den}")
    I(f"v_rcp_f32 v{den}, v{den}")
    I(f"v_mul_f32 v{den}, v{den}, v{gv}")
    I(f"v_mov_b32 v{den+1}, v{den}")
    I(f"v_permlane16_swap_b32 v{den}, v{den+1}")
    I(f"v_mov_b32 v{den+2}, v{den}"); I(f"v_mov_b32 v{den+3}, v{den+1}")
    I(f"v_permlane32_swap_b32 v{den}, v{den+2}")
    I(f"v_permlane32_swap_b32 v{den+1}, v{den+3}")
    for hd in range(4):
        c = acc[0][hd]
        for i in range(4): I(f"v_mul_f32 v{c+i}, v{c+i}, v{den+hd}")
        o_ = oq[hd >> 1] + 2 * (hd & 1)
        I(f"v_cvt_pk_bf16_f32 v{o_}, v{c}, v{c+1}")
        I(f"v_cvt_pk_bf16_f32 v{o_+1}, v{c+2}, v{c+3}")
        if hd & 1:
            q_ = oq[hd >> 1]
            I(f"buffer_store_dwordx4 v[{q_}:{q_+3}], v{va}, s[{WS_}:{WS_+3}], s50 offen offset:{1024*(hd>>1)} {SC}")
    ST.stamp(); ST.dump(sWV, WS_)
    return P.hi

def gen_k2():
    A = Asm(); I = A.I
    I(f"s_cmp_ge_u32 s2, {K2_GRID}")
    I("s_cbranch_scc1 K2_END")
    ST = Stamper(A, 1); ST.first()
    I("s_load_dwordx4 s[4:7], s[0:1], 0")
    I("s_load_dwordx2 s[8:9], s[0:1], 16")
    I("s_load_dwordx2 s[14:15], s[0:1], 72")
    I("v_lshrrev_b32 v1, 6, v0")
    I("v_and_b32 v0, 63, v0")
    I(f"v_readfirstlane_b32 s{sWV}, v1")
    I(f"v_mov_b32 v2, {LDS_FLAG}")
    I(f"v_mov_b32 v4, 0"); I(f"v_mov_b32 v5, 0"); I(f"v_mov_b32 v6, 0"); I(f"v_mov_b32 v7, 0")
    I(f"ds_write_b128 v2, v[4:7]")
    srd(A, WS_, 14, WS_BYTES)
    I(f"s_and_b32 s{sW}, s{sWV}, 3")
    srd(A, X_, 4, 2097152)
    srd(A, WQ_, 6, 1572864)
    srd(A, WO_, 8, 524288)
    A.barrier()
    I(f"s_cmp_ge_u32 s{sWV}, 4")
    A.drain_hazards()
    I("s_cbranch_scc1 K2_Q" if not os.environ.get("NOQ") else "s_cbranch_scc1 K2_END")
    I(f"s_cmp_ge_u32 s2, 176")
    I("s_cbranch_scc1 K2_END")
    I(f"s_cmp_ge_u32 s2, 160")
    I("s_cbranch_scc1 K2_KV")
    I(f"s_and_b32 s48, s2, 0x87")
    I(f"s_cmp_gt_u32 s48, 0x80")
    I("s_cbranch_scc1 K2_END")
    h1 = gen_fft(A, ST)
    A.label("K2_KV"); ST.begin_role()
    h2 = gen_kv(A, ST)
    A.label("K2_Q"); ST.begin_role()
    h3 = gen_q(A, ST)
    A.label("K2_END")
    I("s_endpgm")
    return A.text(), max(h1, h2, h3), 0, A.ninst

if __name__ == "__main__":
    t, vg, ag, n = gen_k2(); print(vg, ag, n)
```

```python
from common_k import *
import struct, os
def f32(x): return hex(struct.unpack('<I', struct.pack('<f', x))[0])
LDS_V = 49152
K3_LDS = 49152 + 4 * 2048 + 1024

def gen_k3():
    A = Asm(); I = A.I
    I("s_cmp_ge_u32 s2, 256")
    I("s_cbranch_scc1 K3_END")
    ST = Stamper(A, 2); ST.first()
    I("s_load_dwordx2 s[12:13], s[0:1], 56")
    I("s_load_dwordx2 s[14:15], s[0:1], 72")
    sJ, sS1, sW = 16, 18, 20
    I("v_lshrrev_b32 v1, 6, v0")
    I("v_and_b32 v0, 63, v0")
    I(f"v_readfirstlane_b32 s{sW}, v1")
    decode_wg(A, "s2", sJ, sS1)
    OUT_, WS_ = 40, 44
    P = Pool('v', 1, 256); PA = Pool('a', 0, 256)
    vG, vM, vL16 = P.alloc(), P.alloc(), P.alloc()
    I(f"v_lshlrev_b32 v{vL16}, 4, v0")
    I(f"v_lshrrev_b32 v{vG}, 4, v0")
    I(f"v_and_b32 v{vM}, 15, v0")
    t0, t1, t2, t3, t4, t5 = [P.alloc() for _ in range(6)]
    I(f"s_lshl_b32 s48, s{sS1}, 2")
    I(f"s_lshr_b32 s49, s{sJ}, 1")
    I(f"s_add_u32 s48, s48, s49")
    I(f"s_mul_i32 s48, s48, 16896")
    I(f"s_and_b32 s49, s{sJ}, 1")
    I(f"s_lshl_b32 s49, s49, 6")
    I(f"s_add_u32 s48, s48, s49")
    I(f"s_add_u32 s51, s48, {OFF_V + 16384 - 1536}")
    I(f"s_lshl_b32 s49, s{sW}, 11")
    I(f"s_add_u32 s53, s49, {LDS_V}")
    I(f"s_mov_b32 m0, s53")
    I(f"s_lshl_b32 s49, s{sW}, 12")
    I(f"s_add_u32 s48, s48, s49")
    I(f"s_add_u32 s48, s48, {OFF_V}")
    I(f"s_add_u32 s50, s48, 1024")
    I(f"v_lshrrev_b32 v{t0}, 2, v0")
    I(f"v_and_b32 v{t2}, 3, v0")
    I(f"v_lshlrev_b32 v{t2}, 4, v{t2}")
    I(f"v_lshl_add_u32 v{t2}, v{t0}, 7, v{t2}")
    srd(A, WS_, 14, WS_BYTES)
    I(f"buffer_load_dwordx4 v{t2}, s[{WS_}:{WS_+3}], s48 offen lds", tag='v')
    I(f"buffer_load_dwordx4 v{t2}, s[{WS_}:{WS_+3}], s50 offen offset:1024 lds", tag='v')
    I(f"s_mov_b32 m0, {LDS_V + 8192}")
    I(f"s_cmp_lg_u32 s{sW}, 0")
    I("s_cbranch_scc1 K3_NOSPL")
    A.raw(f"    buffer_load_dwordx4 v{t2}, s[{WS_}:{WS_+3}], s51 offen lds")
    A.raw("K3_NOSPL:")
    for a_ in range(4):
        I(f"s_add_u32 s{66+a_}, s{sW}, {a_}")
        I(f"s_and_b32 s{66+a_}, s{66+a_}, 3")
    gv = P.alloc(4)
    I(f"v_lshlrev_b32 v{t1}, 2, v{vM}")
    I(f"s_lshl_b32 s48, s{sS1}, 8")
    I(f"s_add_u32 s48, s48, {OFF_G}")
    for a_ in range(4):
        I(f"s_lshl_b32 s50, s{66+a_}, 6")
        I(f"s_add_u32 s50, s50, s48")
        I(f"buffer_load_dword v{gv+a_}, v{t1}, s[{WS_}:{WS_+3}], s50 offen", tag='g')
    af = [[PA.alloc(4, 4) for a_ in range(4)] for ks in range(4)]
    bf = [[PA.alloc(4, 4) for e in range(4)] for ks in range(4)]
    acc = [[PA.alloc(4, 4) for e in range(4)] for a_ in range(4)]
    I(f"s_lshl_b32 s48, s{sS1}, 16")
    I(f"s_add_u32 s48, s48, s49")
    I(f"s_add_u32 s48, s48, {OFF_APP}")
    for a_ in range(4):
        I(f"s_lshl_b32 s{70+a_}, s{66+a_}, 14")
        I(f"s_add_u32 s{70+a_}, s{70+a_}, s48")
    I(f"s_lshl_b32 s54, s{sJ}, 14")
    I(f"s_add_u32 s54, s54, s49")
    I(f"s_add_u32 s54, s54, {OFF_KVWO}")
    for e in range(1, 4): I(f"s_add_u32 s{54+e}, s54, {131072*e}")
    L = Rec()
    for ks in range(4):
        for i in range(4):
            L.I(f"buffer_load_dwordx4 a[{af[ks][i]}:{af[ks][i]+3}], v{vL16}, s[{WS_}:{WS_+3}], s{70+i} offen offset:{1024*ks}")
            L.I(f"buffer_load_dwordx4 a[{bf[ks][i]}:{bf[ks][i]+3}], v{vL16}, s[{WS_}:{WS_+3}], s{54+i} offen offset:{1024*ks}")
    lu = L.units()
    for u in lu[:10]: play(A, u)
    L2 = Rec(); L2.ops = L.ops[10:]
    ST.stamp()
    T = Rec(); TI = T.I
    kA, kB = P.alloc(), P.alloc()
    split_consts(T, kA, kB)
    srd(T, OUT_, 12, 2097152)
    T.group()
    TI(f"s_cmp_eq_u32 s{sW}, 0")
    TI("s_cselect_b64 s[64:65], 0xffff, 0")
    T.endgroup()
    gf = [[P.alloc(4, 4) for hl in range(2)] for a_ in range(4)]
    vk = [P.alloc(), P.alloc()]; vph = [P.alloc(), P.alloc()]; vpm = P.alloc()
    cs = P.alloc(16, 2)
    TI(f"s_lshl_b32 s52, s{sW}, 3")
    TI(f"v_lshl_add_u32 v{t0}, v{vG}, 1, s52")
    TI(f"v_lshl_add_u32 v{t1}, v{vM}, 5, s{sS1}")
    TI(f"v_cvt_f32_u32 v{t1}, v{t1}")
    TI(f"v_mul_f32 v{t1}, 0x3a000000, v{t1}")
    TI(f"v_cvt_f32_u32 v{vk[0]}, v{t0}")
    TI(f"v_add_f32 v{vk[1]}, 1.0, v{vk[0]}")
    for kk in range(2):
        TI(f"v_mul_f32 v{vph[kk]}, v{t1}, v{vk[kk]}")
        TI(f"v_mul_f32 v{vk[kk]}, 0x3e800000, v{vk[kk]}")
    TI(f"v_lshlrev_b32 v{vpm}, 31, v{vM}")
    TI(f"v_or_b32 v{vpm}, 0.5, v{vpm}")
    for a_ in range(4):
        TI(f"v_cvt_f32_u32 v{t2}, s{66+a_}")
        for kk in range(2):
            TI(f"v_fma_f32 v{t0}, v{t2}, v{vk[kk]}, v{vph[kk]}")
            TI(f"v_cos_f32 v{cs+4*a_+2*kk}, v{t0}")
            TI(f"v_sin_f32 v{cs+4*a_+2*kk+1}, v{t0}")
    T.group()
    TI("s_mov_b64 exec, s[64:65]")
    for a_ in range(4):
        TI(f"v_mov_b32 v{cs+4*a_}, 0.5")
        TI(f"v_mov_b32 v{cs+4*a_+1}, v{vpm}")
    TI("s_mov_b64 exec, -1")
    T.endgroup()
    for a_ in range(4):
        TI(f"v_sub_f32 v{t0}, 1.0, v{gv+a_}")
        TI(f"v_cvt_pk_bf16_f32 v{t0}, v{t0}, v{t0}")
        TI(f"v_and_b32 v{t0}, 0xffff0000, v{t0}")
        TI(f"v_mul_f32 v{t0}, {f32(2.0**-19)}, v{t0}")
        for i in range(4): TI(f"v_mul_f32 v{cs+4*a_+i}, v{cs+4*a_+i}, v{t0}")
    split_many(T, [(gf[a_][0] + kk, gf[a_][1] + kk, cs + 4*a_ + 2*kk, cs + 4*a_ + 2*kk + 1, gf[a_][0] + 2 + kk, gf[a_][1] + 2 + kk)
                   for a_ in range(4) for kk in range(2)], kA, kB)
    vv, vv2 = P.alloc(), P.alloc()
    TI(f"v_lshlrev_b32 v{t0}, 2, v{vM}")
    TI(f"v_add_u32 v{vv2}, {LDS_V + 8192 + 768}, v{t0}")
    TI(f"v_lshl_add_u32 v{t0}, v{vG}, 9, v{t0}")
    TI(f"v_add_u32 v{vv}, s53, v{t0}")
    I = TI
    c = [[P.alloc(2, 2) for k4 in range(4)] for kk in range(3)]
    pk = P.alloc(12, 2)
    for kk in range(3):
        for kp in range(2):
            I(f"ds_read2_b32 v[{pk+4*kk+2*kp}:{pk+4*kk+2*kp+1}], v{vv if kk < 2 else vv2} offset0:{(kk&1)*64*(kk<2) + kp*32} offset1:{(kk&1)*64*(kk<2) + kp*32 + 16}")
    for kk in range(3):
        for k4 in range(4):
            I(f"v_lshlrev_b32 v{c[kk][k4]}, 16, v{pk+4*kk+k4}")
            I(f"v_and_b32 v{c[kk][k4]+1}, 0xffff0000, v{pk+4*kk+k4}")
    u = P.alloc(16, 2)
    sd = P.alloc(8)
    for kk in range(2):
        cc = c[kk]
        for ri in range(2):
            I(f"v_add_f32 v{sd+ri}, v{cc[0]+ri}, v{cc[2]+ri}")
            I(f"v_sub_f32 v{sd+2+ri}, v{cc[0]+ri}, v{cc[2]+ri}")
            I(f"v_add_f32 v{sd+4+ri}, v{cc[1]+ri}, v{cc[3]+ri}")
            I(f"v_sub_f32 v{sd+6+ri}, v{cc[1]+ri}, v{cc[3]+ri}")
        for ri in range(2):
            I(f"v_add_f32 v{u+2*kk+ri}, v{sd+ri}, v{sd+4+ri}")
            I(f"v_sub_f32 v{u+8+2*kk+ri}, v{sd+ri}, v{sd+4+ri}")
        I(f"v_add_f32 v{u+4+2*kk}, v{sd+2}, v{sd+7}")
        I(f"v_sub_f32 v{u+4+2*kk+1}, v{sd+3}, v{sd+6}")
        I(f"v_sub_f32 v{u+12+2*kk}, v{sd+2}, v{sd+7}")
        I(f"v_add_f32 v{u+12+2*kk+1}, v{sd+3}, v{sd+6}")
    cc = c[2]
    T.group()
    I("s_mov_b64 exec, s[64:65]")
    I(f"v_add_f32 v{sd}, v{cc[0]}, v{cc[2]}")
    I(f"v_sub_f32 v{sd+2}, v{cc[0]}, v{cc[2]}")
    I(f"v_add_f32 v{sd+4}, v{cc[1]}, v{cc[3]}")
    I(f"v_sub_f32 v{sd+7}, v{cc[1]+1}, v{cc[3]+1}")
    I(f"v_add_f32 v{u+1}, v{sd}, v{sd+4}")
    I(f"v_sub_f32 v{u+9}, v{sd}, v{sd+4}")
    I(f"v_add_f32 v{u+5}, v{sd+2}, v{sd+7}")
    I(f"v_sub_f32 v{u+13}, v{sd+2}, v{sd+7}")
    I("s_mov_b64 exec, -1")
    T.endgroup()
    uq = [P.alloc(4, 4) for e in range(4)]
    split_many(T, [(uq[e] + kk, uq[e] + 2 + kk, u + 4*e + 2*kk, u + 4*e + 2*kk + 1, None, None) for e in range(4) for kk in range(2)], kA, kB)
    for e in range(4):
        for a_ in range(4):
            c_ = acc[a_][e]
            I(f"v_mfma_f32_16x16x32_bf16 a[{c_}:{c_+3}], v[{uq[e]}:{uq[e]+3}], v[{gf[a_][0]}:{gf[a_][0]+3}], 0")
    for e in range(4):
        for a_ in range(4):
            c_ = acc[a_][e]
            I(f"v_mfma_f32_16x16x32_bf16 a[{c_}:{c_+3}], v[{uq[e]}:{uq[e]+3}], v[{gf[a_][1]}:{gf[a_][1]+3}], a[{c_}:{c_+3}]")
    vf = P.alloc()
    I(f"s_mul_i32 s48, s{sW}, 12288")
    I(f"v_add_u32 v{t0}, s48, v{vL16}")
    for a_ in range(1, 4):
        I(f"s_sub_u32 s48, s{sW}, {a_}")
        I(f"s_and_b32 s48, s48, 3")
        I(f"s_mul_i32 s48, s48, 12288")
        I(f"v_add_u32 v{t1+a_-1}, s48, v{vL16}")
    I(f"v_lshlrev_b32 v{vf}, 15, v{vM}")
    I(f"v_lshl_add_u32 v{vf}, v{vG}, 3, v{vf}")
    I(f"s_lshl_b32 s48, s{sW}, 9")
    I(f"s_add_u32 s48, s48, s{sS1}")
    I(f"s_lshl_b32 s48, s48, 10")
    I(f"s_lshl_b32 s49, s{sJ}, 5")
    I(f"s_add_u32 s48, s48, s49")
    I = A.I
    nT = len(T.units())
    interleave(A, T, L2, int(os.environ.get("K3EV", "8")))
    ST.stamp()
    for ks in range(4):
        for a_ in ([1, 2, 3, 0] if ks == 3 else range(4)):
            for e in range(4):
                c_ = acc[a_][e]
                I(f"v_mfma_f32_16x16x32_bf16 a[{c_}:{c_+3}], a[{bf[ks][e]}:{bf[ks][e]+3}], a[{af[ks][a_]}:{af[ks][a_]+3}], a[{c_}:{c_+3}]")
            if ks == 3 and a_ in (2, 3, 0):
                pa = {2: 1, 3: 2, 0: 3}[a_]
                for e in range(4):
                    c_ = acc[pa][e]
                    I(f"ds_write_b128 v{t0}, a[{c_}:{c_+3}] offset:{(pa-1)*4096 + e*1024}")
    ST.stamp()
    own = [P.alloc(4, 4) for e in range(4)]
    for e in range(4):
        for i in range(4): I(f"v_accvgpr_read_b32 v{own[e]+i}, a{acc[0][e]+i}")
    A.barrier()
    rd = [[P.alloc(4, 4) for _ in range(3)] for e in range(4)]
    for e in range(4):
        for a_ in range(1, 4):
            c_ = rd[e][a_-1]
            I(f"ds_read_b128 v[{c_}:{c_+3}], v{t1+a_-1} offset:{(a_-1)*4096 + e*1024}")
    for e in range(4):
        for i in range(4):
            I(f"v_add_f32 v{own[e]+i}, v{own[e]+i}, v{rd[e][0]+i}")
            I(f"v_add_f32 v{rd[e][1]+i}, v{rd[e][1]+i}, v{rd[e][2]+i}")
        for i in range(4): I(f"v_add_f32 v{own[e]+i}, v{own[e]+i}, v{rd[e][1]+i}")
        o_ = rd[e][0]
        I(f"v_cvt_pk_bf16_f32 v{o_}, v{own[e]}, v{own[e]+1}")
        I(f"v_cvt_pk_bf16_f32 v{o_+1}, v{own[e]+2}, v{own[e]+3}")
        I(f"buffer_store_dwordx2 v[{o_}:{o_+1}], v{vf}, s[{OUT_}:{OUT_+3}], s48 offen offset:{256*e}")
    ST.stamp(); ST.dump(sW, WS_)
    A.label("K3_END")
    I("s_endpgm")
    return A.text(), P.hi, PA.hi, A.ninst

if __name__ == "__main__":
    t, vg, ag, n = gen_k3(); print(vg, ag, n)
```

```python
from common_k import *
import struct
def f32(x): return hex(struct.unpack('<I', struct.pack('<f', x))[0])

LDS_B = 0
LDS_X = 98304
K1_LDS = 163840
K1_THREADS = 768
SC = "sc1"
sJ, sT, sS1, sC0, sW = 16, 17, 18, 19, 20
X_, WQ_, WR_, WI_, GW_, WS_ = 24, 28, 32, 36, 40, 44
vG, vM = 1, 2

def gen_loader(A, ST):
    I = A.I
    P = Pool('v', 3, 168)
    sL = 21
    I(f"s_sub_u32 s{sL}, s{sW}, 8")
    t0, t1, t2, t3 = [P.alloc() for _ in range(4)]
    vx = [P.alloc() for _ in range(4)]; vb = [P.alloc() for _ in range(4)]
    I(f"v_xor_b32 v{t0}, v{vG}, v{vM}")
    I(f"v_lshlrev_b32 v{t0}, 4, v{t0}")
    I(f"v_lshl_add_u32 v{vx[0]}, v{vG}, 15, v{t0}")
    I(f"s_lshl_b32 s56, s{sS1}, 10")
    I(f"s_lshl_b32 s57, s{sL}, 19")
    I(f"s_add_u32 s56, s56, s57")
    I(f"s_lshl_b32 s59, s{sL}, 12")
    I(f"s_add_u32 s57, s59, {LDS_X}")
    for i in range(1, 4):
        I(f"v_xor_b32 v{vx[i]}, {64*i}, v{vx[0]}")
        I(f"v_add_u32 v{vx[i]}, {i*131072 - 1024*i}, v{vx[i]}")
    srd(A, X_, 4, 2097152)
    def issue_x(ci, tag):
        I(f"s_add_u32 s48, s{sC0}, {ci}")
        I(f"s_and_b32 s48, s48, 3")
        I(f"s_lshl_b32 s49, s48, 8")
        I(f"s_add_u32 s49, s49, s56")
        I(f"s_lshl_b32 s50, s48, 14")
        I(f"s_add_u32 m0, s50, s57")
        for i in range(4):
            I(f"buffer_load_dwordx4 v{vx[i]}, s[{X_}:{X_+3}], s49 offen offset:{1024*i} lds", tag=tag)
    for ci in range(4): issue_x(ci, 'cx')
    I(f"v_lshrrev_b32 v{t1}, 1, v{vM}")
    I(f"v_xor_b32 v{t0}, v{vG}, v{t1}")
    I(f"v_lshrrev_b32 v{t1}, 2, v{t0}")
    I(f"v_and_b32 v{t0}, 3, v{t0}")
    I(f"v_lshlrev_b32 v{t0}, 5, v{t0}")
    I(f"v_and_b32 v{t2}, 1, v{vM}")
    I(f"v_lshl_add_u32 v{t0}, v{t2}, 4, v{t0}")
    I(f"v_mul_u32_u24 v{t2}, 3072, v{vG}")
    I(f"v_add_u32 v{t0}, v{t0}, v{t2}")
    I(f"v_lshl_add_u32 v{t2}, v{t1}, 10, v{t0}")
    I(f"v_xor_b32 v{t1}, 1, v{t1}")
    I(f"v_lshl_add_u32 v{t3}, v{t1}, 10, v{t0}")
    for i in range(4):
        I(f"v_add_u32 v{vb[i]}, {1024 + 4*i*3072 - 1024*i}, v{t2 if i < 2 else t3}")
    srd(A, WQ_, 6, 1572864)
    I(f"s_mul_i32 s58, s{sL}, {16*3072}")
    I(f"s_lshl_b32 s60, s{sJ}, 7")
    I(f"s_add_u32 s58, s58, s60")
    def issue_b(ci, tag, lo=0, hi=2):
        for g_ in range(lo, hi):
            if g_ == 0:
                I(f"s_add_u32 s48, s{sC0}, {ci}")
                I(f"s_and_b32 s48, s48, 3")
                I(f"s_mul_i32 s60, s48, {128*3072}")
                I(f"s_add_u32 s60, s60, s58")
            else:
                I(f"s_add_u32 s60, s60, {64*3072}")
            I(f"s_add_u32 m0, s59, {LDS_B + 32768*(ci % 3) + 16384*g_}")
            for i in range(4):
                I(f"buffer_load_dwordx4 v{vb[i]}, s[{WQ_}:{WQ_+3}], s60 offen offset:{1024*i} lds", tag=tag)
    def sync(tag):
        A.wait_vm_tag(tag); A.barrier(); ST.stamp()
    srd(A, WS_, 14, WS_BYTES)
    srd(A, GW_, 12, 1024)
    gwr = P.alloc(8, 4); xr = P.alloc(8, 4); gl = P.alloc(8); pl = P.alloc(8); ph = P.alloc(8)
    I(f"v_and_b32 v{t0}, 31, v0")
    I(f"v_lshlrev_b32 v{t0}, 5, v{t0}")
    for k in range(2):
        I(f"buffer_load_dwordx4 v[{gwr+4*k}:{gwr+4*k+3}], v{t0}, s[{GW_}:{GW_+3}], 0 offen offset:{16*k}")
    issue_b(0, 'c0')
    issue_b(1, 'c1', 0, 1)
    sync('cx')
    issue_b(1, 'c1', 1, 2); issue_b(2, 'c2', 0, 1)
    sync('c0')
    issue_b(2, 'c2', 1, 2)
    sync('c1')
    issue_b(3, 'c3a', 0, 1); issue_b(3, 'c3b', 1, 2)
    WT = WTask(A, sL, 128, 136, 160, 161, (162, 163, 164, 165))
    WT.o = 144
    vq_ = list(A.vmq)
    WT.issue()
    A.vmq = vq_

    I(f"s_lshl_b32 s48, s{sJ}, 3")
    I(f"s_lshl_b32 s49, s{sL}, 1")
    I(f"s_add_u32 s48, s48, s49")
    I(f"v_lshrrev_b32 v{t0}, 5, v0")
    I(f"v_add_u32 v{t0}, s48, v{t0}")
    I(f"v_and_b32 v{t1}, 7, v0")
    I(f"v_lshlrev_b32 v{t1}, 1, v{t1}")
    I(f"v_and_b32 v{t2}, 15, v{t0}")
    I(f"v_xor_b32 v{t1}, v{t1}, v{t2}")
    I(f"v_lshlrev_b32 v{t1}, 4, v{t1}")
    I(f"v_lshl_add_u32 v{t1}, v{t0}, 8, v{t1}")
    I(f"v_bfe_u32 v{t2}, v0, 3, 2")
    I(f"v_lshl_add_u32 v{t1}, v{t2}, 14, v{t1}")
    I(f"v_add_u32 v{vx[0]}, {LDS_X}, v{t1}")
    I(f"v_xor_b32 v{vx[1]}, 16, v{vx[0]}")
    sacc, ones = P.alloc(), P.alloc()
    I(f"v_mov_b32 v{sacc}, 0")
    I(f"v_mov_b32 v{ones}, 0x3f803f80")
    for i in range(8):
        I(f"v_mov_b32 v{pl+i}, 0"); I(f"v_mov_b32 v{ph+i}, 0")
    I(f"s_lshl_b32 s48, s{sS1}, 8")
    I(f"s_add_u32 s48, s48, {OFF_G}")
    I(f"v_lshlrev_b32 v{t0}, 2, v{t0}")
    for k in range(2): I(f"ds_read_b128 v[{xr+4*k}:{xr+4*k+3}], v{vx[k]}")
    for i in range(8):
        I(f"v_and_b32 v{gl+i}, 0xffff, v{gwr+i}")
        I(f"v_and_b32 v{gwr+i}, 0xffff0000, v{gwr+i}")
    for i in range(8):
        I(f"v_dot2c_f32_bf16 v{pl+i}, v{xr+i}, v{gl+i}")
        I(f"v_dot2c_f32_bf16 v{ph+i}, v{xr+i}, v{gwr+i}")
    for i in range(8): I(f"v_cvt_pk_bf16_f32 v{pl+i}, v{pl+i}, v{ph+i}")
    for i in range(8): I(f"v_dot2c_f32_bf16 v{sacc}, v{pl+i}, v{ones}")
    for sh in (8, 4, 2, 1):
        I(f"v_add_f32_dpp v{sacc}, v{sacc}, v{sacc} row_ror:{sh} row_mask:0xf bank_mask:0xf")
    I(f"v_mov_b32 v{t1}, v{sacc}")
    I(f"v_permlane16_swap_b32 v{sacc}, v{t1}")
    I(f"v_add_f32 v{sacc}, v{sacc}, v{t1}")
    I(f"v_cvt_pk_bf16_f32 v{sacc}, v{sacc}, v{sacc}")
    I(f"v_lshlrev_b32 v{sacc}, 16, v{sacc}")
    I(f"v_mul_f32 v{sacc}, 0xbfb8aa3b, v{sacc}")
    I(f"v_exp_f32 v{sacc}, v{sacc}")
    I(f"v_add_f32 v{sacc}, 1.0, v{sacc}")
    I(f"v_rcp_f32 v{sacc}, v{sacc}")
    I(f"v_cvt_pk_bf16_f32 v{sacc}, v{sacc}, v{sacc}")
    I(f"v_lshlrev_b32 v{sacc}, 16, v{sacc}")
    I("s_mov_b32 s50, 1"); I("s_mov_b32 s51, 1")
    def sync2(tag):
        idx = [i for i, e in enumerate(A.vmq) if e[1] == tag][-1]
        n = len(A.vmq) - 1 - idx
        I(f"s_cmp_ge_u32 s68, 528")
        A.raw(f"    s_cbranch_scc1 K1_S2A_{tag}")
        A.raw(f"    s_waitcnt vmcnt({n + 6})")
        A.raw(f"    s_branch K1_S2B_{tag}")
        A.raw(f"K1_S2A_{tag}:")
        A.raw(f"    s_waitcnt vmcnt({n})")
        A.raw(f"K1_S2B_{tag}:")
        A.vmq = A.vmq[idx+1:]
        A.barrier(); ST.stamp()
    sync2('c2'); sync2('c3a'); sync2('c3b')
    I("s_mov_b64 exec, s[50:51]")
    I(f"buffer_store_dword v{sacc}, v{t0}, s[{WS_}:{WS_+3}], s48 offen")
    I("s_mov_b64 exec, -1")
    A.raw("    s_waitcnt vmcnt(1)")
    WT.finish()
    if int(os.environ.get("PREF", "1")):
        vq_ = list(A.vmq)
        pf = 100
        I(f"s_lshr_b32 s48, s2, 3")
        I(f"s_lshl_b32 s49, s48, 2")
        I(f"s_add_u32 s49, s49, s{sL}")
        I(f"s_mul_i32 s49, s49, {4*3072}")
        I(f"s_lshr_b32 s50, s{sJ}, 2")
        I(f"s_lshl_b32 s50, s50, 9")
        I(f"s_add_u32 s49, s49, s50")
        I(f"v_lshrrev_b32 v{t1}, 5, v0")
        I(f"v_mul_u32_u24 v{t1}, 3072, v{t1}")
        I(f"v_and_b32 v{t2}, 31, v0")
        I(f"v_lshl_add_u32 v{t1}, v{t2}, 4, v{t1}")
        I(f"s_add_u32 s50, s49, {2*3072}")
        I(f"buffer_load_dwordx4 v[{pf}:{pf+3}], v{t1}, s[{WQ_}:{WQ_+3}], s49 offen")
        I(f"buffer_load_dwordx4 v[{pf+4}:{pf+7}], v{t1}, s[{WQ_}:{WQ_+3}], s50 offen")
        I(f"v_lshlrev_b32 v{t2}, 4, v0")
        I(f"s_lshl_b32 s49, s48, 2")
        I(f"s_add_u32 s49, s49, s{sL}")
        I(f"s_cmp_ge_u32 s49, (GM_CODE_END - gm_k2_kernel) / 1024")
        I("s_cbranch_scc1 K1_NOCODE")
        A.raw("    s_getpc_b64 s[50:51]")
        A.raw("K1_PC:")
        I(f"s_lshl_b32 s49, s49, 10")
        I(f"s_add_u32 s49, s49, gm_k2_kernel - K1_PC")
        I(f"s_add_u32 s50, s50, s49")
        I(f"s_addc_u32 s51, s51, 0")
        I(f"global_load_dwordx4 v[{pf+8}:{pf+11}], v{t2}, s[50:51]")
        A.raw("K1_NOCODE:")
        I(f"s_sub_u32 s49, s2, 160")
        I(f"s_cmp_ge_u32 s49, 16")
        I("s_cbranch_scc1 K1_NOWO")
        I("s_load_dwordx2 s[50:51], s[0:1], 16")
        I(f"s_lshl_b32 s49, s49, 15")
        I(f"s_lshl_b32 s48, s{sL}, 13")
        I(f"s_add_u32 s49, s49, s48")
        srd(A, 72, 50, 524288)
        I(f"s_add_u32 s48, s49, 4096")
        for k in range(8):
            I(f"buffer_load_dwordx4 v[{pf+12}:{pf+15}], v{t2}, s[72:75], s{49 if k < 4 else 48} offen offset:{1024*(k&3)}") if k == 0 else A.raw(f"    buffer_load_dwordx4 v[{pf+12}:{pf+15}], v{t2}, s[72:75], s{49 if k < 4 else 48} offen offset:{1024*(k&3)}")
        A.raw("K1_NOWO:")
        A.vmq = vq_
    ST.dump(sW, WS_)
    I("s_endpgm")
    return P.hi

def gen_gemm(A, ST):
    I = A.I
    P = Pool('v', 3, 56)
    vl2 = P.alloc()
    t0, t1, t2, t3 = [P.alloc() for _ in range(4)]
    srd(A, WS_, 14, WS_BYTES)
    if int(os.environ.get("DPF", "1")):
        srd(A, X_, 4, 2097152)
        srd(A, WQ_, 6, 1572864)
        I(f"s_lshr_b32 s48, s2, 3")
        I(f"s_lshl_b32 s48, s48, 1")
        I(f"s_and_b32 s49, s{sW}, 1")
        I(f"s_add_u32 s48, s48, s49")
        I(f"s_cmp_ge_u32 s{sW}, 2")
        I("s_cbranch_scc1 K1_DPF2")
        I(f"s_lshl_b32 s48, s48, 15")
        I(f"s_and_b32 s49, s{sS1}, 24")
        I(f"s_lshl_b32 s49, s49, 10")
        I(f"s_add_u32 s48, s48, s49")
        I(f"v_lshlrev_b32 v{t0}, 7, v0")
        A.raw(f"    buffer_load_dword v53, v{t0}, s[{X_}:{X_+3}], s48 offen sc1")
        I("s_branch K1_DPF3")
        A.raw("K1_DPF2:")
        I(f"s_mul_i32 s48, s48, {8*3072}")
        I(f"s_lshr_b32 s49, s{sJ}, 2")
        I(f"s_lshl_b32 s49, s49, 9")
        I(f"s_add_u32 s48, s48, s49")
        I(f"v_lshrrev_b32 v{t0}, 3, v0")
        I(f"v_mul_u32_u24 v{t0}, 3072, v{t0}")
        I(f"v_bfe_u32 v{t1}, v0, 2, 1")
        I(f"v_lshl_add_u32 v{t0}, v{t1}, 10, v{t0}")
        I(f"v_and_b32 v{t1}, 3, v0")
        I(f"v_lshl_add_u32 v{t0}, v{t1}, 7, v{t0}")
        A.raw(f"    buffer_load_dword v53, v{t0}, s[{WQ_}:{WQ_+3}], s48 offen offset:1024 sc1")
        A.raw("K1_DPF3:")
    P2 = Pool('v', 56, 168)
    aaddr = [P2.alloc() for _ in range(4)]
    baddr = [P2.alloc() for _ in range(2)]
    I(f"s_lshl_b32 s48, s{sC0}, 14")
    I(f"s_add_u32 s48, s48, {LDS_X}")
    I(f"v_lshl_add_u32 v{t0}, v{vM}, 8, s48")
    I(f"v_xor_b32 v{t1}, v{vG}, v{vM}")
    I(f"v_lshl_add_u32 v{aaddr[0]}, v{t1}, 4, v{t0}")
    for ks in range(1, 4): I(f"v_xor_b32 v{aaddr[ks]}, {64*ks}, v{aaddr[0]}")
    I(f"v_bfe_u32 v{t0}, v0, 2, 2")
    I(f"v_and_b32 v{t1}, 1, v{vG}")
    I(f"v_lshl_or_b32 v{t1}, v{t1}, 2, v{t0}")
    I(f"v_xor_b32 v{t1}, s{sW}, v{t1}")
    I(f"v_lshl_add_u32 v{t0}, v{vG}, 3, v{t0}")
    I(f"v_lshlrev_b32 v{t0}, 8, v{t0}")
    I(f"v_lshl_add_u32 v{t0}, v{t1}, 5, v{t0}")
    I(f"v_and_b32 v{t1}, 3, v0")
    I(f"v_lshl_add_u32 v{baddr[0]}, v{t1}, 3, v{t0}")
    I(f"v_xor_b32 v{baddr[1]}, 0x80, v{baddr[0]}")
    acc = [[P2.alloc(4, 4) for seg in range(2)] for mt in range(4)]
    af = [[P2.alloc(4, 4) for mt in range(4)] for _ in range(3)]
    bf = [[P2.alloc(4, 4) for seg in range(2)] for _ in range(3)]
    pkq = [P.alloc(4, 4), P.alloc(4, 4)]; vq = [P.alloc(4, 4), P.alloc(4, 4)]; ones = P.alloc(4, 4)
    kvacc, zacc = P.alloc(4, 4), P.alloc(4, 4)
    vL2E, vza = P.alloc(), P.alloc()
    tt = [P.alloc() for _ in range(8)]
    for i in range(4): I(f"v_mov_b32 v{ones+i}, 0x3f803f80")
    I(f"v_mov_b32 v{vL2E}, {hex(LOG2E)}")
    I(f"s_lshl_b32 s48, s{sJ}, 2")
    I(f"s_add_u32 s48, s48, s{sW}")
    I(f"s_lshl_b32 s52, s48, 15")
    I(f"s_lshl_b32 s50, s{sS1}, 10")
    I(f"s_add_u32 s52, s52, s50")
    I(f"s_add_u32 s52, s52, {OFF_KVP}")
    I(f"s_lshl_b32 s51, s{sS1}, 11")
    I(f"s_lshl_b32 s50, s48, 6")
    I(f"s_add_u32 s51, s51, s50")
    I(f"s_add_u32 s51, s51, {OFF_ZP}")
    I(f"v_lshlrev_b32 v{vl2}, 4, v0")
    I(f"v_lshlrev_b32 v{vza}, 2, v{vM}")
    def read_list(gs):
        ks, buf = gs & 3, gs % 3
        L_ = []
        for seg in range(2):
            for half in range(2):
                L_.append(f"ds_read_b64_tr_b16 v[{bf[buf][seg]+2*half}:{bf[buf][seg]+2*half+1}], v{baddr[seg]} offset:{ks*8192+half*1024}")
        for mt in range(4):
            L_.append(f"ds_read_b128 v[{af[buf][mt]}:{af[buf][mt]+3}], v{aaddr[ks]} offset:{mt*4096}")
        return L_
    def mfma_list(gs):
        buf = gs % 3
        L_ = []
        for mt in range(4):
            for seg in range(2):
                c = acc[mt][seg]
                cs = "0" if gs == 0 else f"v[{c}:{c+3}]"
                L_.append(f"v_mfma_f32_16x16x32_bf16 v[{c}:{c+3}], v[{af[buf][mt]}:{af[buf][mt]+3}], v[{bf[buf][seg]}:{bf[buf][seg]+3}], {cs}")
        return L_
    def mfmas(gs):
        for x_ in mfma_list(gs): I(x_)
    def advance(ci):
        I(f"s_add_u32 s48, s{sC0}, {ci+1}")
        I(f"s_and_b32 s48, s48, 3")
        I(f"s_cmp_eq_u32 s48, 0")
        I(f"s_movk_i32 s49, 16384")
        I(f"s_cselect_b32 s48, {hex(-49152 & 0xffffffff)}, s49")
        for ks in range(4): I(f"v_add_u32 v{aaddr[ks]}, s48, v{aaddr[ks]}")
        d = 32768 if ci < 2 else (-65536 & 0xffffffff)
        for seg in range(2): I(f"v_add_u32 v{baddr[seg]}, {hex(d)}, v{baddr[seg]}")
    ST.stamp()
    A.barrier()
    done = 0
    for gs in range(16):
        if gs & 3 == 0 or gs == 14:
            if gs in (14,):
                while done < gs: mfmas(done); done += 1
            if gs & 3 == 0 and gs: advance((gs >> 2) - 1)
            A.barrier()
            if gs & 3 == 0: ST.stamp()
        rl = read_list(gs)
        if done <= gs - 2:
            ml = mfma_list(done); done += 1
            for r_, m_ in zip(rl, ml): I(m_); I(r_)
        else:
            for r_ in rl: I(r_)
    while done < 15: mfmas(done); done += 1
    ST.stamp()
    def last_mfma(mt):
        buf = 15 % 3
        for seg in range(2):
            c = acc[mt][seg]
            I(f"v_mfma_f32_16x16x32_bf16 v[{c}:{c+3}], v[{af[buf][mt]}:{af[buf][mt]+3}], v[{bf[buf][seg]}:{bf[buf][seg]+3}], v[{c}:{c+3}]")
    last_mfma(0); last_mfma(1); last_mfma(2); last_mfma(3)
    for mt in range(4):
        k0 = acc[mt][0]; v0_ = acc[mt][1]
        for pr in range(2):
            I(f"v_cvt_pk_bf16_f32 v{tt[pr]}, v{k0+2*pr}, v{k0+2*pr+1}")
            I(f"v_cvt_pk_bf16_f32 v{vq[mt>>1] + 2*(mt&1) + pr}, v{v0_+2*pr}, v{v0_+2*pr+1}")
        for pr in range(2):
            I(f"v_lshlrev_b32 v{k0+2*pr}, 16, v{tt[pr]}")
            I(f"v_and_b32 v{k0+2*pr+1}, 0xffff0000, v{tt[pr]}")
        for i in range(4): I(f"v_mul_f32 v{tt[4+i]}, v{vL2E}, v{k0+i}")
        for i in range(4): I(f"v_exp_f32 v{tt[4+i]}, v{tt[4+i]} clamp")
        for i in range(4): I(f"v_max_f32 v{k0+i}, 0x358637bd, v{k0+i}")
        for i in range(4): I(f"v_add_f32 v{k0+i}, v{k0+i}, v{tt[4+i]}")
        for pr in range(2):
            I(f"v_cvt_pk_bf16_f32 v{pkq[mt>>1] + 2*(mt&1) + pr}, v{k0+2*pr}, v{k0+2*pr+1}")
        if mt & 1:
            h2 = mt >> 1
            cs = "0" if h2 == 0 else f"v[{kvacc}:{kvacc+3}]"
            cz = "0" if h2 == 0 else f"v[{zacc}:{zacc+3}]"
            I(f"v_mfma_f32_16x16x32_bf16 v[{kvacc}:{kvacc+3}], v[{vq[h2]}:{vq[h2]+3}], v[{pkq[h2]}:{pkq[h2]+3}], {cs}")
            I(f"v_mfma_f32_16x16x32_bf16 v[{zacc}:{zacc+3}], v[{ones}:{ones+3}], v[{pkq[h2]}:{pkq[h2]+3}], {cz}")
    I(f"buffer_store_dwordx4 v[{kvacc}:{kvacc+3}], v{vl2}, s[{WS_}:{WS_+3}], s52 offen {SC}")
    I("s_mov_b64 exec, 0xffff")
    I(f"buffer_store_dword v{zacc}, v{vza}, s[{WS_}:{WS_+3}], s51 offen {SC}")
    ST.stamp()
    ST.dump(sW, WS_)
    I("s_endpgm")
    return max(P.hi, P2.hi)

class WTask:
    def __init__(self, A, sH, R_, Iq, orr, oii, temps):
        self.A, self.sH = A, sH
        self.R_, self.Iq, self.orr, self.oii = R_, Iq, orr, oii
        self.t0, self.t1, self.t2, self.t3 = temps
    def issue(self):
        A = self.A; I = A.I; sH = self.sH
        R_, Iq, orr, oii, t0, t1, t2, t3 = self.R_, self.Iq, self.orr, self.oii, self.t0, self.t1, self.t2, self.t3
        srd(A, WR_, 8, 1052672)
        srd(A, WI_, 10, 1052672)
        I(f"s_lshl_b32 s68, s2, 1")
        I(f"s_add_u32 s68, s68, s{sH}")
        I(f"s_add_u32 s49, s2, 512")
        I(f"s_cmp_eq_u32 s{sH}, 2")
        I(f"s_cselect_b32 s68, s49, s68")
        I(f"s_cmp_eq_u32 s{sH}, 3")
        I(f"s_cselect_b32 s68, 1024, s68")
        I(f"s_cmp_ge_u32 s68, 528")
        A.wait_lg_all()
        I("s_cbranch_scc1 K1_WISSUED")
        I(f"s_lshr_b32 s49, s68, 1")
        I(f"s_lshr_b32 s50, s49, 3")
        I(f"s_and_b32 s51, s49, 7")
        I(f"s_lshl_b32 s51, s51, 8")
        I(f"s_add_u32 s50, s50, s51")
        I(f"v_lshl_add_u32 v{t0}, v{vG}, 6, s50")
        I(f"v_sub_u32 v{t1}, 2048, v{t0}")
        I(f"v_and_b32 v{t1}, 2047, v{t1}")
        I(f"v_mul_u32_u24 v{t0}, 514, v{t0}")
        I(f"v_mul_u32_u24 v{t1}, 514, v{t1}")
        I(f"s_lshl_b32 s69, s49, 13")
        I(f"s_add_u32 s69, s69, {OFF_WEFF}")
        I(f"v_lshlrev_b32 v{t3}, 5, v{vM}")
        I(f"v_add_u32 v{t2}, v{t0}, v{t3}")
        I(f"v_sub_u32 v{t3}, v{t1}, v{t3}")
        I(f"v_add_u32 v{t3}, 482, v{t3}")
        I(f"v_add_u32 v{t0}, 512, v{t0}")
        I(f"s_bitcmp1_b32 s68, 0")
        I(f"s_cselect_b64 s[70:71], -1, 0")
        I(f"v_cndmask_b32 v{t2}, v{t2}, v{t3}, s[70:71]")
        I(f"v_cndmask_b32 v{t1}, v{t1}, v{t0}, s[70:71]")
        for k in range(2):
            I(f"buffer_load_dwordx4 v[{R_+4*k}:{R_+4*k+3}], v{t2}, s[{WR_}:{WR_+3}], 0 offen offset:{16*k}")
            I(f"buffer_load_dwordx4 v[{Iq+4*k}:{Iq+4*k+3}], v{t2}, s[{WI_}:{WI_+3}], 0 offen offset:{16*k}")
        I(f"buffer_load_ushort v{orr}, v{t1}, s[{WR_}:{WR_+3}], 0 offen")
        I(f"buffer_load_ushort v{oii}, v{t1}, s[{WI_}:{WI_+3}], 0 offen")
        A.drain_hazards()
        A.label("K1_WISSUED")
    def finish(self):
        A = self.A; I = A.I
        R_, Iq, o, orr, oii, t0, t1, t2, t3 = self.R_, self.Iq, self.o, self.orr, self.oii, self.t0, self.t1, self.t2, self.t3
        I(f"s_cmp_ge_u32 s68, 528")
        A.drain_hazards()
        I("s_cbranch_scc1 K1_WDONE")
        I(f"v_lshlrev_b32 v{t3}, 11, v{vG}")
        I(f"v_lshl_add_u32 v{t3}, v{vM}, 4, v{t3}")
        I("s_mov_b32 s72, 0x05040100"); I("s_mov_b32 s73, 0x07060302")
        I("s_mov_b32 s74, 0x00010001"); I("s_mov_b32 s75, 0x00010001")
        I(f"s_bitcmp1_b32 s68, 0")
        I("s_cbranch_scc1 K1_WMIR")
        for mir in range(2):
            if mir: A.label("K1_WMIR")
            if mir:
                for k in range(8): I(f"v_xor_b32 v{Iq+k}, 0x80008000, v{Iq+k}")
            for c in range(16):
                tq = 15 - c if mir else c
                I(f"v_perm_b32 v{o + 4*(c&3) + (c>>2)}, v{Iq+(tq>>1)}, v{R_+(tq>>1)}, s{72+(tq&1)}")
            I("s_mov_b64 exec, s[74:75]")
            I(f"v_lshlrev_b32 v{t0}, 16, v{o}")
            I(f"v_and_b32 v{t1}, 0xffff0000, v{o}")
            I(f"v_lshlrev_b32 v{orr}, 16, v{orr}")
            I(f"v_lshlrev_b32 v{oii}, 16, v{oii}")
            I(f"v_add_f32 v{t0}, v{t0}, v{orr}")
            I(f"v_add_f32 v{t1}, v{t1}, v{oii}" if mir else f"v_sub_f32 v{t1}, v{t1}, v{oii}")
            I(f"v_mul_f32 v{t0}, 0.5, v{t0}")
            I(f"v_mul_f32 v{t1}, 0.5, v{t1}")
            I(f"v_cvt_pk_bf16_f32 v{o}, v{t0}, v{t1}")
            I("s_mov_b64 exec, -1")
            for k4 in range(4):
                I(f"buffer_store_dwordx4 v[{o+4*k4}:{o+4*k4+3}], v{t3}, s[{WS_}:{WS_+3}], s69 offen offset:{512*k4 + 256*mir} {SC}")
            A.nop(2)
            A.drain_hazards()
            if not mir: I("s_branch K1_WDONE")
        A.label("K1_WDONE")

def gen_fft(A, ST):
    I = A.I
    P = Pool('v', 3, 168)
    sH = 21
    I(f"s_sub_u32 s{sH}, s{sW}, 4")
    t0, t1, t2, t3 = [P.alloc() for _ in range(4)]
    kA, kB = P.alloc(), P.alloc()
    split_consts(A, kA, kB)
    srd(A, WS_, 14, WS_BYTES)
    tr1 = [[P.alloc(4, 4) for hl in range(2)] for u in range(2)]
    cv = P.alloc(8, 4)
    vP0, vP1, vK, vSg = P.alloc(), P.alloc(), P.alloc(), P.alloc()
    I(f"v_lshrrev_b32 v{t0}, 1, v{vM}")
    I(f"s_lshl_b32 s53, s{sH}, 3")
    I(f"v_add_u32 v{t0}, s53, v{t0}")
    I(f"v_and_b32 v{t1}, 1, v{vM}")
    I(f"v_mul_u32_u24 v{vP0}, s{sS1}, v{t0}")
    I(f"v_lshl_add_u32 v{vP0}, v{t1}, 9, v{vP0}")
    I(f"v_lshlrev_b32 v{vP1}, 5, v{t0}")
    I(f"v_and_b32 v{vSg}, 1, v{t0}")
    I(f"v_mul_u32_u24 v{vSg}, 0x8000, v{vSg}")
    I(f"v_lshl_or_b32 v{vSg}, v{vSg}, 16, v{vSg}")
    I(f"s_cmp_eq_u32 s{sH}, 0")
    I(f"s_cselect_b32 s54, 0x00020002, 0")
    I(f"s_mov_b32 s55, s54")
    I(f"s_mov_b64 exec, s[54:55]")
    I(f"v_mov_b32 v{vP1}, 1024")
    I(f"v_mov_b32 v{vP0}, 0")
    I(f"s_mov_b64 exec, -1")
    I(f"v_lshlrev_b32 v{t0}, 3, v{vG}")
    I(f"v_mad_u32_u24 v{vP0}, v{t0}, v{vP1}, v{vP0}")
    I(f"v_cvt_f32_u32 v{vP0}, v{vP0}")
    I(f"v_cvt_f32_u32 v{vP1}, v{vP1}")
    I(f"v_mul_f32 v{vP0}, 0x3a000000, v{vP0}")
    I(f"v_mul_f32 v{vP1}, 0x3a000000, v{vP1}")
    I(f"v_add_f32 v{t0}, v{vP0}, v{vP1}")
    I(f"v_cos_f32 v{vK}, v{vP1}")
    I(f"v_cos_f32 v{cv}, v{vP0}")
    I(f"v_cos_f32 v{cv+1}, v{t0}")
    I(f"v_add_f32 v{vK}, v{vK}, v{vK}")
    for j_ in range(2, 8): I(f"v_fma_f32 v{cv+j_}, v{vK}, v{cv+j_-1}, -v{cv+j_-2}")
    split_many(A, [(tr1[0][0] + pr, tr1[0][1] + pr, cv + 2*pr, cv + 2*pr + 1, None, None) for pr in range(4)], kA, kB)
    for hl in range(2):
        for pr in range(4): I(f"v_xor_b32 v{tr1[1][hl]+pr}, v{vSg}, v{tr1[0][hl]+pr}")
    tr2 = [[P.alloc(4, 4) for cs in range(2)] for e in range(4)]
    cd, sd, rc, rs = P.alloc(), P.alloc(), P.alloc(), P.alloc()
    cs8 = P.alloc(8, 4)
    ce = [cs8 + k for k in range(4)]; se = [cs8 + 4 + k for k in range(4)]
    c1 = [cv + e for e in range(4)]; s1_ = [cv + 4 + e for e in range(4)]
    I(f"s_lshl_b32 s53, s{sJ}, 2")
    I(f"v_lshl_add_u32 v{t0}, v{vG}, 5, s53")
    I(f"v_mul_u32_u24 v{vP0}, v{t0}, v{vM}")
    I(f"v_cvt_f32_u32 v{vP0}, v{vP0}")
    I(f"v_mul_f32 v{vP0}, 0x3b000000, v{vP0}")
    I(f"v_cvt_f32_u32 v{vP1}, v{vM}")
    I(f"v_mul_f32 v{t0}, 0x3e800000, v{vP1}")
    I(f"v_mul_f32 v{vP1}, 0x3b000000, v{vP1}")
    I(f"v_cos_f32 v{ce[0]}, v{vP0}"); I(f"v_sin_f32 v{se[0]}, v{vP0}")
    I(f"v_cos_f32 v{cd}, v{vP1}"); I(f"v_sin_f32 v{sd}, v{vP1}")
    I(f"v_cos_f32 v{rc}, v{t0}"); I(f"v_sin_f32 v{rs}, v{t0}")
    I(f"v_rndne_f32 v{rc}, v{rc}"); I(f"v_rndne_f32 v{rs}, v{rs}")
    I(f"v_and_b32 v{vSg}, 1, v{vM}")
    I(f"v_mul_u32_u24 v{vSg}, 0x8000, v{vSg}")
    I(f"v_lshl_or_b32 v{vSg}, v{vSg}, 16, v{vSg}")
    for e in range(1, 4):
        I(f"v_mul_f32 v{t0}, v{se[e-1]}, v{sd}")
        I(f"v_mul_f32 v{t1}, v{ce[e-1]}, v{sd}")
        I(f"v_fma_f32 v{ce[e]}, v{ce[e-1]}, v{cd}, -v{t0}")
        I(f"v_fma_f32 v{se[e]}, v{se[e-1]}, v{cd}, v{t1}")
    for e in range(4):
        I(f"v_mul_f32 v{t0}, v{se[e]}, v{rs}")
        I(f"v_mul_f32 v{t1}, v{ce[e]}, v{rs}")
        I(f"v_fma_f32 v{c1[e]}, v{ce[e]}, v{rc}, -v{t0}")
        I(f"v_fma_f32 v{s1_[e]}, v{se[e]}, v{rc}, v{t1}")
    split_many(A, [(tr2[e][0], tr2[e][0] + 2, ce[e], c1[e], None, None) for e in range(4)] +
                  [(tr2[e][1], tr2[e][1] + 2, se[e], s1_[e], None, None) for e in range(4)], kA, kB)
    for e in range(4):
        for cs in range(2):
            I(f"v_xor_b32 v{tr2[e][cs]+1}, v{vSg}, v{tr2[e][cs]}")
            I(f"v_xor_b32 v{tr2[e][cs]+3}, v{vSg}, v{tr2[e][cs]+2}")
    a0, a1 = P.alloc(), P.alloc()
    I(f"v_bfe_u32 v{t0}, v0, 2, 2")
    I(f"v_lshl_add_u32 v{t0}, v{vG}, 3, v{t0}")
    I(f"v_and_b32 v{t1}, 3, v0")
    I(f"s_lshr_b32 s53, s{sJ}, 1")
    I(f"v_lshl_add_u32 v{t1}, v{t1}, 2, s53")
    I(f"v_and_b32 v{t2}, 15, v{t0}")
    I(f"v_xor_b32 v{t1}, v{t1}, v{t2}")
    I(f"v_lshlrev_b32 v{t1}, 4, v{t1}")
    I(f"v_lshl_add_u32 v{t1}, v{t0}, 8, v{t1}")
    I(f"s_and_b32 s53, s{sJ}, 1")
    I(f"s_lshl_b32 s53, s53, 3")
    I(f"s_add_u32 s53, s53, {LDS_X}")
    I(f"v_add_u32 v{a0}, s53, v{t1}")
    I(f"v_xor_b32 v{a1}, 64, v{a0}")
    vcs, vsn, vaddr, vaddr2 = cd, sd, rc, rs
    I(f"v_cvt_f32_u32 v{vcs}, s{sS1}")
    I(f"v_mul_f32 v{vcs}, 0x3c800000, v{vcs}")
    I(f"v_sin_f32 v{vsn}, v{vcs}")
    I(f"v_cos_f32 v{vcs}, v{vcs}")
    I(f"v_and_b32 v{t0}, 3, v0")
    I(f"v_lshlrev_b32 v{vaddr2}, 6, v{t0}")
    I(f"v_bfe_u32 v{t0}, v0, 2, 2")
    I(f"v_lshl_add_u32 v{vaddr2}, v{t0}, 4, v{vaddr2}")
    I(f"v_lshl_add_u32 v{vaddr}, v{vG}, 17, v{vaddr2}")
    I(f"s_lshl_b32 s62, s{sH}, 19")
    I(f"s_lshl_b32 s53, s{sS1}, 11")
    I(f"s_lshl_b32 s66, s{sJ}, 8")
    I(f"s_add_u32 s66, s66, s53")
    if OFF_T2: I(f"s_add_u32 s66, s66, {OFF_T2}")
    I(f"s_add_u32 s62, s62, s66")
    I(f"s_add_u32 s63, s62, {65536}")
    I(f"s_add_u32 s66, s66, {32*65536}")
    I(f"s_cmp_eq_u32 s{sH}, 0")
    I(f"s_cselect_b64 s[54:55], 0xffff, 0")
    ST.stamp()
    A.barrier()
    ST.stamp()
    F = Rec(); FI = F.I
    xa = [[P.alloc(4, 4) for u in range(2)] for tt in range(4)]
    d1 = [P.alloc(4, 4) for tt in range(4)]
    for tt in range(4):
        for u in range(2):
            FI(f"ds_read_b64_tr_b16 v[{xa[tt][u]}:{xa[tt][u]+1}], v{a0} offset:{tt*16384+u*8192}")
            FI(f"ds_read_b64_tr_b16 v[{xa[tt][u]+2}:{xa[tt][u]+3}], v{a1} offset:{tt*16384+u*8192+1024}")
    for tt in range(4):
        for u in range(2):
            for hl in range(2):
                cs = "0" if (u == 0 and hl == 0) else f"v[{d1[tt]}:{d1[tt]+3}]"
                FI(f"v_mfma_f32_16x16x32_bf16 v[{d1[tt]}:{d1[tt]+3}], v[{xa[tt][u]}:{xa[tt][u]+3}], v[{tr1[u][hl]}:{tr1[u][hl]+3}], {cs}")
    F.barrier()
    dh = [P.alloc(4, 4) for e in range(4)]; dl = [P.alloc(4, 4) for e in range(4)]
    pc = [xa[e][0] for e in range(4)]; ps = [xa[e][1] for e in range(4)]
    for eh in range(2):
        split_many(F, [(dh[e] + pr, dl[e] + pr, d1[2*pr] + e, d1[2*pr+1] + e, dh[e] + 2 + pr, dl[e] + 2 + pr) for e in (2*eh, 2*eh+1) for pr in range(2)], kA, kB)
        for e in (2*eh, 2*eh+1):
            for (acc_, cs_) in ((pc[e], 0), (ps[e], 1)):
                FI(f"v_mfma_f32_16x16x32_bf16 v[{acc_}:{acc_+3}], v[{dh[e]}:{dh[e]+3}], v[{tr2[e][cs_]}:{tr2[e][cs_]+3}], 0")
                FI(f"v_mfma_f32_16x16x32_bf16 v[{acc_}:{acc_+3}], v[{dl[e]}:{dl[e]+3}], v[{tr2[e][cs_]}:{tr2[e][cs_]+3}], v[{acc_}:{acc_+3}]")
        if eh == 1: F.barrier()
    rq = [tr1[0][0], tr1[0][1], tr1[1][0]]; iq = [tr1[1][1], d1[0], d1[1]]
    re = [[rq[ks2] + e for e in range(4)] for ks2 in range(3)]
    im = [[iq[ks2] + e for e in range(4)] for ks2 in range(3)]
    for e in range(4):
        for ks2 in range(2):
            FI(f"v_add_f32 v{re[ks2][e]}, v{pc[e]+2*ks2}, v{ps[e]+2*ks2+1}")
            FI(f"v_sub_f32 v{im[ks2][e]}, v{pc[e]+2*ks2+1}, v{ps[e]+2*ks2}")
    FI("s_mov_b64 exec, s[54:55]")
    for e in range(4):
        FI(f"v_mov_b32 v{re[0][e]}, v{pc[e]}")
        FI(f"v_xor_b32 v{im[0][e]}, 0x80000000, v{ps[e]}")
    FI("s_mov_b64 exec, -1")
    gr = [(dh[0], dh[1]), (dh[2], dh[3]), (dl[0], dl[1])]
    def granule(R, ks2):
        gh, gl = gr[ks2]
        for pr in range(2):
            R.I(f"v_cvt_pk_bf16_f32 v{gh+pr}, v{re[ks2][2*pr]}, v{re[ks2][2*pr+1]}")
            R.I(f"v_cvt_pk_bf16_f32 v{gh+2+pr}, v{im[ks2][2*pr]}, v{im[ks2][2*pr+1]}")
    for ks2 in range(2): granule(F, ks2)
    if int(os.environ.get("FLATE", "0")): F.barrier(); F.barrier(); F.barrier()
    for ks2 in range(2):
        gh, gl = gr[ks2]
        FI(f"buffer_store_dwordx4 v[{gh}:{gh+3}], v{vaddr}, s[{WS_}:{WS_+3}], s{62+ks2} offen {SC}")
    NOFFT = int(os.environ.get("NOFFT", "0"))
    for u in F.units():
        if NOFFT and not (u[0][0] == 'C'): continue
        play(A, u)
    ST.stamp()
    I(f"s_cmp_lg_u32 s{sH}, 0")
    A.drain_hazards()
    I("s_cbranch_scc1 K1_NOSP")
    for e in range(4):
        I(f"v_mul_f32 v{t2}, v{ps[e]+1}, v{vsn}")
        I(f"v_fma_f32 v{re[2][e]}, v{pc[e]+1}, v{vcs}, -v{t2}")
        I(f"v_mul_f32 v{t3}, v{ps[e]+1}, v{vcs}")
        I(f"v_fma_f32 v{im[2][e]}, -v{pc[e]+1}, v{vsn}, -v{t3}")
    granule(A, 2)
    I("s_mov_b64 exec, 0xffff")
    gh, gl = gr[2]
    I(f"buffer_store_dwordx4 v[{gh}:{gh+3}], v{vaddr2}, s[{WS_}:{WS_+3}], s66 offen {SC}")
    vmq_save = list(A.vmq)
    I("s_mov_b64 exec, -1")
    A.label("K1_NOSP")
    A.vmq = vmq_save
    ST.stamp()
    if STAMPS and not int(os.environ.get("FLATE", "0")): A.barrier(); A.barrier(); A.barrier()
    ST.dump(sW, WS_)
    return P.hi

def gen_k1():
    A = Asm(); I = A.I
    I("s_cmp_ge_u32 s2, 256")
    I("s_cbranch_scc1 K1_END")
    ST = Stamper(A, 0); ST.first()
    I("s_load_dwordx4 s[4:7], s[0:1], 0")
    I("s_load_dwordx4 s[8:11], s[0:1], 32")
    I("s_load_dwordx2 s[12:13], s[0:1], 48")
    I("s_load_dwordx2 s[14:15], s[0:1], 72")
    I("v_lshrrev_b32 v1, 6, v0")
    I(f"v_readfirstlane_b32 s{sW}, v1")
    if int(os.environ.get("CPF", "1")):
        I(f"s_cmp_ge_u32 s{sW}, 2")
        I("s_cbranch_scc1 K1_NOCPF")
        A.raw("    s_getpc_b64 s[22:23]")
        A.raw("K1_PC0:")
        A.raw("    v_lshlrev_b32 v54, 7, v0")
        A.raw("    v_min_u32 v54, gm_k2_kernel - K1_PC0 - 16, v54")
        A.raw("    global_load_dword v55, v54, s[22:23]")
        A.raw("K1_NOCPF:")
    I("v_and_b32 v0, 63, v0")
    decode_wg(A, "s2", sJ, sS1)
    I(f"s_add_u32 s{sC0}, s{sS1}, s{sJ}")
    I(f"s_and_b32 s{sC0}, s{sC0}, 3")
    I(f"v_lshrrev_b32 v{vG}, 4, v0")
    I(f"v_and_b32 v{vM}, 15, v0")
    I(f"s_cmp_lt_u32 s{sW}, 8")
    A.drain_hazards()
    I("s_cbranch_scc1 K1_NOTL")
    lg_save = list(A.lgq)
    h1 = gen_loader(A, ST)
    A.label("K1_NOTL"); A.lgq = list(lg_save); ST.begin_role()
    I(f"s_cmp_ge_u32 s{sW}, 4")
    I("s_cbranch_scc1 K1_FFT")
    h2 = gen_gemm(A, ST)
    A.label("K1_FFT"); A.lgq = list(lg_save); ST.begin_role()
    h3 = gen_fft(A, ST)
    A.label("K1_END")
    I("s_endpgm")
    return A.text(), max(h1, h2, h3), A.ninst

if __name__ == "__main__":
    t, vg, n = gen_k1()
    print(vg, n)
```

```python
from common_k import *
import struct
def f32(x): return hex(struct.unpack('<I', struct.pack('<f', x))[0])

LDS_B = 0
LDS_X = 98304
K1_LDS = 163840
K1_THREADS = 768
SC = "sc1"
sJ, sT, sS1, sC0, sW = 16, 17, 18, 19, 20
X_, WQ_, WR_, WI_, GW_, WS_ = 24, 28, 32, 36, 40, 44
vG, vM = 1, 2

def gen_loader(A, ST):
    I = A.I
    P = Pool('v', 3, 168)
    sL = 21
    I(f"s_sub_u32 s{sL}, s{sW}, 8")
    t0, t1, t2, t3 = [P.alloc() for _ in range(4)]
    vx = [P.alloc() for _ in range(4)]; vb = [P.alloc() for _ in range(4)]
    I(f"v_xor_b32 v{t0}, v{vG}, v{vM}")
    I(f"v_lshlrev_b32 v{t0}, 4, v{t0}")
    I(f"v_lshl_add_u32 v{vx[0]}, v{vG}, 15, v{t0}")
    I(f"s_lshl_b32 s56, s{sS1}, 10")
    I(f"s_lshl_b32 s57, s{sL}, 19")
    I(f"s_add_u32 s56, s56, s57")
    I(f"s_lshl_b32 s59, s{sL}, 12")
    I(f"s_add_u32 s57, s59, {LDS_X}")
    for i in range(1, 4):
        I(f"v_xor_b32 v{vx[i]}, {64*i}, v{vx[0]}")
        I(f"v_add_u32 v{vx[i]}, {i*131072 - 1024*i}, v{vx[i]}")
    srd(A, X_, 4, 2097152)
    def issue_x(ci, tag):
        I(f"s_add_u32 s48, s{sC0}, {ci}")
        I(f"s_and_b32 s48, s48, 3")
        I(f"s_lshl_b32 s49, s48, 8")
        I(f"s_add_u32 s49, s49, s56")
        I(f"s_lshl_b32 s50, s48, 14")
        I(f"s_add_u32 m0, s50, s57")
        for i in range(4):
            I(f"buffer_load_dwordx4 v{vx[i]}, s[{X_}:{X_+3}], s49 offen offset:{1024*i} lds", tag=tag)
    for ci in range(4): issue_x(ci, 'cx')
    I(f"v_lshrrev_b32 v{t0}, 3, v0")
    I(f"v_bfe_u32 v{t1}, v0, 4, 1")
    I(f"v_bfe_u32 v{t2}, v0, 1, 2")
    I(f"v_xor_b32 v{t1}, v{t1}, v{t2}")
    I(f"v_lshlrev_b32 v{t1}, 5, v{t1}")
    I(f"v_and_b32 v{t2}, 1, v0")
    I(f"v_lshl_add_u32 v{t1}, v{t2}, 4, v{t1}")
    I(f"v_mul_u32_u24 v{t0}, 3072, v{t0}")
    I(f"v_add_u32 v{vb[0]}, v{t0}, v{t1}")
    I(f"v_xor_b32 v{vb[1]}, 64, v{vb[0]}")
    I(f"v_add_u32 v{vb[1]}, {8*3072 - 1024}, v{vb[1]}")
    srd(A, WQ_, 6, 1572864)
    I(f"s_mul_i32 s58, s{sL}, {16*3072}")
    I(f"s_lshl_b32 s60, s{sJ}, 7")
    I(f"s_add_u32 s58, s58, s60")
    I(f"s_lshl_b32 s59, s{sL}, 11")
    I(f"s_lshl_b32 s61, s{sC0}, 1")
    def issue_b(ci):
        I(f"s_add_u32 s48, s61, {ci}")
        I(f"s_and_b32 s48, s48, 7")
        I(f"s_mul_i32 s60, s48, {64*3072}")
        I(f"s_add_u32 s60, s60, s58")
        for seg in range(3):
            if seg: I(f"s_add_u32 s60, s60, 1024")
            I(f"s_add_u32 m0, s59, {LDS_B + 24576*(ci & 3) + 8192*seg}")
            for i in range(2):
                I(f"buffer_load_dwordx4 v{vb[i]}, s[{WQ_}:{WQ_+3}], s60 offen offset:{1024*i} lds", tag=f'c{ci}')
    def sync(tag):
        A.wait_vm_tag(tag); A.barrier()
        if tag in ('cx', 'c0', 'c2', 'c4'): ST.stamp()
    srd(A, WS_, 14, WS_BYTES)
    issue_b(0); issue_b(1)
    WT = WTask(A, sL, 128, 136, 160, 161, (162, 163, 164, 165))
    WT.o = 144
    WT.issue()
    srd(A, GW_, 12, 1024)
    gwr = P.alloc(8, 4); xr = P.alloc(8, 4); gl = P.alloc(8); pl = P.alloc(8); ph = P.alloc(8); sacc, ones = P.alloc(), P.alloc()
    I(f"v_and_b32 v{t0}, 31, v0")
    I(f"v_lshlrev_b32 v{t0}, 5, v{t0}")
    for k in range(2):
        I(f"buffer_load_dwordx4 v[{gwr+4*k}:{gwr+4*k+3}], v{t0}, s[{GW_}:{GW_+3}], 0 offen offset:{16*k}")
    issue_b(2)
    GR = Rec(); I = GR.I
    I(f"s_lshl_b32 s64, s{sJ}, 3")
    I(f"s_lshl_b32 s65, s{sL}, 1")
    I(f"s_add_u32 s64, s64, s65")
    I(f"v_lshrrev_b32 v{t0}, 5, v0")
    I(f"v_add_u32 v{t0}, s64, v{t0}")
    I(f"v_and_b32 v{t1}, 7, v0")
    I(f"v_lshlrev_b32 v{t1}, 1, v{t1}")
    I(f"v_and_b32 v{t2}, 15, v{t0}")
    I(f"v_xor_b32 v{t1}, v{t1}, v{t2}")
    I(f"v_lshlrev_b32 v{t1}, 4, v{t1}")
    I(f"v_lshl_add_u32 v{t1}, v{t0}, 8, v{t1}")
    I(f"v_bfe_u32 v{t2}, v0, 3, 2")
    I(f"v_lshl_add_u32 v{t1}, v{t2}, 14, v{t1}")
    I(f"v_add_u32 v{vx[0]}, {LDS_X}, v{t1}")
    I(f"v_xor_b32 v{vx[1]}, 16, v{vx[0]}")
    I(f"v_mov_b32 v{sacc}, 0")
    I(f"v_mov_b32 v{ones}, 0x3f803f80")
    for i in range(8):
        I(f"v_mov_b32 v{pl+i}, 0"); I(f"v_mov_b32 v{ph+i}, 0")
    I(f"s_lshl_b32 s64, s{sS1}, 8")
    I(f"s_add_u32 s64, s64, {OFF_G}")
    I(f"v_lshlrev_b32 v{t0}, 2, v{t0}")
    for k in range(2): I(f"ds_read_b128 v[{xr+4*k}:{xr+4*k+3}], v{vx[k]}")
    for i in range(8):
        I(f"v_and_b32 v{gl+i}, 0xffff, v{gwr+i}")
        I(f"v_and_b32 v{gwr+i}, 0xffff0000, v{gwr+i}")
    for i in range(8):
        I(f"v_dot2c_f32_bf16 v{pl+i}, v{xr+i}, v{gl+i}")
        I(f"v_dot2c_f32_bf16 v{ph+i}, v{xr+i}, v{gwr+i}")
    for i in range(8): I(f"v_cvt_pk_bf16_f32 v{pl+i}, v{pl+i}, v{ph+i}")
    for i in range(8): I(f"v_dot2c_f32_bf16 v{sacc}, v{pl+i}, v{ones}")
    for sh in (8, 4, 2, 1):
        I(f"v_add_f32_dpp v{sacc}, v{sacc}, v{sacc} row_ror:{sh} row_mask:0xf bank_mask:0xf")
    I(f"v_mov_b32 v{t1}, v{sacc}")
    I(f"v_permlane16_swap_b32 v{sacc}, v{t1}")
    I(f"v_add_f32 v{sacc}, v{sacc}, v{t1}")
    I(f"v_cvt_pk_bf16_f32 v{sacc}, v{sacc}, v{sacc}")
    I(f"v_lshlrev_b32 v{sacc}, 16, v{sacc}")
    I(f"v_mul_f32 v{sacc}, 0xbfb8aa3b, v{sacc}")
    I(f"v_exp_f32 v{sacc}, v{sacc}")
    I(f"v_add_f32 v{sacc}, 1.0, v{sacc}")
    I(f"v_rcp_f32 v{sacc}, v{sacc}")
    I(f"v_cvt_pk_bf16_f32 v{sacc}, v{sacc}, v{sacc}")
    I(f"v_lshlrev_b32 v{sacc}, 16, v{sacc}")
    I("s_mov_b32 s66, 1"); I("s_mov_b32 s67, 1")
    I = A.I
    gu = GR.units(); npc = (len(gu) + 4) // 5
    sync('c0')
    issue_b(3)
    for ci in range(1, 5):
        for u_ in gu[(ci-1)*npc:ci*npc]: play(A, u_)
        sync(f'c{ci}')
        issue_b(ci + 3)
    for u_ in gu[4*npc:]: play(A, u_)
    vq_ = list(A.vmq)
    WT.go()
    A.vmq = vq_

    def sync2(tag):
        idx = [i for i, e in enumerate(A.vmq) if e[1] == tag][-1]
        n = len(A.vmq) - 1 - idx
        I(f"s_cmp_ge_u32 s68, 528")
        A.raw(f"    s_cbranch_scc1 K1_S2A_{tag}")
        A.raw(f"    s_waitcnt vmcnt({n + 6})")
        A.raw(f"    s_branch K1_S2B_{tag}")
        A.raw(f"K1_S2A_{tag}:")
        A.raw(f"    s_waitcnt vmcnt({n})")
        A.raw(f"K1_S2B_{tag}:")
        A.vmq = A.vmq[idx+1:]
        A.barrier(); ST.stamp()
    sync2('c5'); sync2('c6'); sync2('c7')
    I("s_mov_b64 exec, s[66:67]")
    I(f"buffer_store_dword v{sacc}, v{t0}, s[{WS_}:{WS_+3}], s64 offen")
    I("s_mov_b64 exec, -1")
    A.raw("    s_waitcnt vmcnt(1)")
    WT.finish()
    if int(os.environ.get("PREF", "1")):
        vq_ = list(A.vmq)
        pf = 100
        I(f"s_lshr_b32 s48, s2, 3")
        I(f"v_lshlrev_b32 v{t2}, 4, v0")
        I(f"s_lshl_b32 s49, s48, 2")
        I(f"s_add_u32 s49, s49, s{sL}")
        I(f"s_cmp_ge_u32 s49, (GM_CODE_END - gm_k2_kernel) / 1024")
        I("s_cbranch_scc1 K1_NOCODE")
        A.raw("    s_getpc_b64 s[50:51]")
        A.raw("K1_PC:")
        I(f"s_lshl_b32 s49, s49, 10")
        I(f"s_add_u32 s49, s49, gm_k2_kernel - K1_PC")
        I(f"s_add_u32 s50, s50, s49")
        I(f"s_addc_u32 s51, s51, 0")
        I(f"global_load_dwordx4 v[{pf+8}:{pf+11}], v{t2}, s[50:51]")
        A.raw("K1_NOCODE:")
        I(f"s_sub_u32 s49, s2, 160")
        I(f"s_cmp_ge_u32 s49, 16")
        I("s_cbranch_scc1 K1_NOWO")
        I("s_load_dwordx2 s[50:51], s[0:1], 16")
        I(f"s_lshl_b32 s49, s49, 15")
        I(f"s_lshl_b32 s48, s{sL}, 13")
        I(f"s_add_u32 s49, s49, s48")
        srd(A, 72, 50, 524288)
        I(f"s_add_u32 s48, s49, 4096")
        for k in range(8):
            I(f"buffer_load_dwordx4 v[{pf+12}:{pf+15}], v{t2}, s[72:75], s{49 if k < 4 else 48} offen offset:{1024*(k&3)}") if k == 0 else A.raw(f"    buffer_load_dwordx4 v[{pf+12}:{pf+15}], v{t2}, s[72:75], s{49 if k < 4 else 48} offen offset:{1024*(k&3)}")
        A.raw("K1_NOWO:")
        A.vmq = vq_
    ST.dump(sW, WS_)
    I("s_endpgm")
    return P.hi

def gen_gemm(A, ST):
    I = A.I
    P = Pool('v', 3, 22)
    vl2 = P.alloc()
    t0, t1, t2, t3 = [P.alloc() for _ in range(4)]
    srd(A, WS_, 14, WS_BYTES)
    if int(os.environ.get("DPF", "1")):
        srd(A, X_, 4, 2097152)
        srd(A, WQ_, 6, 1572864)
        I(f"s_lshr_b32 s48, s2, 3")
        I(f"s_lshl_b32 s48, s48, 1")
        I(f"s_and_b32 s49, s{sW}, 1")
        I(f"s_add_u32 s48, s48, s49")
        I(f"s_cmp_ge_u32 s{sW}, 2")
        I("s_cbranch_scc1 K1_DPF2")
        I(f"s_lshl_b32 s48, s48, 15")
        I(f"s_and_b32 s49, s{sS1}, 24")
        I(f"s_lshl_b32 s49, s49, 10")
        I(f"s_add_u32 s48, s48, s49")
        I(f"v_lshlrev_b32 v{t0}, 7, v0")
        A.raw(f"    buffer_load_dword v22, v{t0}, s[{X_}:{X_+3}], s48 offen sc1")
        I("s_branch K1_DPF3")
        A.raw("K1_DPF2:")
        I(f"s_mul_i32 s48, s48, {8*3072}")
        I(f"s_lshr_b32 s49, s{sJ}, 2")
        I(f"s_lshl_b32 s49, s49, 9")
        I(f"s_add_u32 s48, s48, s49")
        I(f"v_lshrrev_b32 v{t0}, 3, v0")
        I(f"v_mul_u32_u24 v{t0}, 3072, v{t0}")
        I(f"v_bfe_u32 v{t1}, v0, 2, 1")
        I(f"v_lshl_add_u32 v{t0}, v{t1}, 10, v{t0}")
        I(f"v_and_b32 v{t1}, 3, v0")
        I(f"v_lshl_add_u32 v{t0}, v{t1}, 7, v{t0}")
        A.raw(f"    buffer_load_dword v22, v{t0}, s[{WQ_}:{WQ_+3}], s48 offen offset:1024 sc1")
        A.raw(f"    s_mov_b32 exec_lo, 0x0f0f0f0f")
        A.raw(f"    s_mov_b32 exec_hi, 0x0f0f0f0f")
        A.raw(f"    buffer_load_dword v23, v{t0}, s[{WQ_}:{WQ_+3}], s48 offen sc1")
        A.raw(f"    s_mov_b64 exec, -1")
        A.raw("K1_DPF3:")
    P2 = Pool('v', 24, 168)
    aaddr = [P2.alloc() for _ in range(4)]
    baddr = P2.alloc()
    vL2E, vza, vpq = P2.alloc(), P2.alloc(), P2.alloc()
    I(f"s_lshl_b32 s48, s{sC0}, 14")
    I(f"s_add_u32 s48, s48, {LDS_X}")
    I(f"v_lshl_add_u32 v{t0}, v{vM}, 8, s48")
    I(f"v_xor_b32 v{t1}, v{vG}, v{vM}")
    I(f"v_lshl_add_u32 v{aaddr[0]}, v{t1}, 4, v{t0}")
    for ks in range(1, 4): I(f"v_xor_b32 v{aaddr[ks]}, {64*ks}, v{aaddr[0]}")
    I(f"v_bfe_u32 v{t0}, v0, 2, 2")
    I(f"v_bfe_u32 v{t1}, v0, 3, 1")
    I(f"v_and_b32 v{t2}, 1, v{vG}")
    I(f"v_lshl_or_b32 v{t1}, v{t2}, 1, v{t1}")
    I(f"v_xor_b32 v{t1}, s{sW}, v{t1}")
    I(f"v_lshl_add_u32 v{t0}, v{vG}, 3, v{t0}")
    I(f"v_lshlrev_b32 v{t0}, 7, v{t0}")
    I(f"v_lshl_add_u32 v{t0}, v{t1}, 5, v{t0}")
    I(f"v_and_b32 v{t1}, 3, v0")
    I(f"v_lshl_add_u32 v{baddr}, v{t1}, 3, v{t0}")
    baddr2 = P2.alloc()
    I(f"v_add_u32 v{baddr2}, 49152, v{baddr}")
    acc = [[P2.alloc(4, 4) for seg in range(3)] for mt in range(4)]
    af = [[P2.alloc(4, 4) for mt in range(4)] for _ in range(3)]
    bf = [[P2.alloc(4, 4) for seg in range(3)] for _ in range(3)]
    tt = [P.alloc() for _ in range(8)]
    ones = P.alloc(4, 4)
    for i in range(4): I(f"v_mov_b32 v{ones+i}, 0x3f803f80")
    I(f"v_mov_b32 v{vL2E}, {hex(LOG2E)}")
    I(f"s_lshl_b32 s48, s{sJ}, 2")
    I(f"s_add_u32 s48, s48, s{sW}")
    I(f"s_lshl_b32 s52, s48, 15")
    I(f"s_lshl_b32 s50, s{sS1}, 10")
    I(f"s_add_u32 s52, s52, s50")
    I(f"s_add_u32 s52, s52, {OFF_KVP}")
    I(f"s_lshl_b32 s51, s48, 11")
    I(f"s_lshl_b32 s50, s{sS1}, 6")
    I(f"s_add_u32 s51, s51, s50")
    I(f"s_add_u32 s51, s51, {OFF_ZP}")
    I(f"s_lshl_b32 s53, s{sS1}, 16")
    I(f"s_lshl_b32 s50, s48, 9")
    I(f"s_add_u32 s53, s53, s50")
    I(f"s_add_u32 s53, s53, {OFF_PQ}")
    I(f"v_lshlrev_b32 v{vl2}, 4, v0")
    I(f"v_lshlrev_b32 v{vza}, 2, v{vM}")
    I(f"v_lshlrev_b32 v{vpq}, 3, v0")
    def read_list(gs):
        ks, buf, slot = gs & 3, gs % 3, (gs >> 1) & 3
        ba = baddr2 if slot >= 2 else baddr
        L_ = []
        for seg in range(3):
            for half in range(2):
                L_.append(f"ds_read_b64_tr_b16 v[{bf[buf][seg]+2*half}:{bf[buf][seg]+2*half+1}], v{ba} offset:{(slot&1)*24576 + seg*8192 + (gs&1)*4096 + half*512}")
        for mt in range(4):
            L_.append(f"ds_read_b128 v[{af[buf][mt]}:{af[buf][mt]+3}], v{aaddr[ks]} offset:{mt*4096}")
        return L_
    def mfma_list(gs, mts=range(4)):
        buf = gs % 3
        L_ = []
        for mt in mts:
            for seg in (1, 2, 0):
                c = acc[mt][seg]
                cs = "0" if gs == 0 else f"v[{c}:{c+3}]"
                a_, b_ = af[buf][mt], bf[buf][seg]
                if seg == 0: a_, b_ = b_, a_
                L_.append(f"v_mfma_f32_16x16x32_bf16 v[{c}:{c+3}], v[{a_}:{a_+3}], v[{b_}:{b_+3}], {cs}")
        return L_
    def mfmas(gs):
        for x_ in mfma_list(gs): I(x_)
    def advance(ci):
        I(f"s_add_u32 s48, s{sC0}, {ci+1}")
        I(f"s_and_b32 s48, s48, 3")
        I(f"s_cmp_eq_u32 s48, 0")
        I(f"s_movk_i32 s49, 16384")
        I(f"s_cselect_b32 s48, {hex(-49152 & 0xffffffff)}, s49")
        for ks in range(4): I(f"v_add_u32 v{aaddr[ks]}, s48, v{aaddr[ks]}")
    ST.stamp()
    done = 0
    for gs in range(16):
        if gs & 1 == 0:
            if gs == 14:
                while done < gs: mfmas(done); done += 1
            if gs & 3 == 0 and gs: advance((gs >> 2) - 1)
            A.barrier()
            if gs in (0, 4, 8, 14): ST.stamp()
        rl = read_list(gs)
        if done <= gs - 2:
            ml = mfma_list(done); done += 1
            for k_, m_ in enumerate(ml):
                I(m_)
                if k_ < len(rl): I(rl[k_])
        else:
            for r_ in rl: I(r_)
    while done < 16: mfmas(done); done += 1
    ST.stamp()
    fr = af[1]
    pkq = [fr[0], fr[1]]; vq = [fr[2], fr[3]]
    kvacc, zacc = bf[1][0], bf[1][1]
    def phi4(k0):
        for pr in range(2): I(f"v_cvt_pk_bf16_f32 v{tt[pr]}, v{k0+2*pr}, v{k0+2*pr+1}")
        for pr in range(2):
            I(f"v_lshlrev_b32 v{k0+2*pr}, 16, v{tt[pr]}")
            I(f"v_and_b32 v{k0+2*pr+1}, 0xffff0000, v{tt[pr]}")
        for i in range(4): I(f"v_mul_f32 v{tt[4+i]}, v{vL2E}, v{k0+i}")
        for i in range(4): I(f"v_exp_f32 v{tt[4+i]}, v{tt[4+i]} clamp")
        for i in range(4): I(f"v_max_f32 v{k0+i}, 0x358637bd, v{k0+i}")
        for i in range(4): I(f"v_add_f32 v{k0+i}, v{k0+i}, v{tt[4+i]}")
    for mt in range(4):
        k0 = acc[mt][1]; v0_ = acc[mt][2]
        for pr in range(2):
            I(f"v_cvt_pk_bf16_f32 v{vq[mt>>1] + 2*(mt&1) + pr}, v{v0_+2*pr}, v{v0_+2*pr+1}")
        phi4(k0)
        for pr in range(2):
            I(f"v_cvt_pk_bf16_f32 v{pkq[mt>>1] + 2*(mt&1) + pr}, v{k0+2*pr}, v{k0+2*pr+1}")
        if mt & 1:
            h2 = mt >> 1
            cs = "0" if h2 == 0 else f"v[{kvacc}:{kvacc+3}]"
            cz = "0" if h2 == 0 else f"v[{zacc}:{zacc+3}]"
            I(f"v_mfma_f32_16x16x32_bf16 v[{kvacc}:{kvacc+3}], v[{vq[h2]}:{vq[h2]+3}], v[{pkq[h2]}:{pkq[h2]+3}], {cs}")
            I(f"v_mfma_f32_16x16x32_bf16 v[{zacc}:{zacc+3}], v[{ones}:{ones+3}], v[{pkq[h2]}:{pkq[h2]+3}], {cz}")
    for mt in range(4):
        q0 = acc[mt][0]; o_ = acc[mt][2]
        phi4(q0)
        I(f"v_cvt_pk_bf16_f32 v{o_}, v{q0}, v{q0+1}")
        I(f"v_cvt_pk_bf16_f32 v{o_+1}, v{q0+2}, v{q0+3}")
        I(f"buffer_store_dwordx2 v[{o_}:{o_+1}], v{vpq}, s[{WS_}:{WS_+3}], s53 offen {SC}")
        if mt < 3: I(f"s_add_u32 s53, s53, 16384")
        if mt == 0:
            I(f"buffer_store_dwordx4 v[{kvacc}:{kvacc+3}], v{vl2}, s[{WS_}:{WS_+3}], s52 offen {SC}")
            I("s_mov_b64 exec, 0xffff")
            I(f"buffer_store_dword v{zacc}, v{vza}, s[{WS_}:{WS_+3}], s51 offen {SC}")
            I("s_mov_b64 exec, -1")
    ST.stamp()
    ST.dump(sW, WS_)
    I("s_endpgm")
    return max(P.hi, P2.hi)

class WTask:
    def __init__(self, A, sH, R_, Iq, orr, oii, temps):
        self.A, self.sH = A, sH
        self.R_, self.Iq, self.orr, self.oii = R_, Iq, orr, oii
        self.t0, self.t1, self.t2, self.t3 = temps
    def issue(self):
        A = self.A; I = A.I; sH = self.sH
        R_, Iq, orr, oii, t0, t1, t2, t3 = self.R_, self.Iq, self.orr, self.oii, self.t0, self.t1, self.t2, self.t3
        srd(A, WR_, 8, 1052672)
        srd(A, WI_, 10, 1052672)
        I(f"s_lshl_b32 s68, s2, 1")
        I(f"s_add_u32 s68, s68, s{sH}")
        I(f"s_add_u32 s49, s2, 512")
        I(f"s_cmp_eq_u32 s{sH}, 2")
        I(f"s_cselect_b32 s68, s49, s68")
        I(f"s_cmp_eq_u32 s{sH}, 3")
        I(f"s_cselect_b32 s68, 1024, s68")
        I(f"s_lshr_b32 s49, s68, 1")
        I(f"s_lshr_b32 s50, s49, 3")
        I(f"s_and_b32 s51, s49, 7")
        I(f"s_lshl_b32 s51, s51, 8")
        I(f"s_add_u32 s50, s50, s51")
        I(f"v_lshl_add_u32 v{t0}, v{vG}, 6, s50")
        I(f"v_sub_u32 v{t1}, 2048, v{t0}")
        I(f"v_and_b32 v{t1}, 2047, v{t1}")
        I(f"v_mul_u32_u24 v{t0}, 514, v{t0}")
        I(f"v_mul_u32_u24 v{t1}, 514, v{t1}")
        I(f"s_lshl_b32 s69, s49, 13")
        I(f"s_add_u32 s69, s69, {OFF_WEFF}")
        I(f"v_lshlrev_b32 v{t3}, 5, v{vM}")
        I(f"v_add_u32 v{t2}, v{t0}, v{t3}")
        I(f"v_sub_u32 v{t3}, v{t1}, v{t3}")
        I(f"v_add_u32 v{t3}, 482, v{t3}")
        I(f"v_add_u32 v{t0}, 512, v{t0}")
        I(f"s_bitcmp1_b32 s68, 0")
        I(f"s_cselect_b64 s[70:71], -1, 0")
        I(f"v_cndmask_b32 v{t2}, v{t2}, v{t3}, s[70:71]")
        I(f"v_cndmask_b32 v{t1}, v{t1}, v{t0}, s[70:71]")
    def go(self):
        A = self.A; I = A.I
        R_, Iq, orr, oii, t0, t1, t2, t3 = self.R_, self.Iq, self.orr, self.oii, self.t0, self.t1, self.t2, self.t3
        I(f"s_cmp_ge_u32 s68, 528")
        A.wait_lg_all()
        I("s_cbranch_scc1 K1_WISSUED")
        for k in range(2):
            I(f"buffer_load_dwordx4 v[{R_+4*k}:{R_+4*k+3}], v{t2}, s[{WR_}:{WR_+3}], 0 offen offset:{16*k}")
            I(f"buffer_load_dwordx4 v[{Iq+4*k}:{Iq+4*k+3}], v{t2}, s[{WI_}:{WI_+3}], 0 offen offset:{16*k}")
        I(f"buffer_load_ushort v{orr}, v{t1}, s[{WR_}:{WR_+3}], 0 offen")
        I(f"buffer_load_ushort v{oii}, v{t1}, s[{WI_}:{WI_+3}], 0 offen")
        A.drain_hazards()
        A.label("K1_WISSUED")
    def finish(self):
        A = self.A; I = A.I
        R_, Iq, o, orr, oii, t0, t1, t2, t3 = self.R_, self.Iq, self.o, self.orr, self.oii, self.t0, self.t1, self.t2, self.t3
        I(f"s_cmp_ge_u32 s68, 528")
        A.drain_hazards()
        I("s_cbranch_scc1 K1_WDONE")
        I(f"v_lshlrev_b32 v{t3}, 11, v{vG}")
        I(f"v_lshl_add_u32 v{t3}, v{vM}, 4, v{t3}")
        I("s_mov_b32 s72, 0x05040100"); I("s_mov_b32 s73, 0x07060302")
        I("s_mov_b32 s74, 0x00010001"); I("s_mov_b32 s75, 0x00010001")
        I(f"s_bitcmp1_b32 s68, 0")
        I("s_cbranch_scc1 K1_WMIR")
        for mir in range(2):
            if mir: A.label("K1_WMIR")
            if mir:
                for k in range(8): I(f"v_xor_b32 v{Iq+k}, 0x80008000, v{Iq+k}")
            for c in range(16):
                tq = 15 - c if mir else c
                I(f"v_perm_b32 v{o + 4*(c&3) + (c>>2)}, v{Iq+(tq>>1)}, v{R_+(tq>>1)}, s{72+(tq&1)}")
            I("s_mov_b64 exec, s[74:75]")
            I(f"v_lshlrev_b32 v{t0}, 16, v{o}")
            I(f"v_and_b32 v{t1}, 0xffff0000, v{o}")
            I(f"v_lshlrev_b32 v{orr}, 16, v{orr}")
            I(f"v_lshlrev_b32 v{oii}, 16, v{oii}")
            I(f"v_add_f32 v{t0}, v{t0}, v{orr}")
            I(f"v_add_f32 v{t1}, v{t1}, v{oii}" if mir else f"v_sub_f32 v{t1}, v{t1}, v{oii}")
            I(f"v_mul_f32 v{t0}, 0.5, v{t0}")
            I(f"v_mul_f32 v{t1}, 0.5, v{t1}")
            I(f"v_cvt_pk_bf16_f32 v{o}, v{t0}, v{t1}")
            I("s_mov_b64 exec, -1")
            for k4 in range(4):
                I(f"buffer_store_dwordx4 v[{o+4*k4}:{o+4*k4+3}], v{t3}, s[{WS_}:{WS_+3}], s69 offen offset:{512*k4 + 256*mir} {SC}")
            A.nop(2)
            A.drain_hazards()
            if not mir: I("s_branch K1_WDONE")
        A.label("K1_WDONE")

def gen_fft(A, ST):
    I = A.I
    P = Pool('v', 3, 168)
    sH = 21
    I(f"s_sub_u32 s{sH}, s{sW}, 4")
    t0, t1, t2, t3 = [P.alloc() for _ in range(4)]
    kA, kB = P.alloc(), P.alloc()
    split_consts(A, kA, kB)
    srd(A, WS_, 14, WS_BYTES)
    tr1 = [[P.alloc(4, 4) for hl in range(2)] for u in range(2)]
    cv = P.alloc(8, 4)
    vP0, vP1, vK, vSg = P.alloc(), P.alloc(), P.alloc(), P.alloc()
    I(f"v_lshrrev_b32 v{t0}, 1, v{vM}")
    I(f"s_lshl_b32 s53, s{sH}, 3")
    I(f"v_add_u32 v{t0}, s53, v{t0}")
    I(f"v_and_b32 v{t1}, 1, v{vM}")
    I(f"v_mul_u32_u24 v{vP0}, s{sS1}, v{t0}")
    I(f"v_lshl_add_u32 v{vP0}, v{t1}, 9, v{vP0}")
    I(f"v_lshlrev_b32 v{vP1}, 5, v{t0}")
    I(f"v_and_b32 v{vSg}, 1, v{t0}")
    I(f"v_mul_u32_u24 v{vSg}, 0x8000, v{vSg}")
    I(f"v_lshl_or_b32 v{vSg}, v{vSg}, 16, v{vSg}")
    I(f"s_cmp_eq_u32 s{sH}, 0")
    I(f"s_cselect_b32 s54, 0x00020002, 0")
    I(f"s_mov_b32 s55, s54")
    I(f"s_mov_b64 exec, s[54:55]")
    I(f"v_mov_b32 v{vP1}, 1024")
    I(f"v_mov_b32 v{vP0}, 0")
    I(f"s_mov_b64 exec, -1")
    I(f"v_lshlrev_b32 v{t0}, 3, v{vG}")
    I(f"v_mad_u32_u24 v{vP0}, v{t0}, v{vP1}, v{vP0}")
    I(f"v_cvt_f32_u32 v{vP0}, v{vP0}")
    I(f"v_cvt_f32_u32 v{vP1}, v{vP1}")
    I(f"v_mul_f32 v{vP0}, 0x3a000000, v{vP0}")
    I(f"v_mul_f32 v{vP1}, 0x3a000000, v{vP1}")
    I(f"v_add_f32 v{t0}, v{vP0}, v{vP1}")
    I(f"v_cos_f32 v{vK}, v{vP1}")
    I(f"v_cos_f32 v{cv}, v{vP0}")
    I(f"v_cos_f32 v{cv+1}, v{t0}")
    I(f"v_add_f32 v{vK}, v{vK}, v{vK}")
    for j_ in range(2, 8): I(f"v_fma_f32 v{cv+j_}, v{vK}, v{cv+j_-1}, -v{cv+j_-2}")
    split_many(A, [(tr1[0][0] + pr, tr1[0][1] + pr, cv + 2*pr, cv + 2*pr + 1, None, None) for pr in range(4)], kA, kB)
    for hl in range(2):
        for pr in range(4): I(f"v_xor_b32 v{tr1[1][hl]+pr}, v{vSg}, v{tr1[0][hl]+pr}")
    tr2 = [[P.alloc(4, 4) for cs in range(2)] for e in range(4)]
    cd, sd, rc, rs = P.alloc(), P.alloc(), P.alloc(), P.alloc()
    cs8 = P.alloc(8, 4)
    ce = [cs8 + k for k in range(4)]; se = [cs8 + 4 + k for k in range(4)]
    c1 = [cv + e for e in range(4)]; s1_ = [cv + 4 + e for e in range(4)]
    I(f"s_lshl_b32 s53, s{sJ}, 2")
    I(f"v_lshl_add_u32 v{t0}, v{vG}, 5, s53")
    I(f"v_mul_u32_u24 v{vP0}, v{t0}, v{vM}")
    I(f"v_cvt_f32_u32 v{vP0}, v{vP0}")
    I(f"v_mul_f32 v{vP0}, 0x3b000000, v{vP0}")
    I(f"v_cvt_f32_u32 v{vP1}, v{vM}")
    I(f"v_mul_f32 v{t0}, 0x3e800000, v{vP1}")
    I(f"v_mul_f32 v{vP1}, 0x3b000000, v{vP1}")
    I(f"v_cos_f32 v{ce[0]}, v{vP0}"); I(f"v_sin_f32 v{se[0]}, v{vP0}")
    I(f"v_cos_f32 v{cd}, v{vP1}"); I(f"v_sin_f32 v{sd}, v{vP1}")
    I(f"v_cos_f32 v{rc}, v{t0}"); I(f"v_sin_f32 v{rs}, v{t0}")
    I(f"v_rndne_f32 v{rc}, v{rc}"); I(f"v_rndne_f32 v{rs}, v{rs}")
    I(f"v_and_b32 v{vSg}, 1, v{vM}")
    I(f"v_mul_u32_u24 v{vSg}, 0x8000, v{vSg}")
    I(f"v_lshl_or_b32 v{vSg}, v{vSg}, 16, v{vSg}")
    for e in range(1, 4):
        I(f"v_mul_f32 v{t0}, v{se[e-1]}, v{sd}")
        I(f"v_mul_f32 v{t1}, v{ce[e-1]}, v{sd}")
        I(f"v_fma_f32 v{ce[e]}, v{ce[e-1]}, v{cd}, -v{t0}")
        I(f"v_fma_f32 v{se[e]}, v{se[e-1]}, v{cd}, v{t1}")
    for e in range(4):
        I(f"v_mul_f32 v{t0}, v{se[e]}, v{rs}")
        I(f"v_mul_f32 v{t1}, v{ce[e]}, v{rs}")
        I(f"v_fma_f32 v{c1[e]}, v{ce[e]}, v{rc}, -v{t0}")
        I(f"v_fma_f32 v{s1_[e]}, v{se[e]}, v{rc}, v{t1}")
    split_many(A, [(tr2[e][0], tr2[e][0] + 2, ce[e], c1[e], None, None) for e in range(4)] +
                  [(tr2[e][1], tr2[e][1] + 2, se[e], s1_[e], None, None) for e in range(4)], kA, kB)
    for e in range(4):
        for cs in range(2):
            I(f"v_xor_b32 v{tr2[e][cs]+1}, v{vSg}, v{tr2[e][cs]}")
            I(f"v_xor_b32 v{tr2[e][cs]+3}, v{vSg}, v{tr2[e][cs]+2}")
    a0, a1 = P.alloc(), P.alloc()
    I(f"v_bfe_u32 v{t0}, v0, 2, 2")
    I(f"v_lshl_add_u32 v{t0}, v{vG}, 3, v{t0}")
    I(f"v_and_b32 v{t1}, 3, v0")
    I(f"s_lshr_b32 s53, s{sJ}, 1")
    I(f"v_lshl_add_u32 v{t1}, v{t1}, 2, s53")
    I(f"v_and_b32 v{t2}, 15, v{t0}")
    I(f"v_xor_b32 v{t1}, v{t1}, v{t2}")
    I(f"v_lshlrev_b32 v{t1}, 4, v{t1}")
    I(f"v_lshl_add_u32 v{t1}, v{t0}, 8, v{t1}")
    I(f"s_and_b32 s53, s{sJ}, 1")
    I(f"s_lshl_b32 s53, s53, 3")
    I(f"s_add_u32 s53, s53, {LDS_X}")
    I(f"v_add_u32 v{a0}, s53, v{t1}")
    I(f"v_xor_b32 v{a1}, 64, v{a0}")
    vcs, vsn, vaddr, vaddr2 = cd, sd, rc, rs
    I(f"v_cvt_f32_u32 v{vcs}, s{sS1}")
    I(f"v_mul_f32 v{vcs}, 0x3c800000, v{vcs}")
    I(f"v_sin_f32 v{vsn}, v{vcs}")
    I(f"v_cos_f32 v{vcs}, v{vcs}")
    I(f"v_and_b32 v{t0}, 3, v0")
    I(f"v_lshlrev_b32 v{vaddr2}, 6, v{t0}")
    I(f"v_bfe_u32 v{t0}, v0, 2, 2")
    I(f"v_lshl_add_u32 v{vaddr2}, v{t0}, 4, v{vaddr2}")
    I(f"v_lshl_add_u32 v{vaddr}, v{vG}, 17, v{vaddr2}")
    I(f"s_lshl_b32 s62, s{sH}, 19")
    I(f"s_lshl_b32 s53, s{sS1}, 11")
    I(f"s_lshl_b32 s66, s{sJ}, 8")
    I(f"s_add_u32 s66, s66, s53")
    if OFF_T2: I(f"s_add_u32 s66, s66, {OFF_T2}")
    I(f"s_add_u32 s62, s62, s66")
    I(f"s_add_u32 s63, s62, {65536}")
    I(f"s_add_u32 s66, s66, {32*65536}")
    I(f"s_cmp_eq_u32 s{sH}, 0")
    I(f"s_cselect_b64 s[54:55], 0xffff, 0")
    ST.stamp()
    A.barrier()
    ST.stamp()
    F = Rec(); FI = F.I
    xa = [[P.alloc(4, 4) for u in range(2)] for tt in range(4)]
    d1 = [P.alloc(4, 4) for tt in range(4)]
    for tt in range(4):
        for u in range(2):
            FI(f"ds_read_b64_tr_b16 v[{xa[tt][u]}:{xa[tt][u]+1}], v{a0} offset:{tt*16384+u*8192}")
            FI(f"ds_read_b64_tr_b16 v[{xa[tt][u]+2}:{xa[tt][u]+3}], v{a1} offset:{tt*16384+u*8192+1024}")
    for tt in range(4):
        for u in range(2):
            for hl in range(2):
                cs = "0" if (u == 0 and hl == 0) else f"v[{d1[tt]}:{d1[tt]+3}]"
                FI(f"v_mfma_f32_16x16x32_bf16 v[{d1[tt]}:{d1[tt]+3}], v[{xa[tt][u]}:{xa[tt][u]+3}], v[{tr1[u][hl]}:{tr1[u][hl]+3}], {cs}")
    F.barrier()
    dh = [P.alloc(4, 4) for e in range(4)]; dl = [P.alloc(4, 4) for e in range(4)]
    pc = [xa[e][0] for e in range(4)]; ps = [xa[e][1] for e in range(4)]
    for eh in range(2):
        split_many(F, [(dh[e] + pr, dl[e] + pr, d1[2*pr] + e, d1[2*pr+1] + e, dh[e] + 2 + pr, dl[e] + 2 + pr) for e in (2*eh, 2*eh+1) for pr in range(2)], kA, kB)
        for e in (2*eh, 2*eh+1):
            for (acc_, cs_) in ((pc[e], 0), (ps[e], 1)):
                FI(f"v_mfma_f32_16x16x32_bf16 v[{acc_}:{acc_+3}], v[{dh[e]}:{dh[e]+3}], v[{tr2[e][cs_]}:{tr2[e][cs_]+3}], 0")
                FI(f"v_mfma_f32_16x16x32_bf16 v[{acc_}:{acc_+3}], v[{dl[e]}:{dl[e]+3}], v[{tr2[e][cs_]}:{tr2[e][cs_]+3}], v[{acc_}:{acc_+3}]")
        F.barrier()
    rq = [tr1[0][0], tr1[0][1], tr1[1][0]]; iq = [tr1[1][1], d1[0], d1[1]]
    re = [[rq[ks2] + e for e in range(4)] for ks2 in range(3)]
    im = [[iq[ks2] + e for e in range(4)] for ks2 in range(3)]
    for e in range(4):
        for ks2 in range(2):
            FI(f"v_add_f32 v{re[ks2][e]}, v{pc[e]+2*ks2}, v{ps[e]+2*ks2+1}")
            FI(f"v_sub_f32 v{im[ks2][e]}, v{pc[e]+2*ks2+1}, v{ps[e]+2*ks2}")
    FI("s_mov_b64 exec, s[54:55]")
    for e in range(4):
        FI(f"v_mov_b32 v{re[0][e]}, v{pc[e]}")
        FI(f"v_xor_b32 v{im[0][e]}, 0x80000000, v{ps[e]}")
    FI("s_mov_b64 exec, -1")
    gr = [(dh[0], dh[1]), (dh[2], dh[3]), (dl[0], dl[1])]
    def granule(R, ks2):
        gh, gl = gr[ks2]
        for pr in range(2):
            R.I(f"v_cvt_pk_bf16_f32 v{gh+pr}, v{re[ks2][2*pr]}, v{re[ks2][2*pr+1]}")
            R.I(f"v_cvt_pk_bf16_f32 v{gh+2+pr}, v{im[ks2][2*pr]}, v{im[ks2][2*pr+1]}")
    for ks2 in range(2): granule(F, ks2)
    for ks2 in range(2):
        gh, gl = gr[ks2]
        FI(f"buffer_store_dwordx4 v[{gh}:{gh+3}], v{vaddr}, s[{WS_}:{WS_+3}], s{62+ks2} offen {SC}")
    NOFFT = int(os.environ.get("NOFFT", "0"))
    for u in F.units():
        if NOFFT and not (u[0][0] == 'C'): continue
        play(A, u)
    ST.stamp()
    I(f"s_cmp_lg_u32 s{sH}, 0")
    A.drain_hazards()
    I("s_cbranch_scc1 K1_NOSP")
    for e in range(4):
        I(f"v_mul_f32 v{t2}, v{ps[e]+1}, v{vsn}")
        I(f"v_fma_f32 v{re[2][e]}, v{pc[e]+1}, v{vcs}, -v{t2}")
        I(f"v_mul_f32 v{t3}, v{ps[e]+1}, v{vcs}")
        I(f"v_fma_f32 v{im[2][e]}, -v{pc[e]+1}, v{vsn}, -v{t3}")
    granule(A, 2)
    I("s_mov_b64 exec, 0xffff")
    gh, gl = gr[2]
    I(f"buffer_store_dwordx4 v[{gh}:{gh+3}], v{vaddr2}, s[{WS_}:{WS_+3}], s66 offen {SC}")
    vmq_save = list(A.vmq)
    I("s_mov_b64 exec, -1")
    A.label("K1_NOSP")
    A.vmq = vmq_save
    ST.stamp()
    if STAMPS: A.barrier(); A.barrier(); A.barrier(); A.barrier()
    ST.dump(sW, WS_)
    return P.hi

def gen_k1():
    A = Asm(); I = A.I
    I("s_cmp_ge_u32 s2, 256")
    I("s_cbranch_scc1 K1_END")
    ST = Stamper(A, 0); ST.first()
    I("s_load_dwordx4 s[4:7], s[0:1], 0")
    I("s_load_dwordx4 s[8:11], s[0:1], 32")
    I("s_load_dwordx2 s[12:13], s[0:1], 48")
    I("s_load_dwordx2 s[14:15], s[0:1], 72")
    I("v_lshrrev_b32 v1, 6, v0")
    I(f"v_readfirstlane_b32 s{sW}, v1")
    if int(os.environ.get("CPF", "1")):
        I(f"s_cmp_ge_u32 s{sW}, 2")
        I("s_cbranch_scc1 K1_NOCPF")
        A.raw("    s_getpc_b64 s[22:23]")
        A.raw("K1_PC0:")
        A.raw("    v_lshlrev_b32 v3, 7, v0")
        A.raw("    v_min_u32 v3, gm_k2_kernel - K1_PC0 - 16, v3")
        A.raw("    global_load_dword v23, v3, s[22:23]")
        A.raw("K1_NOCPF:")
    I("v_and_b32 v0, 63, v0")
    decode_wg(A, "s2", sJ, sS1)
    I(f"s_add_u32 s{sC0}, s{sS1}, s{sJ}")
    I(f"s_and_b32 s{sC0}, s{sC0}, 3")
    I(f"v_lshrrev_b32 v{vG}, 4, v0")
    I(f"v_and_b32 v{vM}, 15, v0")
    I(f"s_cmp_lt_u32 s{sW}, 8")
    A.drain_hazards()
    I("s_cbranch_scc1 K1_NOTL")
    lg_save = list(A.lgq)
    h1 = gen_loader(A, ST)
    A.label("K1_NOTL"); A.lgq = list(lg_save); ST.begin_role()
    I(f"s_cmp_ge_u32 s{sW}, 4")
    I("s_cbranch_scc1 K1_FFT")
    h2 = gen_gemm(A, ST)
    A.label("K1_FFT"); A.lgq = list(lg_save); ST.begin_role()
    h3 = gen_fft(A, ST)
    A.label("K1_END")
    I("s_endpgm")
    return A.text(), max(h1, h2, h3), A.ninst

if __name__ == "__main__":
    t, vg, n = gen_k1()
    print(vg, n)
```

```python
from common_k import *
import struct, os
def f32(x): return hex(struct.unpack('<I', struct.pack('<f', x))[0])

LDS_T = 1024
LDS_E = 36864
LDS_FLAG = LDS_E + 32768
K2_LDS = LDS_FLAG + 64
K2_GRID = 256
K2_THREADS = 512
SC = "sc1"
sW = 20
sWV = 19
X_, WQ_, WO_, WS_ = 24, 28, 32, 44
LDS_W = 17408

def merge(A, mf, va, per):
    vi = 0
    for m_ in mf:
        A.I(m_)
        for _ in range(per):
            if vi < len(va): A.I(va[vi]); vi += 1
    while vi < len(va): A.I(va[vi]); vi += 1

def sw_barrier(A, idx, tag, vt, vone):
    I = A.I
    A.wait_lg_all()
    I(f"v_mov_b32 v{vt}, {LDS_FLAG + 4*idx}")
    I(f"v_mov_b32 v{vone}, 1")
    I("s_mov_b64 exec, 1")
    I(f"ds_add_u32 v{vt}, v{vone}")
    A.raw(f"SWB_{tag}:")
    I(f"ds_read_b32 v{vone}, v{vt}")
    I(f"v_readfirstlane_b32 s48, v{vone}")
    I(f"s_cmp_lt_u32 s48, 4")
    I(f"s_cbranch_scc1 SWB_{tag}")
    I("s_mov_b64 exec, -1")

class L_:
    def __init__(self): self.l = []
    def I(self, t, tag=None): self.l.append(t)

def gen_fft(A, ST):
    I = A.I
    P = Pool('v', 1, 256)
    sK2, sKB4, sKB = 16, 17, 18
    I("s_setprio 3")
    I(f"s_lshr_b32 s{sK2}, s2, 5")
    I(f"s_lshl_b32 s{sK2}, s{sK2}, 3")
    I(f"s_and_b32 s48, s2, 7")
    I(f"s_add_u32 s{sK2}, s{sK2}, s48")
    I(f"s_bfe_u32 s{sKB4}, s2, 0x20003")
    t0, t1, t2, t3 = [P.alloc() for _ in range(4)]
    vN, vH = P.alloc(), P.alloc()
    vo = [P.alloc() for _ in range(4)]
    I(f"v_and_b32 v{vN}, 31, v0")
    I(f"v_lshrrev_b32 v{vH}, 5, v0")
    I(f"s_and_b32 s48, s{sW}, 1")
    I(f"s_lshl_b32 s48, s48, 3")
    I(f"v_xor_b32 v{t0}, s48, v{vN}")
    I(f"v_xor_b32 v{t0}, v{t0}, v{vH}")
    I(f"v_lshrrev_b32 v{t1}, 2, v{t0}")
    I(f"v_and_b32 v{t0}, 3, v{t0}")
    I(f"v_lshlrev_b32 v{t0}, 4, v{t0}")
    I(f"v_lshl_add_u32 v{t0}, v{t1}, 8, v{t0}")
    I(f"v_lshl_add_u32 v{vo[0]}, v{vH}, 11, v{t0}")
    for i in range(1, 4):
        I(f"v_xor_b32 v{vo[i]}, {32*(i&1) + 256*(i>>1)}, v{vo[0]}")
        I(f"v_add_u32 v{vo[i]}, {3072*i}, v{vo[i]}")
    I(f"s_lshl_b32 s48, s{sK2}, 16")
    I(f"s_lshl_b32 s49, s{sW}, 14")
    I(f"s_add_u32 s48, s48, s49")
    I(f"s_lshl_b32 s50, s{sKB4}, 9")
    I(f"s_add_u32 s51, s48, s50")
    I(f"s_add_u32 s51, s51, {OFF_WEFF}")
    I(f"s_lshl_b32 s49, s{sKB4}, 6")
    I(f"s_add_u32 s48, s48, s49")
    if OFF_T2: I(f"s_add_u32 s48, s48, {OFF_T2}")
    I(f"s_lshl_b32 s49, s{sW}, 12")
    I(f"s_add_u32 m0, s49, {LDS_T}")
    for i in range(4):
        I(f"buffer_load_dwordx4 v{vo[i]}, s[{WS_}:{WS_+3}], s48 offen offset:{1024*i} lds", tag='t2')
    I(f"v_lshlrev_b32 v{t0}, 4, v{vN}")
    I(f"v_lshl_add_u32 v{t0}, v{vH}, 11, v{t0}")
    I(f"s_mul_i32 s49, s{sW}, 4160")
    I(f"s_add_u32 m0, s49, {LDS_W}")
    for i in range(4):
        if i:
            I(f"s_add_u32 m0, m0, 1040")
            I(f"s_add_u32 s51, s51, 4096")
        I(f"buffer_load_dwordx4 v{t0}, s[{WS_}:{WS_+3}], s51 offen lds", tag='w')
    I(f"s_lshl_b32 s{sKB}, s{sW}, 2")
    I(f"s_add_u32 s{sKB}, s{sKB}, s{sKB4}")
    kA, kB = P.alloc(), P.alloc()
    nterm = 2 if NT2 >= 2 else 1
    if nterm == 2: split_consts(A, kA, kB)
    sets = [[dict(C=P.alloc(8, 4), S=P.alloc(8, 4), N=P.alloc(8, 4)) for _ in range(nterm)] for _ in range(2)]
    D = [(P.alloc(16, 4), P.alloc(16, 4)) for _ in range(2)]
    cw, sw = D[1][0], D[1][1]
    vst, vsd, cd, sd, rc, rs, vSg, vNeg = [P.alloc() for _ in range(8)]
    I(f"v_cvt_f32_u32 v{t0}, v{vN}")
    I(f"v_mul_f32 v{vst}, 0x3d000000, v{t0}")
    I(f"v_mul_f32 v{t1}, 0x3e800000, v{t0}")
    I(f"v_cos_f32 v{cd}, v{vst}"); I(f"v_sin_f32 v{sd}, v{vst}")
    I(f"v_cos_f32 v{rc}, v{t1}"); I(f"v_sin_f32 v{rs}, v{t1}")
    I(f"v_lshlrev_b32 v{t2}, 2, v{vH}")
    I(f"v_cvt_f32_u32 v{t2}, v{t2}")
    I(f"v_mul_f32 v{vsd}, v{t2}, v{vst}")
    I(f"v_rndne_f32 v{rc}, v{rc}"); I(f"v_rndne_f32 v{rs}, v{rs}")
    I(f"v_and_b32 v{vSg}, 1, v{vN}")
    I(f"v_mul_u32_u24 v{vSg}, 0x8000, v{vSg}")
    I(f"v_lshl_or_b32 v{vSg}, v{vSg}, 16, v{vSg}")
    I(f"v_mov_b32 v{vNeg}, 0x80008000")
    for si in range(2):
        if si == 1:
            I(f"v_cvt_f32_u32 v{t1}, s{sKB}")
            I(f"v_mul_f32 v{t1}, 0x3d800000, v{t1}")
            I(f"v_fmac_f32 v{vsd}, v{t1}, v{vst}")
        I(f"v_cos_f32 v{cw}, v{vsd}"); I(f"v_sin_f32 v{sw}, v{vsd}")
        for jj in range(1, 4):
            I(f"v_mul_f32 v{t0}, v{sw+jj-1}, v{sd}")
            I(f"v_mul_f32 v{t1}, v{cw+jj-1}, v{sd}")
            I(f"v_fma_f32 v{cw+jj}, v{cw+jj-1}, v{cd}, -v{t0}")
            I(f"v_fma_f32 v{sw+jj}, v{sw+jj-1}, v{cd}, v{t1}")
        for jj in range(4):
            I(f"v_mul_f32 v{t0}, v{sw+jj}, v{rs}")
            I(f"v_mul_f32 v{t1}, v{cw+jj}, v{rs}")
            I(f"v_fma_f32 v{cw+4+jj}, v{cw+jj}, v{rc}, -v{t0}")
            I(f"v_fma_f32 v{sw+4+jj}, v{sw+jj}, v{rc}, v{t1}")
        S_ = sets[si]
        if nterm == 2:
            split_many(A, [(S_[0]['C'] + k, S_[1]['C'] + k, cw + 2*k, cw + 2*k + 1, None, None) for k in range(4)] +
                          [(S_[0]['S'] + k, S_[1]['S'] + k, sw + 2*k, sw + 2*k + 1, None, None) for k in range(4)], kA, kB)
        else:
            for k in range(4):
                I(f"v_cvt_pk_bf16_f32 v{S_[0]['C']+k}, v{cw+2*k}, v{cw+2*k+1}")
                I(f"v_cvt_pk_bf16_f32 v{S_[0]['S']+k}, v{sw+2*k}, v{sw+2*k+1}")
        for T_ in S_:
            for k in range(4):
                I(f"v_xor_b32 v{T_['C']+4+k}, v{vSg}, v{T_['C']+k}")
                I(f"v_xor_b32 v{T_['S']+4+k}, v{vSg}, v{T_['S']+k}")
            for k in range(8): I(f"v_xor_b32 v{T_['N']+k}, v{vNeg}, v{T_['S']+k}")
    RE, IM = P.alloc(8, 4), P.alloc(8, 4)
    wf = P.alloc(16, 2); wr_ = P.alloc(16, 2)
    va, va1, vw = vo[0], vo[1], vo[2]
    I(f"v_lshlrev_b32 v{t0}, 2, v{vH}")
    I(f"v_add_u32 v{t0}, s{sW}, v{t0}")
    I(f"v_and_b32 v{t1}, 15, v{vN}")
    I(f"v_xor_b32 v{t0}, v{t0}, v{t1}")
    I(f"v_lshlrev_b32 v{t0}, 4, v{t0}")
    I(f"v_lshl_add_u32 v{t0}, v{vN}, 9, v{t0}")
    I(f"v_add_u32 v{va}, {LDS_T}, v{t0}")
    I(f"v_xor_b32 v{va1}, 128, v{va}")
    I(f"v_lshrrev_b32 v{t0}, 1, v{vN}")
    I(f"v_mul_u32_u24 v{t0}, 1040, v{t0}")
    I(f"v_and_b32 v{t1}, 1, v{vN}")
    I(f"v_lshl_add_u32 v{t0}, v{t1}, 9, v{t0}")
    I(f"v_lshl_add_u32 v{t0}, v{vH}, 6, v{t0}")
    I(f"s_lshl_b32 s48, s{sW}, 2")
    I(f"s_add_u32 s48, s48, {LDS_W}")
    I(f"v_add_u32 v{vw}, s48, v{t0}")
    wa = [cd, sd, vst, vsd]; vs1, vra = rc, rs
    I(f"s_lshl_b32 s48, s{sW}, 13")
    I(f"s_add_u32 s48, s48, {LDS_E}")
    I(f"v_lshl_add_u32 v{t1}, v{vH}, 1, v{vN}")
    I(f"v_lshlrev_b32 v{t2}, 9, v{vH}")
    I(f"v_add_u32 v{t2}, s48, v{t2}")
    for p in range(4):
        I(f"v_add_u32 v{t0}, {4*p}, v{t1}")
        I(f"v_and_b32 v{t0}, 31, v{t0}")
        I(f"v_lshl_add_u32 v{wa[p]}, v{t0}, 4, v{t2}")
    I(f"s_lshl_b32 s48, s{sW}, 3")
    I(f"v_lshrrev_b32 v{vs1}, 3, v0")
    I(f"v_add_u32 v{vs1}, s48, v{vs1}")
    I(f"v_and_b32 v{t1}, 7, v0")
    I(f"v_lshl_add_u32 v{t0}, v{t1}, 1, v{vs1}")
    I(f"v_and_b32 v{t0}, 31, v{t0}")
    I(f"v_lshlrev_b32 v{t0}, 4, v{t0}")
    I(f"v_and_b32 v{t2}, 1, v0")
    I(f"v_lshl_add_u32 v{t0}, v{t2}, 9, v{t0}")
    I(f"v_bfe_u32 v{t2}, v0, 1, 2")
    I(f"v_lshl_add_u32 v{t0}, v{t2}, 11, v{t0}")
    I(f"v_add_u32 v{vra}, {LDS_E}, v{t0}")
    tw = P.alloc(8)
    I(f"s_cmp_eq_u32 s{sK2}, 32")
    I(f"s_cselect_b32 s50, 0x3c800000, 0")
    I(f"v_cvt_f32_u32 v{t0}, v{vs1}")
    I(f"v_mul_f32 v{t0}, s50, v{t0}")
    I(f"v_cvt_f32_u32 v{t2}, s{sKB4}")
    I(f"v_mul_f32 v{t2}, 0x3d800000, v{t2}")
    for b0 in range(4):
        if b0: I(f"v_add_f32 v{t0}, v{t0}, v{t2}")
        I(f"v_cos_f32 v{tw+2*b0}, v{t0}"); I(f"v_sin_f32 v{tw+2*b0+1}, v{t0}")
    I(f"s_mov_b32 s48, 67584")
    I(f"v_mul_lo_u32 v{vs1}, v{vs1}, s48")
    I(f"v_lshl_add_u32 v{vs1}, v{t1}, 4, v{vs1}")
    I(f"s_lshl_b32 s52, s{sK2}, 9")
    I(f"s_lshl_b32 s49, s{sKB4}, 7")
    I(f"s_add_u32 s52, s52, s49")
    I(f"s_add_u32 s52, s52, {OFF_V}")
    ST.stamp()
    A.wait_vm_all(); sw_barrier(A, 2, "F0", t0, t1)
    ST.stamp()
    for (X, off) in ((RE, 0), (IM, 8)):
        for p in range(4):
            I(f"ds_read_b64 v[{X+2*p}:{X+2*p+1}], v{va1 if p & 1 else va} offset:{256*(p>>1) + off}")
    wreads = [f"ds_read2_b32 v[{wf+i}:{wf+i+1}], v{vw} offset0:{32*(i>>2) + 4*(i&3)} offset1:{32*(i>>2) + 4*(i&3) + 4}" for i in range(0, 16, 2)]
    wunp = []
    for i in range(16):
        wunp.append(f"v_lshlrev_b32 v{wr_+i}, 16, v{wf+i}")
        wunp.append(f"v_and_b32 v{wf+i}, 0xffff0000, v{wf+i}")
    def chain(Dq, X, S_, key, first):
        L = []
        for T_ in S_:
            for h in range(2):
                c = "0" if first else f"v[{Dq}:{Dq+15}]"
                L.append(f"v_mfma_f32_32x32x16_bf16 v[{Dq}:{Dq+15}], v[{X+4*h}:{X+4*h+3}], v[{T_[key]+4*h}:{T_[key]+4*h+3}], {c}")
                first = False
        return L
    def conv(Dq, X):
        return [f"v_cvt_pk_bf16_f32 v{X+k}, v{Dq+2*k}, v{Dq+2*k+1}" for k in range(8)]
    per = 6
    pend = wreads
    for st in range(4):
        dre, dim = D[st & 1]
        S_ = sets[1 if st == 2 else 0]
        merge(A, chain(dre, RE, S_, 'C', True) + chain(dim, RE, S_, 'N', True), pend, per)
        extra = wunp[:12] if st == 0 else (wunp[12:] if st == 1 else [])
        if st == 0 or st == 2:
            merge(A, chain(dre, IM, S_, 'S', False), extra, per)
            merge(A, chain(dim, IM, S_, 'C', False), [], per)
            for x_ in conv(dre, RE): I(x_)
            pend = conv(dim, IM)
        elif st == 1:
            merge(A, chain(dre, IM, S_, 'S', False) + chain(dim, IM, S_, 'C', False), extra, per)
            ore, oim = D[0]
            for i in range(16): I(f"v_mul_f32 v{ore+i}, v{dre+i}, v{wr_+i}")
            for i in range(16):
                I(f"v_fma_f32 v{ore+i}, -v{dim+i}, v{wf+i}, v{ore+i}")
                if i & 1: I(f"v_cvt_pk_bf16_f32 v{RE+(i>>1)}, v{ore+i-1}, v{ore+i}")
            pend = []
            for i in range(16):
                pend.append(f"v_mul_f32 v{dim+i}, v{dim+i}, v{wr_+i}")
                pend.append(f"v_fma_f32 v{dim+i}, -v{dre+i}, v{wf+i}, -v{dim+i}")
                if i & 1: pend.append(f"v_cvt_pk_bf16_f32 v{IM+(i>>1)}, v{dim+i-1}, v{dim+i}")
        else:
            for m_ in chain(dre, IM, S_, 'S', False) + chain(dim, IM, S_, 'C', False): I(m_)
    ST.stamp()
    dre, dim = D[1]
    for p in range(4):
        I(f"ds_write_b128 v{wa[p]}, v[{dre+4*p}:{dre+4*p+3}] offset:{p*2048}")
    for p in range(4):
        I(f"ds_write_b128 v{wa[p]}, v[{dim+4*p}:{dim+4*p+3}] offset:{p*2048+1024}")
    sw_barrier(A, 1, "F", t0, t1)
    cr = [D[0][0] + 4*k for k in range(4)]; ci = [D[0][1] + 4*k for k in range(4)]
    for k in (0, 2, 1, 3):
        I(f"ds_read_b128 v[{cr[k]}:{cr[k]+3}], v{vra} offset:{k*8192}")
        I(f"ds_read_b128 v[{ci[k]}:{ci[k]+3}], v{vra} offset:{k*8192+1024}")
    ar = [dre + 4*k for k in range(4)]; ai = [dim + 4*k for k in range(4)]
    for e in range(4):
        I(f"v_add_f32 v{ar[0]+e}, v{cr[0]+e}, v{cr[2]+e}"); I(f"v_sub_f32 v{ar[1]+e}, v{cr[0]+e}, v{cr[2]+e}")
        I(f"v_add_f32 v{ai[0]+e}, v{ci[0]+e}, v{ci[2]+e}"); I(f"v_sub_f32 v{ai[1]+e}, v{ci[0]+e}, v{ci[2]+e}")
    for e in range(4):
        I(f"v_add_f32 v{ar[2]+e}, v{cr[1]+e}, v{cr[3]+e}"); I(f"v_sub_f32 v{ar[3]+e}, v{cr[1]+e}, v{cr[3]+e}")
        I(f"v_add_f32 v{ai[2]+e}, v{ci[1]+e}, v{ci[3]+e}"); I(f"v_sub_f32 v{ai[3]+e}, v{ci[1]+e}, v{ci[3]+e}")
    oq = [RE, RE + 4, IM, IM + 4]
    for b0 in range(4):
        xr, xi = cr[b0], ci[b0]
        for e in range(4):
            if b0 == 0:
                I(f"v_add_f32 v{xr+e}, v{ar[0]+e}, v{ar[2]+e}"); I(f"v_add_f32 v{xi+e}, v{ai[0]+e}, v{ai[2]+e}")
            elif b0 == 2:
                I(f"v_sub_f32 v{xr+e}, v{ar[0]+e}, v{ar[2]+e}"); I(f"v_sub_f32 v{xi+e}, v{ai[0]+e}, v{ai[2]+e}")
            elif b0 == 1:
                I(f"v_add_f32 v{xr+e}, v{ar[1]+e}, v{ai[3]+e}"); I(f"v_sub_f32 v{xi+e}, v{ai[1]+e}, v{ar[3]+e}")
            else:
                I(f"v_sub_f32 v{xr+e}, v{ar[1]+e}, v{ai[3]+e}"); I(f"v_add_f32 v{xi+e}, v{ai[1]+e}, v{ar[3]+e}")
        c_, s_ = tw + 2*b0, tw + 2*b0 + 1
        for e in range(4):
            I(f"v_mul_f32 v{wf+2*e}, v{xr+e}, v{c_}")
            I(f"v_mul_f32 v{wf+2*e+1}, v{xi+e}, v{c_}")
            I(f"v_fmac_f32 v{wf+2*e}, v{xi+e}, v{s_}")
            I(f"v_fma_f32 v{wf+2*e+1}, -v{xr+e}, v{s_}, v{wf+2*e+1}")
            I(f"v_cvt_pk_bf16_f32 v{oq[b0]+e}, v{wf+2*e}, v{wf+2*e+1}")
        I(f"buffer_store_dwordx4 v[{oq[b0]}:{oq[b0]+3}], v{vs1}, s[{WS_}:{WS_+3}], s52 offen {SC}")
        if b0 < 3: I(f"s_add_u32 s52, s52, 16896")
    ST.stamp(); ST.dump(sWV, WS_)
    I("s_endpgm")
    return P.hi

def gen_kv(A, ST):
    I = A.I
    P = Pool('v', 1, 256)
    sHp = 16
    I(f"s_sub_u32 s{sHp}, s2, 160")
    vG, vM = P.alloc(), P.alloc()
    I(f"v_lshrrev_b32 v{vG}, 4, v0")
    I(f"v_and_b32 v{vM}, 15, v0")
    t0, t1, t2, t3 = [P.alloc() for _ in range(4)]
    part = P.alloc(64, 4)
    I(f"v_lshlrev_b32 v{t0}, 4, v0")
    I(f"s_lshl_b32 s48, s{sHp}, 16")
    I(f"s_lshl_b32 s49, s{sW}, 13")
    I(f"s_add_u32 s48, s48, s49")
    I(f"s_add_u32 s48, s48, {OFF_KVP}")
    I(f"s_add_u32 s49, s48, 4096")
    I(f"s_add_u32 s50, s48, 32768")
    I(f"s_add_u32 s51, s48, 36864")
    for i in range(16):
        I(f"buffer_load_dwordx4 v[{part+4*i}:{part+4*i+3}], v{t0}, s[{WS_}:{WS_+3}], s{48 + (i>>2)} offen offset:{1024*(i&3)}")
    wo = P.alloc(32, 2)
    I(f"v_lshlrev_b32 v{t1}, 12, v{vG}")
    I(f"v_lshl_add_u32 v{t1}, v{vM}, 3, v{t1}")
    I(f"s_lshl_b32 s54, s{sHp}, 15")
    I(f"s_lshl_b32 s55, s{sW}, 8")
    I(f"s_add_u32 s54, s54, s55")
    I(f"s_add_u32 s55, s54, 16384")
    for G in range(2):
        for h in range(2):
            for jj in range(4):
                r = wo + 16 * G + 8 * h + 2 * jj
                I(f"buffer_load_dwordx2 v[{r}:{r+1}], v{t1}, s[{WO_}:{WO_+3}], s{54+h} offen offset:{1024*jj + 128*G}")
    I(f"s_lshl_b32 s48, s{sW}, 11")
    I(f"v_add_u32 v{t0}, {LDS_T}, v{t0}")
    I(f"v_add_u32 v{t2}, s48, v{t0}")
    for h in range(2):
        b_ = part + 32 * h
        for i in range(1, 8):
            for c in range(4): I(f"v_add_f32 v{b_+c}, v{b_+c}, v{b_+4*i+c}")
        I(f"ds_write_b128 v{t2}, v[{b_}:{b_+3}] offset:{1024*h}")
    sw_barrier(A, 1, "KV", t2, t3)
    kva = P.alloc(4, 2)
    for h in range(2):
        b_ = part + 32 * h + 4
        for i in range(4):
            I(f"ds_read_b128 v[{b_+4*i}:{b_+3+4*i}], v{t0} offset:{2048*i + 1024*h}")
    I("s_mov_b32 s52, 0x05040100"); I("s_mov_b32 s53, 0x07060302")
    bq = P.alloc(32, 2); dd = P.alloc(64, 4); oo = P.alloc(32, 4)
    for G in range(2):
        for h in range(2):
            for e in range(4):
                b_ = bq + 16 * G + 8 * h + 2 * e
                for hp in range(2):
                    r0 = wo + 16 * G + 8 * h + 4 * hp + (e >> 1); r1 = r0 + 2
                    I(f"v_perm_b32 v{b_+hp}, v{r1}, v{r0}, s{52 + (e & 1)}")
    for h in range(2):
        b_ = part + 32 * h + 4
        for c in range(4):
            I(f"v_add_f32 v{b_+c}, v{b_+c}, v{b_+4+c}")
            I(f"v_add_f32 v{b_+8+c}, v{b_+8+c}, v{b_+12+c}")
            I(f"v_add_f32 v{b_+c}, v{b_+c}, v{b_+8+c}")
        I(f"v_cvt_pk_bf16_f32 v{kva+2*h}, v{b_}, v{b_+1}")
        I(f"v_cvt_pk_bf16_f32 v{kva+2*h+1}, v{b_+2}, v{b_+3}")
    I(f"v_lshrrev_b32 v{t2}, 2, v{vM}")
    I(f"v_lshlrev_b32 v{t2}, 14, v{t2}")
    I(f"v_and_b32 v{t3}, 3, v{vM}")
    I(f"v_lshl_add_u32 v{t2}, v{t3}, 6, v{t2}")
    I(f"v_lshl_add_u32 v{t2}, v{vG}, 8, v{t2}")
    I(f"s_lshl_b32 s48, s{sW}, 17")
    I(f"s_lshl_b32 s49, s{sHp}, 10")
    I(f"s_add_u32 s48, s48, s49")
    I(f"s_add_u32 s48, s48, {OFF_KVWO}")
    I(f"s_add_u32 s49, s48, 65536")
    for G in range(2):
        for e in range(4):
            for h in range(2):
                b_ = bq + 16 * G + 8 * h + 2 * e; d_ = dd + 32 * G + 8 * e + 4 * h
                I(f"v_mfma_f32_16x16x16_bf16 v[{d_}:{d_+3}], v[{kva+2*h}:{kva+2*h+1}], v[{b_}:{b_+1}], 0")
    for G in range(2):
        for e in range(4):
            o_ = oo + 16 * G + 4 * e
            for k in range(4):
                I(f"v_cvt_pk_bf16_f32 v{o_+k}, v{dd+32*G+8*e+2*k}, v{dd+32*G+8*e+2*k+1}")
            I(f"buffer_store_dwordx4 v[{o_}:{o_+3}], v{t2}, s[{WS_}:{WS_+3}], s{48+G} offen offset:{16*e}")
    ST.stamp(); ST.dump(sWV, WS_)
    I("s_endpgm")
    return P.hi

def gen_q(A, ST):
    I = A.I
    P = Pool('v', 1, 256)
    sJ, sS1 = 16, 18
    decode_wg(A, "s2", sJ, sS1)
    vG, vM = P.alloc(), P.alloc()
    t0, t1, t2, t3 = [P.alloc() for _ in range(4)]
    zr = P.alloc(8, 4); gv = P.alloc(); pqr = P.alloc(8, 2)
    va, v8 = P.alloc(), P.alloc()
    I(f"v_lshlrev_b32 v{va}, 4, v0")
    I(f"v_lshlrev_b32 v{v8}, 3, v0")
    I(f"s_lshl_b32 s48, s{sJ}, 2")
    I(f"s_add_u32 s49, s48, s{sW}")
    I(f"s_lshl_b32 s49, s49, 11")
    I(f"s_add_u32 s49, s49, {OFF_ZP}")
    I(f"buffer_load_dwordx4 v[{zr}:{zr+3}], v{va}, s[{WS_}:{WS_+3}], s49 offen")
    I(f"buffer_load_dwordx4 v[{zr+4}:{zr+7}], v{va}, s[{WS_}:{WS_+3}], s49 offen offset:1024")
    I(f"s_lshl_b32 s50, s{sS1}, 16")
    I(f"s_lshl_b32 s51, s{sW}, 14")
    I(f"s_add_u32 s50, s50, s51")
    I(f"s_lshl_b32 s51, s{sJ}, 11")
    I(f"s_add_u32 s50, s50, s51")
    I(f"s_add_u32 s51, s50, {OFF_PQ}")
    I(f"s_add_u32 s50, s50, {OFF_APP}")
    for hd in range(4):
        I(f"buffer_load_dwordx2 v[{pqr+2*hd}:{pqr+2*hd+1}], v{v8}, s[{WS_}:{WS_+3}], s51 offen offset:{512*hd}")
    I(f"v_lshrrev_b32 v{vG}, 4, v0")
    I(f"v_and_b32 v{vM}, 15, v0")
    I(f"v_lshlrev_b32 v{t1}, 2, v{vM}")
    I(f"s_lshl_b32 s52, s{sS1}, 8")
    I(f"s_lshl_b32 s53, s{sW}, 6")
    I(f"s_add_u32 s52, s52, s53")
    I(f"s_add_u32 s52, s52, {OFF_G}")
    I(f"buffer_load_dword v{gv}, v{t1}, s[{WS_}:{WS_+3}], s52 offen")
    I(f"v_add_u32 v{t2}, s53, v{va}")
    I(f"v_lshlrev_b32 v{t3}, 4, v{vG}")
    ST.stamp()
    for c in range(4): I(f"v_add_f32 v{zr+c}, v{zr+c}, v{zr+4+c}")
    for sh in (8, 4):
        for c in range(4):
            I(f"v_add_f32_dpp v{zr+c}, v{zr+c}, v{zr+c} row_ror:{sh} row_mask:0xf bank_mask:0xf")
    for c in range(4): I(f"v_mov_b32 v{zr+4+c}, v{zr+c}")
    for c in range(4): I(f"v_permlane32_swap_b32 v{zr+c}, v{zr+4+c}")
    for c in range(4): I(f"v_add_f32 v{zr+c}, v{zr+c}, v{zr+4+c}")
    for c in range(4): I(f"v_mov_b32 v{zr+4+c}, v{zr+c}")
    for c in range(4): I(f"v_permlane16_swap_b32 v{zr+c}, v{zr+4+c}")
    for c in range(4): I(f"v_add_f32 v{zr+c}, v{zr+c}, v{zr+4+c}")
    I(f"v_cvt_pk_bf16_f32 v{zr+4}, v{zr}, v{zr+1}")
    I(f"v_cvt_pk_bf16_f32 v{zr+5}, v{zr+2}, v{zr+3}")
    I(f"v_lshlrev_b32 v{zr}, 16, v{zr+4}"); I(f"v_and_b32 v{zr+1}, 0xffff0000, v{zr+4}")
    I(f"v_lshlrev_b32 v{zr+2}, 16, v{zr+5}"); I(f"v_and_b32 v{zr+3}, 0xffff0000, v{zr+5}")
    I("s_mov_b64 exec, 15")
    I(f"ds_write_b128 v{t2}, v[{zr}:{zr+3}]")
    I("s_mov_b64 exec, -1")
    c_ = [P.alloc(4, 4) for hd in range(4)]
    for hd in range(4):
        for pr in range(2):
            I(f"v_lshlrev_b32 v{c_[hd]+2*pr}, 16, v{pqr+2*hd+pr}")
            I(f"v_and_b32 v{c_[hd]+2*pr+1}, 0xffff0000, v{pqr+2*hd+pr}")
    sw_barrier(A, 0, "Q", t0, t1)
    zq = [P.alloc(4, 4) for hd in range(4)]
    for hd in range(4): I(f"ds_read_b128 v[{zq[hd]}:{zq[hd]+3}], v{t3} offset:{hd*64}")
    den = P.alloc(4, 4); oq = [P.alloc(4, 4), P.alloc(4, 4)]
    for hd in range(4):
        I(f"v_mul_f32 v{den+hd}, v{c_[hd]}, v{zq[hd]}")
        for i in range(1, 4): I(f"v_fmac_f32 v{den+hd}, v{c_[hd]+i}, v{zq[hd]+i}")
    I(f"v_permlane32_swap_b32 v{den}, v{den+2}")
    I(f"v_permlane32_swap_b32 v{den+1}, v{den+3}")
    I(f"v_add_f32 v{den}, v{den}, v{den+2}")
    I(f"v_add_f32 v{den+1}, v{den+1}, v{den+3}")
    I(f"v_permlane16_swap_b32 v{den}, v{den+1}")
    I(f"v_add_f32 v{den}, v{den}, v{den+1}")
    I(f"v_add_f32 v{den}, 0x358637bd, v{den}")
    I(f"v_rcp_f32 v{den}, v{den}")
    I(f"v_mul_f32 v{den}, v{den}, v{gv}")
    I(f"v_mov_b32 v{den+1}, v{den}")
    I(f"v_permlane16_swap_b32 v{den}, v{den+1}")
    I(f"v_mov_b32 v{den+2}, v{den}"); I(f"v_mov_b32 v{den+3}, v{den+1}")
    I(f"v_permlane32_swap_b32 v{den}, v{den+2}")
    I(f"v_permlane32_swap_b32 v{den+1}, v{den+3}")
    for hd in range(4):
        c = c_[hd]
        for i in range(4): I(f"v_mul_f32 v{c+i}, v{c+i}, v{den+hd}")
        o_ = oq[hd >> 1] + 2 * (hd & 1)
        I(f"v_cvt_pk_bf16_f32 v{o_}, v{c}, v{c+1}")
        I(f"v_cvt_pk_bf16_f32 v{o_+1}, v{c+2}, v{c+3}")
        if hd & 1:
            q_ = oq[hd >> 1]
            I(f"buffer_store_dwordx4 v[{q_}:{q_+3}], v{va}, s[{WS_}:{WS_+3}], s50 offen offset:{1024*(hd>>1)} {SC}")
    ST.stamp(); ST.dump(sWV, WS_)
    return P.hi

def gen_k2():
    A = Asm(); I = A.I
    I(f"s_cmp_ge_u32 s2, {K2_GRID}")
    I("s_cbranch_scc1 K2_END")
    ST = Stamper(A, 1); ST.first()
    I("s_load_dwordx4 s[4:7], s[0:1], 0")
    I("s_load_dwordx2 s[8:9], s[0:1], 16")
    I("s_load_dwordx2 s[14:15], s[0:1], 72")
    I("v_lshrrev_b32 v1, 6, v0")
    I("v_and_b32 v0, 63, v0")
    I(f"v_readfirstlane_b32 s{sWV}, v1")
    I(f"v_mov_b32 v2, {LDS_FLAG}")
    I(f"v_mov_b32 v4, 0"); I(f"v_mov_b32 v5, 0"); I(f"v_mov_b32 v6, 0"); I(f"v_mov_b32 v7, 0")
    I(f"ds_write_b128 v2, v[4:7]")
    srd(A, WS_, 14, WS_BYTES)
    I(f"s_and_b32 s{sW}, s{sWV}, 3")
    srd(A, WO_, 8, 524288)
    A.barrier()
    I(f"s_cmp_ge_u32 s{sWV}, 4")
    A.drain_hazards()
    I("s_cbranch_scc1 K2_Q" if not os.environ.get("NOQ") else "s_cbranch_scc1 K2_END")
    I(f"s_cmp_ge_u32 s2, 176")
    I("s_cbranch_scc1 K2_END")
    I(f"s_cmp_ge_u32 s2, 160")
    I("s_cbranch_scc1 K2_KV")
    I(f"s_and_b32 s48, s2, 0x87")
    I(f"s_cmp_gt_u32 s48, 0x80")
    I("s_cbranch_scc1 K2_END")
    h1 = gen_fft(A, ST)
    A.label("K2_KV"); ST.begin_role()
    h2 = gen_kv(A, ST)
    A.label("K2_Q"); ST.begin_role()
    h3 = gen_q(A, ST)
    A.label("K2_END")
    I("s_endpgm")
    return A.text(), max(h1, h2, h3), 0, A.ninst

if __name__ == "__main__":
    t, vg, ag, n = gen_k2(); print(vg, ag, n)
```

```python
from common_k import *
import struct, os
def f32(x): return hex(struct.unpack('<I', struct.pack('<f', x))[0])
LDS_V = 49152
K3_LDS = 49152 + 4 * 2048 + 1024

def gen_k3():
    A = Asm(); I = A.I
    I("s_cmp_ge_u32 s2, 256")
    I("s_cbranch_scc1 K3_END")
    ST = Stamper(A, 2); ST.first()
    I("s_load_dwordx2 s[12:13], s[0:1], 56")
    I("s_load_dwordx2 s[14:15], s[0:1], 72")
    sJ, sS1, sW = 16, 18, 20
    I("v_lshrrev_b32 v1, 6, v0")
    I("v_and_b32 v0, 63, v0")
    I(f"v_readfirstlane_b32 s{sW}, v1")
    decode_wg(A, "s2", sJ, sS1)
    OUT_, WS_ = 40, 44
    P = Pool('v', 1, 256); PA = Pool('a', 0, 256)
    vG, vM, vL16 = P.alloc(), P.alloc(), P.alloc()
    I(f"v_lshlrev_b32 v{vL16}, 4, v0")
    I(f"v_lshrrev_b32 v{vG}, 4, v0")
    I(f"v_and_b32 v{vM}, 15, v0")
    t0, t1, t2, t3, t4, t5 = [P.alloc() for _ in range(6)]
    I(f"s_lshl_b32 s48, s{sS1}, 2")
    I(f"s_lshr_b32 s49, s{sJ}, 1")
    I(f"s_add_u32 s48, s48, s49")
    I(f"s_mul_i32 s48, s48, 16896")
    I(f"s_and_b32 s49, s{sJ}, 1")
    I(f"s_lshl_b32 s49, s49, 6")
    I(f"s_add_u32 s48, s48, s49")
    I(f"s_add_u32 s51, s48, {OFF_V + 16384 - 1536}")
    I(f"s_lshl_b32 s49, s{sW}, 11")
    I(f"s_add_u32 s53, s49, {LDS_V}")
    I(f"s_mov_b32 m0, s53")
    I(f"s_lshl_b32 s49, s{sW}, 12")
    I(f"s_add_u32 s48, s48, s49")
    I(f"s_add_u32 s48, s48, {OFF_V}")
    I(f"s_add_u32 s50, s48, 1024")
    I(f"v_lshrrev_b32 v{t0}, 2, v0")
    I(f"v_and_b32 v{t2}, 3, v0")
    I(f"v_lshlrev_b32 v{t2}, 4, v{t2}")
    I(f"v_lshl_add_u32 v{t2}, v{t0}, 7, v{t2}")
    srd(A, WS_, 14, WS_BYTES)
    I(f"buffer_load_dwordx4 v{t2}, s[{WS_}:{WS_+3}], s48 offen lds", tag='v')
    I(f"buffer_load_dwordx4 v{t2}, s[{WS_}:{WS_+3}], s50 offen offset:1024 lds", tag='v')
    I(f"s_mov_b32 m0, {LDS_V + 8192}")
    I(f"s_cmp_lg_u32 s{sW}, 0")
    I("s_cbranch_scc1 K3_NOSPL")
    A.raw(f"    buffer_load_dwordx4 v{t2}, s[{WS_}:{WS_+3}], s51 offen lds")
    A.raw("K3_NOSPL:")
    for a_ in range(4):
        I(f"s_add_u32 s{66+a_}, s{sW}, {a_}")
        I(f"s_and_b32 s{66+a_}, s{66+a_}, 3")
    gv = P.alloc(4)
    I(f"v_lshlrev_b32 v{t1}, 2, v{vM}")
    I(f"s_lshl_b32 s48, s{sS1}, 8")
    I(f"s_add_u32 s48, s48, {OFF_G}")
    for a_ in range(4):
        I(f"s_lshl_b32 s50, s{66+a_}, 6")
        I(f"s_add_u32 s50, s50, s48")
        I(f"buffer_load_dword v{gv+a_}, v{t1}, s[{WS_}:{WS_+3}], s50 offen", tag='g')
    af = [[PA.alloc(4, 4) for a_ in range(4)] for ks in range(4)]
    bf = [[PA.alloc(4, 4) for e in range(4)] for ks in range(4)]
    acc = [[PA.alloc(4, 4) for e in range(4)] for a_ in range(4)]
    I(f"s_lshl_b32 s48, s{sS1}, 16")
    I(f"s_add_u32 s48, s48, s49")
    I(f"s_add_u32 s48, s48, {OFF_APP}")
    for a_ in range(4):
        I(f"s_lshl_b32 s{70+a_}, s{66+a_}, 14")
        I(f"s_add_u32 s{70+a_}, s{70+a_}, s48")
    I(f"s_lshl_b32 s54, s{sJ}, 14")
    I(f"s_add_u32 s54, s54, s49")
    I(f"s_add_u32 s54, s54, {OFF_KVWO}")
    for e in range(1, 4): I(f"s_add_u32 s{54+e}, s54, {131072*e}")
    L = Rec()
    for ks in range(4):
        for i in range(4):
            L.I(f"buffer_load_dwordx4 a[{af[ks][i]}:{af[ks][i]+3}], v{vL16}, s[{WS_}:{WS_+3}], s{70+i} offen offset:{1024*ks}")
            L.I(f"buffer_load_dwordx4 a[{bf[ks][i]}:{bf[ks][i]+3}], v{vL16}, s[{WS_}:{WS_+3}], s{54+i} offen offset:{1024*ks}")
    lu = L.units()
    NB = int(os.environ.get("K3NB", "10"))
    for u in lu[:NB]: play(A, u)
    L2 = Rec(); L2.ops = L.ops[NB:]
    ST.stamp()
    T = Rec(); TI = T.I
    kA, kB = P.alloc(), P.alloc()
    split_consts(T, kA, kB)
    srd(T, OUT_, 12, 2097152)
    T.group()
    TI(f"s_cmp_eq_u32 s{sW}, 0")
    TI("s_cselect_b64 s[64:65], 0xffff, 0")
    T.endgroup()
    gf = [[P.alloc(4, 4) for hl in range(2)] for a_ in range(4)]
    vk = [P.alloc(), P.alloc()]; vph = [P.alloc(), P.alloc()]; vpm = P.alloc()
    cs = P.alloc(16, 2)
    TI(f"s_lshl_b32 s52, s{sW}, 3")
    TI(f"v_lshl_add_u32 v{t0}, v{vG}, 1, s52")
    TI(f"v_lshl_add_u32 v{t1}, v{vM}, 5, s{sS1}")
    TI(f"v_cvt_f32_u32 v{t1}, v{t1}")
    TI(f"v_mul_f32 v{t1}, 0x3a000000, v{t1}")
    TI(f"v_cvt_f32_u32 v{vk[0]}, v{t0}")
    TI(f"v_add_f32 v{vk[1]}, 1.0, v{vk[0]}")
    for kk in range(2):
        TI(f"v_mul_f32 v{vph[kk]}, v{t1}, v{vk[kk]}")
        TI(f"v_mul_f32 v{vk[kk]}, 0x3e800000, v{vk[kk]}")
    TI(f"v_lshlrev_b32 v{vpm}, 31, v{vM}")
    TI(f"v_or_b32 v{vpm}, 0.5, v{vpm}")
    for a_ in range(4):
        TI(f"v_cvt_f32_u32 v{t2}, s{66+a_}")
        for kk in range(2):
            TI(f"v_fma_f32 v{t0}, v{t2}, v{vk[kk]}, v{vph[kk]}")
            TI(f"v_cos_f32 v{cs+4*a_+2*kk}, v{t0}")
            TI(f"v_sin_f32 v{cs+4*a_+2*kk+1}, v{t0}")
    T.group()
    TI("s_mov_b64 exec, s[64:65]")
    for a_ in range(4):
        TI(f"v_mov_b32 v{cs+4*a_}, 0.5")
        TI(f"v_mov_b32 v{cs+4*a_+1}, v{vpm}")
    TI("s_mov_b64 exec, -1")
    T.endgroup()
    for a_ in range(4):
        TI(f"v_sub_f32 v{t0}, 1.0, v{gv+a_}")
        TI(f"v_cvt_pk_bf16_f32 v{t0}, v{t0}, v{t0}")
        TI(f"v_and_b32 v{t0}, 0xffff0000, v{t0}")
        TI(f"v_mul_f32 v{t0}, {f32(2.0**-19)}, v{t0}")
        for i in range(4): TI(f"v_mul_f32 v{cs+4*a_+i}, v{cs+4*a_+i}, v{t0}")
    split_many(T, [(gf[a_][0] + kk, gf[a_][1] + kk, cs + 4*a_ + 2*kk, cs + 4*a_ + 2*kk + 1, gf[a_][0] + 2 + kk, gf[a_][1] + 2 + kk)
                   for a_ in range(4) for kk in range(2)], kA, kB)
    vv, vv2 = P.alloc(), P.alloc()
    TI(f"v_lshlrev_b32 v{t0}, 2, v{vM}")
    TI(f"v_add_u32 v{vv2}, {LDS_V + 8192 + 768}, v{t0}")
    TI(f"v_lshl_add_u32 v{t0}, v{vG}, 9, v{t0}")
    TI(f"v_add_u32 v{vv}, s53, v{t0}")
    I = TI
    c = [[P.alloc(2, 2) for k4 in range(4)] for kk in range(3)]
    pk = P.alloc(12, 2)
    for kk in range(3):
        for kp in range(2):
            I(f"ds_read2_b32 v[{pk+4*kk+2*kp}:{pk+4*kk+2*kp+1}], v{vv if kk < 2 else vv2} offset0:{(kk&1)*64*(kk<2) + kp*32} offset1:{(kk&1)*64*(kk<2) + kp*32 + 16}")
    for kk in range(3):
        for k4 in range(4):
            I(f"v_lshlrev_b32 v{c[kk][k4]}, 16, v{pk+4*kk+k4}")
            I(f"v_and_b32 v{c[kk][k4]+1}, 0xffff0000, v{pk+4*kk+k4}")
    u = P.alloc(16, 2)
    sd = P.alloc(8)
    for kk in range(2):
        cc = c[kk]
        for ri in range(2):
            I(f"v_add_f32 v{sd+ri}, v{cc[0]+ri}, v{cc[2]+ri}")
            I(f"v_sub_f32 v{sd+2+ri}, v{cc[0]+ri}, v{cc[2]+ri}")
            I(f"v_add_f32 v{sd+4+ri}, v{cc[1]+ri}, v{cc[3]+ri}")
            I(f"v_sub_f32 v{sd+6+ri}, v{cc[1]+ri}, v{cc[3]+ri}")
        for ri in range(2):
            I(f"v_add_f32 v{u+2*kk+ri}, v{sd+ri}, v{sd+4+ri}")
            I(f"v_sub_f32 v{u+8+2*kk+ri}, v{sd+ri}, v{sd+4+ri}")
        I(f"v_add_f32 v{u+4+2*kk}, v{sd+2}, v{sd+7}")
        I(f"v_sub_f32 v{u+4+2*kk+1}, v{sd+3}, v{sd+6}")
        I(f"v_sub_f32 v{u+12+2*kk}, v{sd+2}, v{sd+7}")
        I(f"v_add_f32 v{u+12+2*kk+1}, v{sd+3}, v{sd+6}")
    cc = c[2]
    T.group()
    I("s_mov_b64 exec, s[64:65]")
    I(f"v_add_f32 v{sd}, v{cc[0]}, v{cc[2]}")
    I(f"v_sub_f32 v{sd+2}, v{cc[0]}, v{cc[2]}")
    I(f"v_add_f32 v{sd+4}, v{cc[1]}, v{cc[3]}")
    I(f"v_sub_f32 v{sd+7}, v{cc[1]+1}, v{cc[3]+1}")
    I(f"v_add_f32 v{u+1}, v{sd}, v{sd+4}")
    I(f"v_sub_f32 v{u+9}, v{sd}, v{sd+4}")
    I(f"v_add_f32 v{u+5}, v{sd+2}, v{sd+7}")
    I(f"v_sub_f32 v{u+13}, v{sd+2}, v{sd+7}")
    I("s_mov_b64 exec, -1")
    T.endgroup()
    uq = [P.alloc(4, 4) for e in range(4)]
    split_many(T, [(uq[e] + kk, uq[e] + 2 + kk, u + 4*e + 2*kk, u + 4*e + 2*kk + 1, None, None) for e in range(4) for kk in range(2)], kA, kB)
    for e in range(4):
        for a_ in range(4):
            c_ = acc[a_][e]
            I(f"v_mfma_f32_16x16x32_bf16 a[{c_}:{c_+3}], v[{uq[e]}:{uq[e]+3}], v[{gf[a_][0]}:{gf[a_][0]+3}], 0")
    for e in range(4):
        for a_ in range(4):
            c_ = acc[a_][e]
            I(f"v_mfma_f32_16x16x32_bf16 a[{c_}:{c_+3}], v[{uq[e]}:{uq[e]+3}], v[{gf[a_][1]}:{gf[a_][1]+3}], a[{c_}:{c_+3}]")
    vf = P.alloc()
    I(f"s_mul_i32 s48, s{sW}, 12288")
    I(f"v_add_u32 v{t0}, s48, v{vL16}")
    for a_ in range(1, 4):
        I(f"s_sub_u32 s48, s{sW}, {a_}")
        I(f"s_and_b32 s48, s48, 3")
        I(f"s_mul_i32 s48, s48, 12288")
        I(f"v_add_u32 v{t1+a_-1}, s48, v{vL16}")
    I(f"v_lshlrev_b32 v{vf}, 15, v{vM}")
    I(f"v_lshl_add_u32 v{vf}, v{vG}, 3, v{vf}")
    I(f"s_lshl_b32 s48, s{sW}, 9")
    I(f"s_add_u32 s48, s48, s{sS1}")
    I(f"s_lshl_b32 s48, s48, 10")
    I(f"s_lshl_b32 s49, s{sJ}, 5")
    I(f"s_add_u32 s48, s48, s49")
    EV = int(os.environ.get("K3EV", "20"))
    lq = L2.units()
    for i_, u_ in enumerate(T.units()):
        if i_ % EV == 0 and lq: play(A, lq.pop(0))
        play(A, u_)
    I = A.I
    ST.stamp()
    nissued = lambda: 32 - len(lq)
    for ks in range(4):
        while nissued() < 8 * (ks + 1): play(A, lq.pop(0))
        for a_ in ([1, 2, 3, 0] if ks == 3 else range(4)):
            if lq: play(A, lq.pop(0))
            for e in range(4):
                c_ = acc[a_][e]
                I(f"v_mfma_f32_16x16x32_bf16 a[{c_}:{c_+3}], a[{bf[ks][e]}:{bf[ks][e]+3}], a[{af[ks][a_]}:{af[ks][a_]+3}], a[{c_}:{c_+3}]")
            if ks == 3 and a_ in (2, 3, 0):
                pa = {2: 1, 3: 2, 0: 3}[a_]
                for e in range(4):
                    c_ = acc[pa][e]
                    I(f"ds_write_b128 v{t0}, a[{c_}:{c_+3}] offset:{(pa-1)*4096 + e*1024}")
    ST.stamp()
    own = [P.alloc(4, 4) for e in range(4)]
    for e in range(4):
        for i in range(4): I(f"v_accvgpr_read_b32 v{own[e]+i}, a{acc[0][e]+i}")
    A.barrier()
    rd = [[P.alloc(4, 4) for _ in range(3)] for e in range(4)]
    for e in range(4):
        for a_ in range(1, 4):
            c_ = rd[e][a_-1]
            I(f"ds_read_b128 v[{c_}:{c_+3}], v{t1+a_-1} offset:{(a_-1)*4096 + e*1024}")
    for e in range(4):
        for i in range(4):
            I(f"v_add_f32 v{own[e]+i}, v{own[e]+i}, v{rd[e][0]+i}")
            I(f"v_add_f32 v{rd[e][1]+i}, v{rd[e][1]+i}, v{rd[e][2]+i}")
        for i in range(4): I(f"v_add_f32 v{own[e]+i}, v{own[e]+i}, v{rd[e][1]+i}")
        o_ = rd[e][0]
        I(f"v_cvt_pk_bf16_f32 v{o_}, v{own[e]}, v{own[e]+1}")
        I(f"v_cvt_pk_bf16_f32 v{o_+1}, v{own[e]+2}, v{own[e]+3}")
        I(f"buffer_store_dwordx2 v[{o_}:{o_+1}], v{vf}, s[{OUT_}:{OUT_+3}], s48 offen offset:{256*e}")
    ST.stamp(); ST.dump(sW, WS_)
    A.label("K3_END")
    I("s_endpgm")
    return A.text(), P.hi, PA.hi, A.ninst

if __name__ == "__main__":
    t, vg, ag, n = gen_k3(); print(vg, ag, n)
```

```python
from asmgen import *
from layout import *

LOG2E = 0x3fb8aa3b

def srd(A, sreg, ptr_lo, nbytes):
    A.I(f"s_mov_b32 s{sreg}, s{ptr_lo}")
    A.I(f"s_mov_b32 s{sreg+1}, s{ptr_lo+1}")
    A.I(f"s_mov_b32 s{sreg+2}, {hex(nbytes)}")
    A.I(f"s_mov_b32 s{sreg+3}, 0x00020000")

def split_pair(A, hi, lo, a_, b_, t0, t1, hi2=None, lo2=None):
    A.I(f"v_cvt_pk_bf16_f32 v{hi}, v{a_}, v{b_}")
    if hi2 is not None: A.I(f"v_cvt_pk_bf16_f32 v{hi2}, v{a_}, v{b_}")
    A.I(f"v_lshlrev_b32 v{t0}, 16, v{hi}")
    A.I(f"v_and_b32 v{t1}, 0xffff0000, v{hi}")
    A.I(f"v_sub_f32 v{t0}, v{a_}, v{t0}")
    A.I(f"v_sub_f32 v{t1}, v{b_}, v{t1}")
    A.I(f"v_cvt_pk_bf16_f32 v{lo}, v{t0}, v{t1}")
    if lo2 is not None: A.I(f"v_cvt_pk_bf16_f32 v{lo2}, v{t0}, v{t1}")

def split_many(A, items, kA, kB):
    for (hi, lo, a_, b_, hi2, lo2) in items:
        A.I(f"v_cvt_pk_bf16_f32 v{hi}, v{a_}, v{b_}")
        if hi2 is not None: A.I(f"v_mov_b32 v{hi2}, v{hi}")
    for (hi, lo, a_, b_, hi2, lo2) in items:
        A.I(f"v_dot2c_f32_bf16 v{a_}, v{hi}, v{kA}")
        A.I(f"v_dot2c_f32_bf16 v{b_}, v{hi}, v{kB}")
    for (hi, lo, a_, b_, hi2, lo2) in items:
        A.I(f"v_cvt_pk_bf16_f32 v{lo}, v{a_}, v{b_}")
        if lo2 is not None: A.I(f"v_mov_b32 v{lo2}, v{lo}")

def split_consts(A, kA, kB):
    A.I(f"v_mov_b32 v{kA}, 0x0000bf80")
    A.I(f"v_mov_b32 v{kB}, 0xbf800000")

def kernel_wrap(name, body, vgpr, agpr=0, sgpr=100):
    acc = (vgpr + 3) // 4 * 4
    nfv = acc + agpr if agpr else vgpr
    code = f""".globl {name}
.p2align 8
.type {name},@function
{name}:
{body}"""
    desc = f""".p2align 6
.amdhsa_kernel {name}
  .amdhsa_next_free_vgpr {nfv}
  .amdhsa_next_free_sgpr {sgpr}
  .amdhsa_accum_offset {acc}
  .amdhsa_group_segment_fixed_size 0
  .amdhsa_kernarg_size 80
  .amdhsa_user_sgpr_count 2
  .amdhsa_user_sgpr_kernarg_segment_ptr 1
  .amdhsa_system_sgpr_workgroup_id_x 1
.end_amdhsa_kernel
"""
    return code, desc

import os
STAMPS = int(os.environ.get("STAMPS", "0"))
OFF_STAMP = 0x1140000
class Stamper:
    def __init__(self, A, kidx): self.A, self.n, self.kidx = A, 0, kidx
    def begin_role(self): self.n = 1
    def stamp(self, force=False):
        if not STAMPS or (STAMPS >= 2 and not force): return
        assert self.n < 9
        self.A.I(f"s_memtime s[{80+2*self.n}:{81+2*self.n}]"); self.n += 1
    def first(self):
        if not STAMPS: return
        self.A.I("s_memtime s[80:81]"); self.A.raw("    s_memrealtime s[76:77]")
        self.n = 1
    def dump(self, sW, WS_, v0=250):
        if not STAMPS: return
        A = self.A
        A.wait_vm_all()
        A.raw("    s_waitcnt vmcnt(0)")
        self.stamp(True)
        A.raw("    s_memrealtime s[98:99]")
        A.raw("    s_waitcnt lgkmcnt(0)"); A.lgq = []
        A.I("s_mov_b64 exec, 1")
        if STAMPS == 3:
            A.raw("    s_load_dwordx2 s[84:85], s[0:1], 64")
            A.raw("    s_waitcnt lgkmcnt(0)")
            A.raw("    s_mov_b32 s86, 256"); A.raw("    s_mov_b32 s87, 0x00020000")
            A.raw("    v_mov_b32 v1, 0"); A.raw("    v_mov_b32 v2, s98"); A.raw("    s_not_b32 s76, s76"); A.raw("    v_mov_b32 v3, s76")
            A.raw("    buffer_atomic_umax v2, v1, s[84:87], 0 offen")
            A.raw("    buffer_atomic_umax v3, v1, s[84:87], 0 offen offset:4")
            return
        A.I(f"s_lshl_b32 s79, s2, 4"); A.I(f"s_add_u32 s79, s79, s{sW}"); A.I("s_lshl_b32 s79, s79, 6")
        A.I(f"s_add_u32 s79, s79, {OFF_STAMP + self.kidx*0x80000}")
        A.I(f"v_mov_b32 v1, 0")
        for i in range(self.n):
            A.I(f"v_mov_b32 v2, s{80+2*i}")
            A.I(f"buffer_store_dword v2, v1, s[{WS_}:{WS_+3}], s79 offen offset:{4*i}")
        A.I(f"v_mov_b32 v2, s98")
        A.I(f"buffer_store_dword v2, v1, s[{WS_}:{WS_+3}], s79 offen offset:60")
        A.I(f"v_mov_b32 v2, s76")
        A.I(f"buffer_store_dword v2, v1, s[{WS_}:{WS_+3}], s79 offen offset:52")
        A.I(f"v_mov_b32 v2, {self.n}")
        A.I(f"buffer_store_dword v2, v1, s[{WS_}:{WS_+3}], s79 offen offset:56")

XMAP = int(os.environ.get("XMAP", "1"))
def decode_wg(A, b, sJ, sS1, tmp=21, tmp2=22):
    I = A.I
    if XMAP == 2:
        I(f"s_lshr_b32 s{tmp}, {b}, 3")
        I(f"s_add_u32 s{tmp2}, {b}, s{tmp}")
        I(f"s_lshr_b32 s{sS1}, {b}, 5")
        I(f"s_add_u32 s{tmp2}, s{tmp2}, s{sS1}")
        I(f"s_and_b32 s{sJ}, s{tmp2}, 7")
        I(f"s_mov_b32 s{sS1}, s{tmp}")
    elif XMAP == 0:
        I(f"s_lshr_b32 s{tmp}, {b}, 3")
        I(f"s_and_b32 s{sJ}, s{tmp}, 7")
        I(f"s_lshr_b32 s{tmp}, s{tmp}, 3")
        I(f"s_and_b32 s{tmp2}, {b}, 7")
        I(f"s_lshl_b32 s{sS1}, s{tmp2}, 2")
        I(f"s_add_u32 s{sS1}, s{sS1}, s{tmp}")
    else:
        I(f"s_bfe_u32 s{sJ}, {b}, 0x20003")
        I(f"s_and_b32 s{tmp}, {b}, 1")
        I(f"s_lshl_b32 s{tmp}, s{tmp}, 2")
        I(f"s_add_u32 s{sJ}, s{sJ}, s{tmp}")
        I(f"s_lshr_b32 s{sS1}, {b}, 5")
        I(f"s_bfe_u32 s{tmp}, {b}, 0x20001")
        I(f"s_lshl_b32 s{tmp}, s{tmp}, 3")
        I(f"s_add_u32 s{sS1}, s{sS1}, s{tmp}")
```

```python
from common_k import *
import struct
def f32(x): return hex(struct.unpack('<I', struct.pack('<f', x))[0])

LDS_B = 0
LDS_X = 98304
K1_LDS = 163840
K1_THREADS = 768
SC = os.environ.get("K1SC", "sc1")
T2SC = os.environ.get("T2SC", "sc1")
K1P = int(os.environ.get("K1P", "1"))
NTM = int(os.environ.get("NTM", "0"))
NTW = " nt" if NTM & 1 else ""
NTX = " nt" if NTM & 2 else ""
NTB = " nt" if NTM & 4 else ""
NTP = " nt" if NTM & 8 else ""
sJ, sT, sS1, sC0, sW = 16, 17, 18, 19, 20
X_, WQ_, WR_, WI_, GW_, WS_ = 24, 28, 32, 36, 40, 44
vG, vM = 1, 2

def gen_loader(A, ST):
    I = A.I
    P = Pool('v', 3, 168)
    sL = 21
    I(f"s_sub_u32 s{sL}, s{sW}, 8")
    if int(os.environ.get("PRIO", "3")) & 1: I("s_setprio 3")
    t0, t1, t2, t3 = [P.alloc() for _ in range(4)]
    vx = [P.alloc() for _ in range(4)]; vb = [P.alloc() for _ in range(4)]
    I(f"v_xor_b32 v{t0}, v{vG}, v{vM}")
    I(f"v_lshlrev_b32 v{t0}, 4, v{t0}")
    I(f"v_lshl_add_u32 v{vx[0]}, v{vG}, 15, v{t0}")
    I(f"s_lshl_b32 s56, s{sS1}, 10")
    I(f"s_lshl_b32 s57, s{sL}, 19")
    I(f"s_add_u32 s56, s56, s57")
    I(f"s_lshl_b32 s59, s{sL}, 12")
    I(f"s_add_u32 s57, s59, {LDS_X}")
    for i in range(1, 4):
        I(f"v_xor_b32 v{vx[i]}, {64*i}, v{vx[0]}")
        I(f"v_add_u32 v{vx[i]}, {i*131072 - 1024*i}, v{vx[i]}")
    srd(A, X_, 4, 2097152)
    def issue_x(ci, tag):
        I(f"s_add_u32 s48, s{sC0}, {ci}")
        I(f"s_and_b32 s48, s48, 3")
        I(f"s_lshl_b32 s49, s48, 8")
        I(f"s_add_u32 s49, s49, s56")
        I(f"s_lshl_b32 s50, s48, 14")
        I(f"s_add_u32 m0, s50, s57")
        for i in range(4):
            I(f"buffer_load_dwordx4 v{vx[i]}, s[{X_}:{X_+3}], s49 offen offset:{1024*i}{NTX} lds", tag=tag)
    if os.environ.get("DBG1"): ST.stamp()
    issue_x(0, 'c0')
    if os.environ.get("DBG1"):
        ST.stamp(); A.raw("    s_waitcnt vmcnt(3)"); ST.stamp(); A.raw("    s_waitcnt vmcnt(0)"); ST.stamp()
    I(f"v_lshrrev_b32 v{t0}, 3, v0")
    I(f"v_bfe_u32 v{t1}, v0, 4, 1")
    I(f"v_bfe_u32 v{t2}, v0, 1, 2")
    I(f"v_xor_b32 v{t1}, v{t1}, v{t2}")
    I(f"v_lshlrev_b32 v{t1}, 5, v{t1}")
    I(f"v_and_b32 v{t2}, 1, v0")
    I(f"v_lshl_add_u32 v{t1}, v{t2}, 4, v{t1}")
    I(f"v_mul_u32_u24 v{t0}, 3072, v{t0}")
    I(f"v_add_u32 v{vb[0]}, v{t0}, v{t1}")
    I(f"v_xor_b32 v{vb[1]}, 64, v{vb[0]}")
    I(f"v_add_u32 v{vb[1]}, {8*3072 - 1024}, v{vb[1]}")
    srd(A, WQ_, 6, 1572864)
    I(f"s_mul_i32 s58, s{sL}, {16*3072}")
    I(f"s_lshl_b32 s60, s{sJ}, 7")
    I(f"s_add_u32 s58, s58, s60")
    I(f"s_lshl_b32 s59, s{sL}, 11")
    I(f"s_lshl_b32 s61, s{sC0}, 1")
    def issue_b(ci):
        I(f"s_add_u32 s48, s61, {ci}")
        I(f"s_and_b32 s48, s48, 7")
        I(f"s_mul_i32 s60, s48, {64*3072}")
        I(f"s_add_u32 s60, s60, s58")
        for seg in range(3):
            if seg: I(f"s_add_u32 s60, s60, 1024")
            I(f"s_add_u32 m0, s59, {LDS_B + 24576*(ci & 3) + 8192*seg}")
            for i in range(2):
                I(f"buffer_load_dwordx4 v{vb[i]}, s[{WQ_}:{WQ_+3}], s60 offen offset:{1024*i}{NTB} lds", tag=f'c{ci}')
    def sync(tag):
        A.wait_vm_tag(tag); A.barrier()
        if tag in (('c0',) if os.environ.get('DBG1') else ('cx', 'c0', 'c2', 'c4')): ST.stamp()
    srd(A, WS_, 14, WS_BYTES)
    issue_b(0); issue_b(1); issue_x(1, 'c2')
    WT = WTask(A, sL, 128, 136, 160, 161, (162, 163, 164, 165))
    WT.o = 144
    WT.issue()
    srd(A, GW_, 12, 1024)
    gwr = P.alloc(8, 4); xr = P.alloc(8, 4); gl = P.alloc(8); pl = P.alloc(8); ph = P.alloc(8); sacc, ones = P.alloc(), P.alloc()
    I(f"v_and_b32 v{t0}, 31, v0")
    I(f"v_lshlrev_b32 v{t0}, 5, v{t0}")
    for k in range(2):
        I(f"buffer_load_dwordx4 v[{gwr+4*k}:{gwr+4*k+3}], v{t0}, s[{GW_}:{GW_+3}], 0 offen offset:{16*k}")
    GR = Rec(); I = GR.I
    I(f"s_lshl_b32 s64, s{sJ}, 3")
    I(f"s_lshl_b32 s65, s{sL}, 1")
    I(f"s_add_u32 s64, s64, s65")
    I(f"v_lshrrev_b32 v{t0}, 5, v0")
    I(f"v_add_u32 v{t0}, s64, v{t0}")
    I(f"v_and_b32 v{t1}, 7, v0")
    I(f"v_lshlrev_b32 v{t1}, 1, v{t1}")
    I(f"v_and_b32 v{t2}, 15, v{t0}")
    I(f"v_xor_b32 v{t1}, v{t1}, v{t2}")
    I(f"v_lshlrev_b32 v{t1}, 4, v{t1}")
    I(f"v_lshl_add_u32 v{t1}, v{t0}, 8, v{t1}")
    I(f"v_bfe_u32 v{t2}, v0, 3, 2")
    I(f"v_lshl_add_u32 v{t1}, v{t2}, 14, v{t1}")
    I(f"v_add_u32 v{vb[2]}, {LDS_X}, v{t1}")
    I(f"v_xor_b32 v{vb[3]}, 16, v{vb[2]}")
    I(f"v_mov_b32 v{sacc}, 0")
    I(f"v_mov_b32 v{ones}, 0x3f803f80")
    for i in range(8):
        I(f"v_mov_b32 v{pl+i}, 0"); I(f"v_mov_b32 v{ph+i}, 0")
    I(f"s_lshl_b32 s64, s{sS1}, 8")
    I(f"s_add_u32 s64, s64, {OFF_G}")
    I(f"v_lshlrev_b32 v{t0}, 2, v{t0}")
    for k in range(2): I(f"ds_read_b128 v[{xr+4*k}:{xr+4*k+3}], v{vb[2+k]}")
    for i in range(8):
        I(f"v_and_b32 v{gl+i}, 0xffff, v{gwr+i}")
        I(f"v_and_b32 v{gwr+i}, 0xffff0000, v{gwr+i}")
    for i in range(8):
        I(f"v_dot2c_f32_bf16 v{pl+i}, v{xr+i}, v{gl+i}")
        I(f"v_dot2c_f32_bf16 v{ph+i}, v{xr+i}, v{gwr+i}")
    for i in range(8): I(f"v_cvt_pk_bf16_f32 v{pl+i}, v{pl+i}, v{ph+i}")
    for i in range(8): I(f"v_dot2c_f32_bf16 v{sacc}, v{pl+i}, v{ones}")
    for sh in (8, 4, 2, 1):
        I(f"v_add_f32_dpp v{sacc}, v{sacc}, v{sacc} row_ror:{sh} row_mask:0xf bank_mask:0xf")
    I(f"v_mov_b32 v{t1}, v{sacc}")
    I(f"v_permlane16_swap_b32 v{sacc}, v{t1}")
    I(f"v_add_f32 v{sacc}, v{sacc}, v{t1}")
    I(f"v_cvt_pk_bf16_f32 v{sacc}, v{sacc}, v{sacc}")
    I(f"v_lshlrev_b32 v{sacc}, 16, v{sacc}")
    I(f"v_mul_f32 v{sacc}, 0xbfb8aa3b, v{sacc}")
    I(f"v_exp_f32 v{sacc}, v{sacc}")
    I(f"v_add_f32 v{sacc}, 1.0, v{sacc}")
    I(f"v_rcp_f32 v{sacc}, v{sacc}")
    I(f"v_cvt_pk_bf16_f32 v{sacc}, v{sacc}, v{sacc}")
    I(f"v_lshlrev_b32 v{sacc}, 16, v{sacc}")
    I("s_mov_b32 s66, 1"); I("s_mov_b32 s67, 1")
    I = A.I
    gu = GR.units(); npc = (len(gu) + 2) // 3
    sync('c0')
    issue_x(2, 'c2'); issue_x(3, 'c2')
    sync('c1')
    issue_b(2); issue_b(3); issue_b(4)
    vx = [vb[2], vb[3]]
    for ci in range(2, 5):
        sync(f'c{ci}')
        issue_b(ci + 3)
        if ci < 4:
            for u_ in gu[(ci-2)*npc:(ci-1)*npc]: play(A, u_)
    vq_ = list(A.vmq)
    WT.go()
    A.vmq = vq_

    for u_ in gu[2*npc:]: play(A, u_)
    def sync2(tag):
        idx = [i for i, e in enumerate(A.vmq) if e[1] == tag][-1]
        n = len(A.vmq) - 1 - idx
        I(f"s_cmp_ge_u32 s68, 528")
        A.raw(f"    s_cbranch_scc1 K1_S2A_{tag}")
        A.raw(f"    s_waitcnt vmcnt({n + 6})")
        A.raw(f"    s_branch K1_S2B_{tag}")
        A.raw(f"K1_S2A_{tag}:")
        A.raw(f"    s_waitcnt vmcnt({n})")
        A.raw(f"K1_S2B_{tag}:")
        A.vmq = A.vmq[idx+1:]
        A.barrier()
        if not os.environ.get('DBG1') or tag == 'c7': ST.stamp()
    sync2('c5'); sync2('c6'); sync2('c7')
    I("s_mov_b64 exec, s[66:67]")
    I(f"buffer_store_dword v{sacc}, v{t0}, s[{WS_}:{WS_+3}], s64 offen")
    I("s_mov_b64 exec, -1")
    A.raw("    s_waitcnt vmcnt(1)")
    WT.finish()
    if int(os.environ.get("PREF", "1")):
        vq_ = list(A.vmq)
        pf = 100
        I(f"s_lshr_b32 s48, s2, 3")
        I(f"v_lshlrev_b32 v{t2}, 4, v0")
        I(f"s_lshl_b32 s49, s48, 2")
        I(f"s_add_u32 s49, s49, s{sL}")
        I(f"s_cmp_ge_u32 s49, (GM_CODE_END - gm_k2_kernel) / 1024")
        I("s_cbranch_scc1 K1_NOCODE")
        A.raw("    s_getpc_b64 s[50:51]")
        A.raw("K1_PC:")
        I(f"s_lshl_b32 s49, s49, 10")
        I(f"s_add_u32 s49, s49, gm_k2_kernel - K1_PC")
        I(f"s_add_u32 s50, s50, s49")
        I(f"s_addc_u32 s51, s51, 0")
        I(f"global_load_dwordx4 v[{pf+8}:{pf+11}], v{t2}, s[50:51]")
        A.raw("K1_NOCODE:")
        A.vmq = vq_
    ST.dump(sW, WS_)
    I("s_endpgm")
    return P.hi

def gen_gemm(A, ST):
    I = A.I
    P = Pool('v', 3, 22)
    vl2 = P.alloc()
    t0, t1, t2, t3 = [P.alloc() for _ in range(4)]
    srd(A, WS_, 14, WS_BYTES)
    if int(os.environ.get("DPF", "1")):
        srd(A, X_, 4, 2097152)
        srd(A, WQ_, 6, 1572864)
        I(f"s_lshr_b32 s48, s2, 3")
        I(f"s_lshl_b32 s48, s48, 1")
        I(f"s_and_b32 s49, s{sW}, 1")
        I(f"s_add_u32 s48, s48, s49")
        I(f"s_cmp_ge_u32 s{sW}, 2")
        I("s_cbranch_scc1 K1_DPF2")
        I(f"s_lshl_b32 s48, s48, 15")
        I(f"s_and_b32 s49, s{sS1}, 24")
        I(f"s_lshl_b32 s49, s49, 10")
        I(f"s_add_u32 s48, s48, s49")
        I(f"v_lshlrev_b32 v{t0}, 7, v0")
        A.raw(f"    buffer_load_dword v22, v{t0}, s[{X_}:{X_+3}], s48 offen sc1{NTP}")
        I("s_branch K1_DPF3")
        A.raw("K1_DPF2:")
        I(f"s_mul_i32 s48, s48, {8*3072}")
        I(f"s_lshr_b32 s49, s{sJ}, 2")
        I(f"s_lshl_b32 s49, s49, 9")
        I(f"s_add_u32 s48, s48, s49")
        I(f"v_lshrrev_b32 v{t0}, 3, v0")
        I(f"v_mul_u32_u24 v{t0}, 3072, v{t0}")
        I(f"v_bfe_u32 v{t1}, v0, 2, 1")
        I(f"v_lshl_add_u32 v{t0}, v{t1}, 10, v{t0}")
        I(f"v_and_b32 v{t1}, 3, v0")
        I(f"v_lshl_add_u32 v{t0}, v{t1}, 7, v{t0}")
        A.raw(f"    buffer_load_dword v22, v{t0}, s[{WQ_}:{WQ_+3}], s48 offen offset:1024 sc1{NTP}")
        A.raw(f"    s_mov_b32 exec_lo, 0x0f0f0f0f")
        A.raw(f"    s_mov_b32 exec_hi, 0x0f0f0f0f")
        A.raw(f"    buffer_load_dword v23, v{t0}, s[{WQ_}:{WQ_+3}], s48 offen sc1{NTP}")
        A.raw(f"    s_mov_b64 exec, -1")
        A.raw("K1_DPF3:")
    P2 = Pool('v', 24, 168)
    aaddr = [P2.alloc() for _ in range(4)]
    baddr = P2.alloc()
    vL2E, vza, vpq = P2.alloc(), P2.alloc(), P2.alloc()
    I(f"s_lshl_b32 s48, s{sC0}, 14")
    I(f"s_add_u32 s48, s48, {LDS_X}")
    I(f"v_lshl_add_u32 v{t0}, v{vM}, 8, s48")
    I(f"v_xor_b32 v{t1}, v{vG}, v{vM}")
    I(f"v_lshl_add_u32 v{aaddr[0]}, v{t1}, 4, v{t0}")
    for ks in range(1, 4): I(f"v_xor_b32 v{aaddr[ks]}, {64*ks}, v{aaddr[0]}")
    I(f"v_bfe_u32 v{t0}, v0, 2, 2")
    I(f"v_bfe_u32 v{t1}, v0, 3, 1")
    I(f"v_and_b32 v{t2}, 1, v{vG}")
    I(f"v_lshl_or_b32 v{t1}, v{t2}, 1, v{t1}")
    I(f"v_xor_b32 v{t1}, s{sW}, v{t1}")
    I(f"v_lshl_add_u32 v{t0}, v{vG}, 3, v{t0}")
    I(f"v_lshlrev_b32 v{t0}, 7, v{t0}")
    I(f"v_lshl_add_u32 v{t0}, v{t1}, 5, v{t0}")
    I(f"v_and_b32 v{t1}, 3, v0")
    I(f"v_lshl_add_u32 v{baddr}, v{t1}, 3, v{t0}")
    baddr2 = P2.alloc()
    I(f"v_add_u32 v{baddr2}, 49152, v{baddr}")
    acc = [[P2.alloc(4, 4) for seg in range(3)] for mt in range(4)]
    af = [[P2.alloc(4, 4) for mt in range(4)] for _ in range(3)]
    bf = [[P2.alloc(4, 4) for seg in range(3)] for _ in range(3)]
    tt = [P.alloc() for _ in range(8)]
    ones = P.alloc(4, 4)
    for i in range(4): I(f"v_mov_b32 v{ones+i}, 0x3f803f80")
    I(f"v_mov_b32 v{vL2E}, {hex(LOG2E)}")
    I(f"s_lshl_b32 s48, s{sJ}, 2")
    I(f"s_add_u32 s48, s48, s{sW}")
    I(f"s_lshl_b32 s52, s48, 15")
    I(f"s_lshl_b32 s50, s{sS1}, 10")
    I(f"s_add_u32 s52, s52, s50")
    I(f"s_add_u32 s52, s52, {OFF_KVP}")
    I(f"s_lshl_b32 s51, s48, 11")
    I(f"s_lshl_b32 s50, s{sS1}, 6")
    I(f"s_add_u32 s51, s51, s50")
    I(f"s_add_u32 s51, s51, {OFF_ZP}")
    I(f"s_lshl_b32 s53, s{sS1}, 16")
    I(f"s_lshl_b32 s50, s48, 9")
    I(f"s_add_u32 s53, s53, s50")
    I(f"s_add_u32 s53, s53, {OFF_PQ}")
    I(f"v_lshlrev_b32 v{vl2}, 4, v0")
    I(f"v_lshlrev_b32 v{vza}, 2, v{vM}")
    I(f"v_lshlrev_b32 v{vpq}, 3, v0")
    def read_list(gs):
        ks, buf, slot = gs & 3, gs % 3, (gs >> 1) & 3
        ba = baddr2 if slot >= 2 else baddr
        L_ = []
        for seg in range(3):
            for half in range(2):
                L_.append(f"ds_read_b64_tr_b16 v[{bf[buf][seg]+2*half}:{bf[buf][seg]+2*half+1}], v{ba} offset:{(slot&1)*24576 + seg*8192 + (gs&1)*4096 + half*512}")
        for mt in range(4):
            L_.append(f"ds_read_b128 v[{af[buf][mt]}:{af[buf][mt]+3}], v{aaddr[ks]} offset:{mt*4096}")
        return L_
    def mfma_list(gs, mts=range(4)):
        buf = gs % 3
        L_ = []
        for mt in mts:
            for seg in (1, 2, 0):
                c = acc[mt][seg]
                cs = "0" if gs == 0 else f"v[{c}:{c+3}]"
                a_, b_ = af[buf][mt], bf[buf][seg]
                if seg == 0: a_, b_ = b_, a_
                L_.append(f"v_mfma_f32_16x16x32_bf16 v[{c}:{c+3}], v[{a_}:{a_+3}], v[{b_}:{b_+3}], {cs}")
        return L_
    def mfmas(gs):
        for x_ in mfma_list(gs): I(x_)
    def advance(ci):
        I(f"s_add_u32 s48, s{sC0}, {ci+1}")
        I(f"s_and_b32 s48, s48, 3")
        I(f"s_cmp_eq_u32 s48, 0")
        I(f"s_movk_i32 s49, 16384")
        I(f"s_cselect_b32 s48, {hex(-49152 & 0xffffffff)}, s49")
        for ks in range(4): I(f"v_add_u32 v{aaddr[ks]}, s48, v{aaddr[ks]}")
    ST.stamp()
    GV = int(os.environ.get("GV", "1"))
    done = 0
    if GV == 0:
      for gs in range(16):
        if gs & 1 == 0:
            if gs == 14:
                while done < gs: mfmas(done); done += 1
            if gs & 3 == 0 and gs: advance((gs >> 2) - 1)
            A.barrier()
            if gs in (0, 4, 8, 14): ST.stamp()
        rl = read_list(gs)
        if done <= gs - 2:
            ml = mfma_list(done); done += 1
            for k_, m_ in enumerate(ml):
                I(m_)
                if k_ < len(rl): I(rl[k_])
        else:
            for r_ in rl: I(r_)
    else:
      for c in range(8):
        gs = 2 * c
        if gs & 3 == 0 and gs: advance((gs >> 2) - 1)
        A.barrier()
        if gs in (0, 4, 8, 14): ST.stamp()
        rl = read_list(gs) + read_list(gs + 1)
        ml = mfma_list(gs - 1) if c else []
        ri = 0
        for m_ in ml:
            I(m_)
            for _ in range(2):
                if ri < 14: I(rl[ri]); ri += 1
        ml = mfma_list(gs)
        while ri < (14 if c else 14): I(rl[ri]); ri += 1
        for m_ in ml:
            I(m_)
            if ri < 20: I(rl[ri]); ri += 1
        done = gs + 1
    while done < 16: mfmas(done); done += 1
    ST.stamp()
    fr = af[1]
    pkq = [fr[0], fr[1]]; vq = [fr[2], fr[3]]
    kvacc, zacc = bf[1][0], bf[1][1]
    def phi4(k0):
        for pr in range(2): I(f"v_cvt_pk_bf16_f32 v{tt[pr]}, v{k0+2*pr}, v{k0+2*pr+1}")
        for pr in range(2):
            I(f"v_lshlrev_b32 v{k0+2*pr}, 16, v{tt[pr]}")
            I(f"v_and_b32 v{k0+2*pr+1}, 0xffff0000, v{tt[pr]}")
        for i in range(4): I(f"v_mul_f32 v{tt[4+i]}, v{vL2E}, v{k0+i}")
        for i in range(4): I(f"v_exp_f32 v{tt[4+i]}, v{tt[4+i]} clamp")
        for i in range(4): I(f"v_max_f32 v{k0+i}, 0x358637bd, v{k0+i}")
        for i in range(4): I(f"v_add_f32 v{k0+i}, v{k0+i}, v{tt[4+i]}")
    for mt in range(4):
        k0 = acc[mt][1]; v0_ = acc[mt][2]
        for pr in range(2):
            I(f"v_cvt_pk_bf16_f32 v{vq[mt>>1] + 2*(mt&1) + pr}, v{v0_+2*pr}, v{v0_+2*pr+1}")
        phi4(k0)
        for pr in range(2):
            I(f"v_cvt_pk_bf16_f32 v{pkq[mt>>1] + 2*(mt&1) + pr}, v{k0+2*pr}, v{k0+2*pr+1}")
        if mt & 1:
            h2 = mt >> 1
            cs = "0" if h2 == 0 else f"v[{kvacc}:{kvacc+3}]"
            cz = "0" if h2 == 0 else f"v[{zacc}:{zacc+3}]"
            I(f"v_mfma_f32_16x16x32_bf16 v[{kvacc}:{kvacc+3}], v[{vq[h2]}:{vq[h2]+3}], v[{pkq[h2]}:{pkq[h2]+3}], {cs}")
            I(f"v_mfma_f32_16x16x32_bf16 v[{zacc}:{zacc+3}], v[{ones}:{ones+3}], v[{pkq[h2]}:{pkq[h2]+3}], {cz}")
    for mt in range(4):
        q0 = acc[mt][0]; o_ = acc[mt][2]
        phi4(q0)
        I(f"v_cvt_pk_bf16_f32 v{o_}, v{q0}, v{q0+1}")
        I(f"v_cvt_pk_bf16_f32 v{o_+1}, v{q0+2}, v{q0+3}")
        I(f"buffer_store_dwordx2 v[{o_}:{o_+1}], v{vpq}, s[{WS_}:{WS_+3}], s53 offen {SC}")
        if mt < 3: I(f"s_add_u32 s53, s53, 16384")
        if mt == 0:
            I(f"buffer_store_dwordx4 v[{kvacc}:{kvacc+3}], v{vl2}, s[{WS_}:{WS_+3}], s52 offen {SC}")
            I("s_mov_b64 exec, 0xffff")
            I(f"buffer_store_dword v{zacc}, v{vza}, s[{WS_}:{WS_+3}], s51 offen {SC}")
            I("s_mov_b64 exec, -1")
    ST.stamp()
    ST.dump(sW, WS_)
    I("s_endpgm")
    return max(P.hi, P2.hi)

class WTask:
    def __init__(self, A, sH, R_, Iq, orr, oii, temps):
        self.A, self.sH = A, sH
        self.R_, self.Iq, self.orr, self.oii = R_, Iq, orr, oii
        self.t0, self.t1, self.t2, self.t3 = temps
    def issue(self):
        A = self.A; I = A.I; sH = self.sH
        R_, Iq, orr, oii, t0, t1, t2, t3 = self.R_, self.Iq, self.orr, self.oii, self.t0, self.t1, self.t2, self.t3
        srd(A, WR_, 8, 1052672)
        srd(A, WI_, 10, 1052672)
        I(f"s_lshl_b32 s68, s2, 1")
        I(f"s_add_u32 s68, s68, s{sH}")
        I(f"s_add_u32 s49, s2, 512")
        I(f"s_cmp_eq_u32 s{sH}, 2")
        I(f"s_cselect_b32 s68, s49, s68")
        I(f"s_cmp_eq_u32 s{sH}, 3")
        I(f"s_cselect_b32 s68, 1024, s68")
        I(f"s_lshr_b32 s49, s68, 1")
        I(f"s_lshr_b32 s50, s49, 3")
        I(f"s_and_b32 s51, s49, 7")
        I(f"s_lshl_b32 s51, s51, 8")
        I(f"s_add_u32 s50, s50, s51")
        I(f"v_lshl_add_u32 v{t0}, v{vG}, 6, s50")
        I(f"v_sub_u32 v{t1}, 2048, v{t0}")
        I(f"v_and_b32 v{t1}, 2047, v{t1}")
        I(f"v_mul_u32_u24 v{t0}, 514, v{t0}")
        I(f"v_mul_u32_u24 v{t1}, 514, v{t1}")
        I(f"s_lshl_b32 s69, s49, 13")
        I(f"s_add_u32 s69, s69, {OFF_WEFF}")
        I(f"v_lshlrev_b32 v{t3}, 5, v{vM}")
        I(f"v_add_u32 v{t2}, v{t0}, v{t3}")
        I(f"v_sub_u32 v{t3}, v{t1}, v{t3}")
        I(f"v_add_u32 v{t3}, 482, v{t3}")
        I(f"v_add_u32 v{t0}, 512, v{t0}")
        I(f"s_bitcmp1_b32 s68, 0")
        I(f"s_cselect_b64 s[70:71], -1, 0")
        I(f"v_cndmask_b32 v{t2}, v{t2}, v{t3}, s[70:71]")
        I(f"v_cndmask_b32 v{t1}, v{t1}, v{t0}, s[70:71]")
    def go(self):
        A = self.A; I = A.I
        R_, Iq, orr, oii, t0, t1, t2, t3 = self.R_, self.Iq, self.orr, self.oii, self.t0, self.t1, self.t2, self.t3
        I(f"s_cmp_ge_u32 s68, 528")
        A.wait_lg_all()
        I("s_cbranch_scc1 K1_WISSUED")
        for k in range(2):
            I(f"buffer_load_dwordx4 v[{R_+4*k}:{R_+4*k+3}], v{t2}, s[{WR_}:{WR_+3}], 0 offen offset:{16*k}{NTW}")
            I(f"buffer_load_dwordx4 v[{Iq+4*k}:{Iq+4*k+3}], v{t2}, s[{WI_}:{WI_+3}], 0 offen offset:{16*k}{NTW}")
        I(f"buffer_load_ushort v{orr}, v{t1}, s[{WR_}:{WR_+3}], 0 offen")
        I(f"buffer_load_ushort v{oii}, v{t1}, s[{WI_}:{WI_+3}], 0 offen")
        A.drain_hazards()
        A.label("K1_WISSUED")
    def finish(self):
        A = self.A; I = A.I
        R_, Iq, o, orr, oii, t0, t1, t2, t3 = self.R_, self.Iq, self.o, self.orr, self.oii, self.t0, self.t1, self.t2, self.t3
        I(f"s_cmp_ge_u32 s68, 528")
        A.drain_hazards()
        I("s_cbranch_scc1 K1_WDONE")
        I(f"v_lshlrev_b32 v{t3}, 11, v{vG}")
        I(f"v_lshl_add_u32 v{t3}, v{vM}, 4, v{t3}")
        I("s_mov_b32 s72, 0x05040100"); I("s_mov_b32 s73, 0x07060302")
        I("s_mov_b32 s74, 0x00010001"); I("s_mov_b32 s75, 0x00010001")
        I(f"s_bitcmp1_b32 s68, 0")
        I("s_cbranch_scc1 K1_WMIR")
        for mir in range(2):
            if mir: A.label("K1_WMIR")
            if mir:
                for k in range(8): I(f"v_xor_b32 v{Iq+k}, 0x80008000, v{Iq+k}")
            for c in range(16):
                tq = 15 - c if mir else c
                I(f"v_perm_b32 v{o + 4*(c&3) + (c>>2)}, v{Iq+(tq>>1)}, v{R_+(tq>>1)}, s{72+(tq&1)}")
            I("s_mov_b64 exec, s[74:75]")
            I(f"v_lshlrev_b32 v{t0}, 16, v{o}")
            I(f"v_and_b32 v{t1}, 0xffff0000, v{o}")
            I(f"v_lshlrev_b32 v{orr}, 16, v{orr}")
            I(f"v_lshlrev_b32 v{oii}, 16, v{oii}")
            I(f"v_add_f32 v{t0}, v{t0}, v{orr}")
            I(f"v_add_f32 v{t1}, v{t1}, v{oii}" if mir else f"v_sub_f32 v{t1}, v{t1}, v{oii}")
            I(f"v_mul_f32 v{t0}, 0.5, v{t0}")
            I(f"v_mul_f32 v{t1}, 0.5, v{t1}")
            I(f"v_cvt_pk_bf16_f32 v{o}, v{t0}, v{t1}")
            I("s_mov_b64 exec, -1")
            for k4 in range(4):
                I(f"buffer_store_dwordx4 v[{o+4*k4}:{o+4*k4+3}], v{t3}, s[{WS_}:{WS_+3}], s69 offen offset:{512*k4 + 256*mir} {SC}")
            A.nop(2)
            A.drain_hazards()
            if not mir: I("s_branch K1_WDONE")
        A.label("K1_WDONE")

def gen_fft(A, ST):
    I = A.I
    sJ = globals()["sJ"]
    P = Pool('v', 3, 168)
    sH = 21
    I(f"s_sub_u32 s{sH}, s{sW}, 4")
    if int(os.environ.get("PRIO", "3")) & 2: I("s_setprio 2")
    t0, t1, t2, t3 = [P.alloc() for _ in range(4)]
    kA, kB = P.alloc(), P.alloc()
    if int(os.environ.get("PREF", "1")):
        I(f"s_sub_u32 s49, s2, 160")
        I(f"s_lshl_b32 s48, s{sH}, 4")
        I(f"s_and_b32 s48, s48, 32")
        I(f"s_or_b32 s48, s48, s49")
        I(f"s_cmp_ge_u32 s48, 32")
        I("s_cbranch_scc1 K1_NOWO")
        A.raw("    s_load_dwordx2 s[50:51], s[0:1], 16")
        I(f"s_and_b32 s48, s49, 7")
        I(f"s_lshr_b32 s52, s49, 4")
        I(f"s_lshl_b32 s52, s52, 3")
        I(f"s_add_u32 s48, s48, s52")
        I(f"s_lshl_b32 s48, s48, 1")
        I(f"s_bfe_u32 s52, s49, 0x10003")
        I(f"s_add_u32 s48, s48, s52")
        I(f"s_lshl_b32 s48, s48, 14")
        I(f"s_lshl_b32 s52, s{sH}, 13")
        I(f"s_add_u32 s48, s48, s52")
        I(f"v_lshlrev_b32 v{t0}, 7, v0")
        A.raw("    s_waitcnt lgkmcnt(0)")
        srd(A, 72, 50, 524288)
        A.raw(f"    buffer_load_dword v{t3}, v{t0}, s[72:75], s48 offen sc1")
        A.raw("    s_waitcnt vmcnt(0)")
        A.raw("K1_NOWO:")
    I(f"s_and_b32 s22, s{sJ}, 6")
    I(f"s_and_b32 s23, s{sH}, 1")
    I(f"s_or_b32 s22, s22, s23")
    I(f"s_and_b32 s23, s{sJ}, 1")
    I(f"s_lshl_b32 s23, s23, 1")
    I(f"s_lshr_b32 s{sH}, s{sH}, 1")
    I(f"s_add_u32 s{sH}, s{sH}, s23")
    sJ = 22
    split_consts(A, kA, kB)
    srd(A, WS_, 14, WS_BYTES)
    tr1 = [[P.alloc(4, 4) for hl in range(2)] for u in range(2)]
    cv = P.alloc(8, 4)
    vP0, vP1, vK, vSg = P.alloc(), P.alloc(), P.alloc(), P.alloc()
    I(f"v_lshrrev_b32 v{t0}, 1, v{vM}")
    I(f"s_lshl_b32 s53, s{sH}, 3")
    I(f"v_add_u32 v{t0}, s53, v{t0}")
    I(f"v_and_b32 v{t1}, 1, v{vM}")
    I(f"v_mul_u32_u24 v{vP0}, s{sS1}, v{t0}")
    I(f"v_lshl_add_u32 v{vP0}, v{t1}, 9, v{vP0}")
    I(f"v_lshlrev_b32 v{vP1}, 5, v{t0}")
    I(f"v_and_b32 v{vSg}, 1, v{t0}")
    I(f"v_mul_u32_u24 v{vSg}, 0x8000, v{vSg}")
    I(f"v_lshl_or_b32 v{vSg}, v{vSg}, 16, v{vSg}")
    I(f"s_cmp_eq_u32 s{sH}, 0")
    I(f"s_cselect_b32 s54, 0x00020002, 0")
    I(f"s_mov_b32 s55, s54")
    I(f"s_mov_b64 exec, s[54:55]")
    I(f"v_mov_b32 v{vP1}, 1024")
    I(f"v_mov_b32 v{vP0}, 0")
    I(f"s_mov_b64 exec, -1")
    I(f"v_lshlrev_b32 v{t0}, 3, v{vG}")
    I(f"v_mad_u32_u24 v{vP0}, v{t0}, v{vP1}, v{vP0}")
    I(f"v_cvt_f32_u32 v{vP0}, v{vP0}")
    I(f"v_cvt_f32_u32 v{vP1}, v{vP1}")
    I(f"v_mul_f32 v{vP0}, 0x3a000000, v{vP0}")
    I(f"v_mul_f32 v{vP1}, 0x3a000000, v{vP1}")
    I(f"v_add_f32 v{t0}, v{vP0}, v{vP1}")
    I(f"v_cos_f32 v{vK}, v{vP1}")
    I(f"v_cos_f32 v{cv}, v{vP0}")
    I(f"v_cos_f32 v{cv+1}, v{t0}")
    I(f"v_add_f32 v{vK}, v{vK}, v{vK}")
    for j_ in range(2, 8): I(f"v_fma_f32 v{cv+j_}, v{vK}, v{cv+j_-1}, -v{cv+j_-2}")
    split_many(A, [(tr1[0][0] + pr, tr1[0][1] + pr, cv + 2*pr, cv + 2*pr + 1, None, None) for pr in range(4)], kA, kB)
    for hl in range(2):
        for pr in range(4): I(f"v_xor_b32 v{tr1[1][hl]+pr}, v{vSg}, v{tr1[0][hl]+pr}")
    tr2 = [[P.alloc(4, 4) for cs in range(2)] for e in range(4)]
    cd, sd, rc, rs = P.alloc(), P.alloc(), P.alloc(), P.alloc()
    cs8 = P.alloc(8, 4)
    ce = [cs8 + k for k in range(4)]; se = [cs8 + 4 + k for k in range(4)]
    c1 = [cv + e for e in range(4)]; s1_ = [cv + 4 + e for e in range(4)]
    I(f"s_lshl_b32 s53, s{sJ}, 2")
    I(f"v_lshl_add_u32 v{t0}, v{vG}, 5, s53")
    I(f"v_mul_u32_u24 v{vP0}, v{t0}, v{vM}")
    I(f"v_cvt_f32_u32 v{vP0}, v{vP0}")
    I(f"v_mul_f32 v{vP0}, 0x3b000000, v{vP0}")
    I(f"v_cvt_f32_u32 v{vP1}, v{vM}")
    I(f"v_mul_f32 v{t0}, 0x3e800000, v{vP1}")
    I(f"v_mul_f32 v{vP1}, 0x3b000000, v{vP1}")
    I(f"v_cos_f32 v{ce[0]}, v{vP0}"); I(f"v_sin_f32 v{se[0]}, v{vP0}")
    I(f"v_cos_f32 v{cd}, v{vP1}"); I(f"v_sin_f32 v{sd}, v{vP1}")
    I(f"v_cos_f32 v{rc}, v{t0}"); I(f"v_sin_f32 v{rs}, v{t0}")
    I(f"v_rndne_f32 v{rc}, v{rc}"); I(f"v_rndne_f32 v{rs}, v{rs}")
    I(f"v_and_b32 v{vSg}, 1, v{vM}")
    I(f"v_mul_u32_u24 v{vSg}, 0x8000, v{vSg}")
    I(f"v_lshl_or_b32 v{vSg}, v{vSg}, 16, v{vSg}")
    for e in range(1, 4):
        I(f"v_mul_f32 v{t0}, v{se[e-1]}, v{sd}")
        I(f"v_mul_f32 v{t1}, v{ce[e-1]}, v{sd}")
        I(f"v_fma_f32 v{ce[e]}, v{ce[e-1]}, v{cd}, -v{t0}")
        I(f"v_fma_f32 v{se[e]}, v{se[e-1]}, v{cd}, v{t1}")
    for e in range(4):
        I(f"v_mul_f32 v{t0}, v{se[e]}, v{rs}")
        I(f"v_mul_f32 v{t1}, v{ce[e]}, v{rs}")
        I(f"v_fma_f32 v{c1[e]}, v{ce[e]}, v{rc}, -v{t0}")
        I(f"v_fma_f32 v{s1_[e]}, v{se[e]}, v{rc}, v{t1}")
    split_many(A, [(tr2[e][0], tr2[e][0] + 2, ce[e], c1[e], None, None) for e in range(4)] +
                  [(tr2[e][1], tr2[e][1] + 2, se[e], s1_[e], None, None) for e in range(4)], kA, kB)
    for e in range(4):
        for cs in range(2):
            I(f"v_xor_b32 v{tr2[e][cs]+1}, v{vSg}, v{tr2[e][cs]}")
            I(f"v_xor_b32 v{tr2[e][cs]+3}, v{vSg}, v{tr2[e][cs]+2}")
    a0, a1 = P.alloc(), P.alloc()
    I(f"v_bfe_u32 v{t0}, v0, 2, 2")
    I(f"v_lshl_add_u32 v{t0}, v{vG}, 3, v{t0}")
    I(f"v_and_b32 v{t1}, 3, v0")
    I(f"s_lshr_b32 s53, s{sJ}, 1")
    I(f"v_lshl_add_u32 v{t1}, v{t1}, 2, s53")
    I(f"v_and_b32 v{t2}, 15, v{t0}")
    I(f"v_xor_b32 v{t1}, v{t1}, v{t2}")
    I(f"v_lshlrev_b32 v{t1}, 4, v{t1}")
    I(f"v_lshl_add_u32 v{t1}, v{t0}, 8, v{t1}")
    I(f"s_and_b32 s53, s{sJ}, 1")
    I(f"s_lshl_b32 s53, s53, 3")
    I(f"s_add_u32 s53, s53, {LDS_X}")
    I(f"v_add_u32 v{a0}, s53, v{t1}")
    I(f"v_xor_b32 v{a1}, 64, v{a0}")
    vcs, vsn, vaddr, vaddr2 = cd, sd, rc, rs
    I(f"v_cvt_f32_u32 v{vcs}, s{sS1}")
    I(f"v_mul_f32 v{vcs}, 0x3c800000, v{vcs}")
    I(f"v_sin_f32 v{vsn}, v{vcs}")
    I(f"v_cos_f32 v{vcs}, v{vcs}")
    I(f"v_and_b32 v{t0}, 3, v0")
    I(f"v_lshlrev_b32 v{vaddr2}, 7, v{t0}")
    I(f"v_bfe_u32 v{t0}, v0, 2, 2")
    I(f"v_lshl_add_u32 v{vaddr2}, v{t0}, 4, v{vaddr2}")
    I(f"v_lshl_add_u32 v{vaddr}, v{vG}, 17, v{vaddr2}")
    I(f"s_lshl_b32 s62, s{sH}, 19")
    I(f"s_lshl_b32 s53, s{sS1}, 11")
    I(f"s_lshr_b32 s66, s{sJ}, 1")
    I(f"s_lshl_b32 s66, s66, 9")
    I(f"s_add_u32 s66, s66, s53")
    I(f"s_and_b32 s53, s{sJ}, 1")
    I(f"s_lshl_b32 s53, s53, 6")
    I(f"s_add_u32 s66, s66, s53")
    if OFF_T2: I(f"s_add_u32 s66, s66, {OFF_T2}")
    I(f"s_add_u32 s62, s62, s66")
    I(f"s_add_u32 s63, s62, {65536}")
    I(f"s_add_u32 s66, s66, {32*65536}")
    I(f"s_cmp_eq_u32 s{sH}, 0")
    I(f"s_cselect_b64 s[54:55], 0xffff, 0")
    ST.stamp()
    A.barrier(); A.barrier(); A.barrier()
    ST.stamp()
    F = Rec(); FI = F.I
    xa = [[P.alloc(4, 4) for u in range(2)] for tt in range(4)]
    d1 = [P.alloc(4, 4) for tt in range(4)]
    for tt in range(4):
        for u in range(2):
            FI(f"ds_read_b64_tr_b16 v[{xa[tt][u]}:{xa[tt][u]+1}], v{a0} offset:{tt*16384+u*8192}")
            FI(f"ds_read_b64_tr_b16 v[{xa[tt][u]+2}:{xa[tt][u]+3}], v{a1} offset:{tt*16384+u*8192+1024}")
    for tt in range(4):
        for u in range(2):
            for hl in range(2 if K1P >= 2 else 1):
                cs = "0" if (u == 0 and hl == 0) else f"v[{d1[tt]}:{d1[tt]+3}]"
                FI(f"v_mfma_f32_16x16x32_bf16 v[{d1[tt]}:{d1[tt]+3}], v[{xa[tt][u]}:{xa[tt][u]+3}], v[{tr1[u][hl]}:{tr1[u][hl]+3}], {cs}")
    F.barrier()
    dh = [P.alloc(4, 4) for e in range(4)]; dl = [P.alloc(4, 4) for e in range(4)]
    pc = [xa[e][0] for e in range(4)]; ps = [xa[e][1] for e in range(4)]
    for eh in range(2):
        if K1P >= 3:
            split_many(F, [(dh[e] + pr, dl[e] + pr, d1[2*pr] + e, d1[2*pr+1] + e, dh[e] + 2 + pr, dl[e] + 2 + pr) for e in (2*eh, 2*eh+1) for pr in range(2)], kA, kB)
        else:
            for e in (2*eh, 2*eh+1):
                for pr in range(2):
                    FI(f"v_cvt_pk_bf16_f32 v{dh[e]+pr}, v{d1[2*pr]+e}, v{d1[2*pr+1]+e}")
                    FI(f"v_mov_b32 v{dh[e]+2+pr}, v{dh[e]+pr}")
        for e in (2*eh, 2*eh+1):
            for (acc_, cs_) in ((pc[e], 0), (ps[e], 1)):
                FI(f"v_mfma_f32_16x16x32_bf16 v[{acc_}:{acc_+3}], v[{dh[e]}:{dh[e]+3}], v[{tr2[e][cs_]}:{tr2[e][cs_]+3}], 0")
                if K1P >= 3: FI(f"v_mfma_f32_16x16x32_bf16 v[{acc_}:{acc_+3}], v[{dl[e]}:{dl[e]+3}], v[{tr2[e][cs_]}:{tr2[e][cs_]+3}], v[{acc_}:{acc_+3}]")
        if K1P >= 3 or eh == 1: F.barrier()
    rq = [tr1[0][0], tr1[0][1], tr1[1][0]]; iq = [tr1[1][1], d1[0], d1[1]]
    re = [[rq[ks2] + e for e in range(4)] for ks2 in range(3)]
    im = [[iq[ks2] + e for e in range(4)] for ks2 in range(3)]
    for e in range(4):
        for ks2 in range(2):
            FI(f"v_add_f32 v{re[ks2][e]}, v{pc[e]+2*ks2}, v{ps[e]+2*ks2+1}")
            FI(f"v_sub_f32 v{im[ks2][e]}, v{pc[e]+2*ks2+1}, v{ps[e]+2*ks2}")
    FI("s_mov_b64 exec, s[54:55]")
    for e in range(4):
        FI(f"v_mov_b32 v{re[0][e]}, v{pc[e]}")
        FI(f"v_xor_b32 v{im[0][e]}, 0x80000000, v{ps[e]}")
    FI("s_mov_b64 exec, -1")
    gr = [(dh[0], dh[1]), (dh[2], dh[3]), (dl[0], dl[1])]
    def granule(R, ks2):
        gh, gl = gr[ks2]
        for pr in range(2):
            R.I(f"v_cvt_pk_bf16_f32 v{gh+pr}, v{re[ks2][2*pr]}, v{re[ks2][2*pr+1]}")
            R.I(f"v_cvt_pk_bf16_f32 v{gh+2+pr}, v{im[ks2][2*pr]}, v{im[ks2][2*pr+1]}")
    for ks2 in range(2): granule(F, ks2)
    for ks2 in range(2):
        gh, gl = gr[ks2]
        FI(f"buffer_store_dwordx4 v[{gh}:{gh+3}], v{vaddr}, s[{WS_}:{WS_+3}], s{62+ks2} offen {T2SC}")
    NOFFT = int(os.environ.get("NOFFT", "0"))
    for u in F.units():
        if NOFFT and not (u[0][0] == 'C'): continue
        play(A, u)
    ST.stamp()
    I(f"s_cmp_lg_u32 s{sH}, 0")
    A.drain_hazards()
    I("s_cbranch_scc1 K1_NOSP")
    for e in range(4):
        I(f"v_mul_f32 v{t2}, v{ps[e]+1}, v{vsn}")
        I(f"v_fma_f32 v{re[2][e]}, v{pc[e]+1}, v{vcs}, -v{t2}")
        I(f"v_mul_f32 v{t3}, v{ps[e]+1}, v{vcs}")
        I(f"v_fma_f32 v{im[2][e]}, -v{pc[e]+1}, v{vsn}, -v{t3}")
    granule(A, 2)
    I("s_mov_b64 exec, 0xffff")
    gh, gl = gr[2]
    I(f"buffer_store_dwordx4 v[{gh}:{gh+3}], v{vaddr2}, s[{WS_}:{WS_+3}], s66 offen {T2SC}")
    vmq_save = list(A.vmq)
    I("s_mov_b64 exec, -1")
    A.label("K1_NOSP")
    A.vmq = vmq_save
    ST.stamp()
    if STAMPS:
        for _ in range(2 if K1P >= 3 else 3): A.barrier()
    ST.dump(sW, WS_)
    return P.hi

def gen_k1():
    A = Asm(); I = A.I
    I("s_cmp_ge_u32 s2, 256")
    I("s_cbranch_scc1 K1_END")
    ST = Stamper(A, 0); ST.first()
    I("s_load_dwordx4 s[4:7], s[0:1], 0")
    I("s_load_dwordx4 s[8:11], s[0:1], 32")
    I("s_load_dwordx2 s[12:13], s[0:1], 48")
    I("s_load_dwordx2 s[14:15], s[0:1], 72")
    I("v_lshrrev_b32 v1, 6, v0")
    I(f"v_readfirstlane_b32 s{sW}, v1")
    if int(os.environ.get("CPF", "1")):
        I(f"s_cmp_ge_u32 s{sW}, 2")
        I("s_cbranch_scc1 K1_NOCPF")
        A.raw("    s_getpc_b64 s[22:23]")
        A.raw("K1_PC0:")
        A.raw("    v_lshlrev_b32 v3, 7, v0")
        A.raw("    v_min_u32 v3, gm_k2_kernel - K1_PC0 - 16, v3")
        A.raw("    global_load_dword v23, v3, s[22:23]")
        A.raw("K1_NOCPF:")
    I("v_and_b32 v0, 63, v0")
    decode_wg(A, "s2", sJ, sS1)
    I(f"s_add_u32 s{sC0}, s{sS1}, s{sJ}")
    I(f"s_and_b32 s{sC0}, s{sC0}, {int(os.environ.get('ROT', '3'))}")
    I(f"v_lshrrev_b32 v{vG}, 4, v0")
    I(f"v_and_b32 v{vM}, 15, v0")
    I(f"s_cmp_lt_u32 s{sW}, 8")
    A.drain_hazards()
    I("s_cbranch_scc1 K1_NOTL")
    lg_save = list(A.lgq)
    h1 = gen_loader(A, ST)
    A.label("K1_NOTL"); A.lgq = list(lg_save); ST.begin_role()
    I(f"s_cmp_ge_u32 s{sW}, 4")
    I("s_cbranch_scc1 K1_FFT")
    h2 = gen_gemm(A, ST)
    A.label("K1_FFT"); A.lgq = list(lg_save); ST.begin_role()
    h3 = gen_fft(A, ST)
    A.label("K1_END")
    I("s_endpgm")
    return A.text(), max(h1, h2, h3), A.ninst

if __name__ == "__main__":
    t, vg, n = gen_k1()
    print(vg, n)
```

```python
from common_k import *
import struct, os
def f32(x): return hex(struct.unpack('<I', struct.pack('<f', x))[0])

LDS_T = 1024
LDS_E = 36864
LDS_FLAG = LDS_E + 32768
K2_LDS = LDS_FLAG + 64
K2_GRID = 256
K2_THREADS = 512
SC = os.environ.get("K2SC", "sc1")
V4SC = os.environ.get("V4SC", "sc1")
sW = 20
sWV = 19
X_, WQ_, WO_, WS_ = 24, 28, 32, 44
LDS_W = 17408

def merge(A, mf, va, per):
    vi = 0
    for m_ in mf:
        A.I(m_)
        for _ in range(per):
            if vi < len(va): A.I(va[vi]); vi += 1
    while vi < len(va): A.I(va[vi]); vi += 1

def sw_barrier(A, idx, tag, vt, vone, sreg=None):
    I = A.I
    A.wait_lg_all()
    I(f"v_mov_b32 v{vt}, {LDS_FLAG + 4*idx}" if sreg is None else f"v_mov_b32 v{vt}, s{sreg}")
    I(f"v_mov_b32 v{vone}, 1")
    I("s_mov_b64 exec, 1")
    I(f"ds_add_u32 v{vt}, v{vone}")
    A.raw(f"SWB_{tag}:")
    I(f"ds_read_b32 v{vone}, v{vt}")
    I(f"v_readfirstlane_b32 s48, v{vone}")
    I(f"s_cmp_lt_u32 s48, 4")
    I(f"s_cbranch_scc1 SWB_{tag}")
    I("s_mov_b64 exec, -1")

class L_:
    def __init__(self): self.l = []
    def I(self, t, tag=None): self.l.append(t)

def gen_fft(A, ST):
    I = A.I
    P = Pool('v', 1, 256)
    sK2, sKB4, sKB = 16, 17, 18
    I("s_setprio 3")
    I(f"s_lshr_b32 s{sK2}, s2, 5")
    I(f"s_lshl_b32 s{sK2}, s{sK2}, 3")
    I(f"s_and_b32 s48, s2, 7")
    I(f"s_add_u32 s{sK2}, s{sK2}, s48")
    I(f"s_bfe_u32 s{sKB4}, s2, 0x20003")
    t0, t1, t2, t3 = [P.alloc() for _ in range(4)]
    vN, vH = P.alloc(), P.alloc()
    vo = [P.alloc() for _ in range(4)]
    I(f"v_and_b32 v{vN}, 31, v0")
    I(f"v_lshrrev_b32 v{vH}, 5, v0")
    I(f"s_and_b32 s48, s{sW}, 1")
    I(f"s_lshl_b32 s48, s48, 3")
    I(f"v_xor_b32 v{t0}, s48, v{vN}")
    I(f"v_xor_b32 v{t0}, v{t0}, v{vH}")
    I(f"v_lshrrev_b32 v{t1}, 3, v{t0}")
    I(f"v_and_b32 v{t0}, 7, v{t0}")
    I(f"v_lshlrev_b32 v{t0}, 4, v{t0}")
    I(f"v_lshl_add_u32 v{t0}, v{t1}, 9, v{t0}")
    I(f"v_lshl_add_u32 v{vo[0]}, v{vH}, 11, v{t0}")
    for i in range(1, 4):
        I(f"v_xor_b32 v{vo[i]}, {32*i}, v{vo[0]}")
        I(f"v_add_u32 v{vo[i]}, {3072*i}, v{vo[i]}")
    I(f"s_lshl_b32 s48, s{sK2}, 16")
    I(f"s_lshl_b32 s49, s{sW}, 14")
    I(f"s_add_u32 s48, s48, s49")
    I(f"s_lshl_b32 s50, s{sKB4}, 9")
    I(f"s_add_u32 s51, s48, s50")
    I(f"s_add_u32 s51, s51, {OFF_WEFF}")
    I(f"s_lshl_b32 s49, s{sKB4}, 7")
    I(f"s_add_u32 s48, s48, s49")
    if OFF_T2: I(f"s_add_u32 s48, s48, {OFF_T2}")
    I(f"s_lshl_b32 s49, s{sW}, 12")
    I(f"s_add_u32 m0, s49, {LDS_T}")
    for i in range(4):
        I(f"buffer_load_dwordx4 v{vo[i]}, s[{WS_}:{WS_+3}], s48 offen offset:{1024*i} lds", tag='t2')
    I(f"v_lshlrev_b32 v{t0}, 4, v{vN}")
    I(f"v_lshl_add_u32 v{t0}, v{vH}, 11, v{t0}")
    I(f"s_mul_i32 s49, s{sW}, 4160")
    I(f"s_add_u32 m0, s49, {LDS_W}")
    for i in range(4):
        if i:
            I(f"s_add_u32 m0, m0, 1040")
            I(f"s_add_u32 s51, s51, 4096")
        I(f"buffer_load_dwordx4 v{t0}, s[{WS_}:{WS_+3}], s51 offen lds", tag='w')
    I(f"s_lshl_b32 s{sKB}, s{sW}, 2")
    I(f"s_add_u32 s{sKB}, s{sKB}, s{sKB4}")
    kA, kB = P.alloc(), P.alloc()
    nterm = 2 if NT2 >= 2 else 1
    if nterm == 2: split_consts(A, kA, kB)
    sets = [[dict(C=P.alloc(8, 4), S=P.alloc(8, 4), N=P.alloc(8, 4)) for _ in range(nterm)] for _ in range(2)]
    D = [(P.alloc(16, 4), P.alloc(16, 4)) for _ in range(2)]
    cw, sw = D[1][0], D[1][1]
    vst, vsd, cd, sd, rc, rs, vSg, vNeg = [P.alloc() for _ in range(8)]
    I(f"v_cvt_f32_u32 v{t0}, v{vN}")
    I(f"v_mul_f32 v{vst}, 0x3d000000, v{t0}")
    I(f"v_mul_f32 v{t1}, 0x3e800000, v{t0}")
    I(f"v_cos_f32 v{cd}, v{vst}"); I(f"v_sin_f32 v{sd}, v{vst}")
    I(f"v_cos_f32 v{rc}, v{t1}"); I(f"v_sin_f32 v{rs}, v{t1}")
    I(f"v_lshlrev_b32 v{t2}, 2, v{vH}")
    I(f"v_cvt_f32_u32 v{t2}, v{t2}")
    I(f"v_mul_f32 v{vsd}, v{t2}, v{vst}")
    I(f"v_rndne_f32 v{rc}, v{rc}"); I(f"v_rndne_f32 v{rs}, v{rs}")
    I(f"v_and_b32 v{vSg}, 1, v{vN}")
    I(f"v_mul_u32_u24 v{vSg}, 0x8000, v{vSg}")
    I(f"v_lshl_or_b32 v{vSg}, v{vSg}, 16, v{vSg}")
    I(f"v_mov_b32 v{vNeg}, 0x80008000")
    for si in range(2):
        if si == 1:
            I(f"v_cvt_f32_u32 v{t1}, s{sKB}")
            I(f"v_mul_f32 v{t1}, 0x3d800000, v{t1}")
            I(f"v_fmac_f32 v{vsd}, v{t1}, v{vst}")
        I(f"v_cos_f32 v{cw}, v{vsd}"); I(f"v_sin_f32 v{sw}, v{vsd}")
        for jj in range(1, 4):
            I(f"v_mul_f32 v{t0}, v{sw+jj-1}, v{sd}")
            I(f"v_mul_f32 v{t1}, v{cw+jj-1}, v{sd}")
            I(f"v_fma_f32 v{cw+jj}, v{cw+jj-1}, v{cd}, -v{t0}")
            I(f"v_fma_f32 v{sw+jj}, v{sw+jj-1}, v{cd}, v{t1}")
        for jj in range(4):
            I(f"v_mul_f32 v{t0}, v{sw+jj}, v{rs}")
            I(f"v_mul_f32 v{t1}, v{cw+jj}, v{rs}")
            I(f"v_fma_f32 v{cw+4+jj}, v{cw+jj}, v{rc}, -v{t0}")
            I(f"v_fma_f32 v{sw+4+jj}, v{sw+jj}, v{rc}, v{t1}")
        S_ = sets[si]
        if nterm == 2:
            split_many(A, [(S_[0]['C'] + k, S_[1]['C'] + k, cw + 2*k, cw + 2*k + 1, None, None) for k in range(4)] +
                          [(S_[0]['S'] + k, S_[1]['S'] + k, sw + 2*k, sw + 2*k + 1, None, None) for k in range(4)], kA, kB)
        else:
            for k in range(4):
                I(f"v_cvt_pk_bf16_f32 v{S_[0]['C']+k}, v{cw+2*k}, v{cw+2*k+1}")
                I(f"v_cvt_pk_bf16_f32 v{S_[0]['S']+k}, v{sw+2*k}, v{sw+2*k+1}")
        for T_ in S_:
            for k in range(4):
                I(f"v_xor_b32 v{T_['C']+4+k}, v{vSg}, v{T_['C']+k}")
                I(f"v_xor_b32 v{T_['S']+4+k}, v{vSg}, v{T_['S']+k}")
            for k in range(8): I(f"v_xor_b32 v{T_['N']+k}, v{vNeg}, v{T_['S']+k}")
    RE, IM = P.alloc(8, 4), P.alloc(8, 4)
    wf = P.alloc(16, 2); wr_ = P.alloc(16, 2)
    va, va1, vw = vo[0], vo[1], vo[2]
    I(f"v_lshlrev_b32 v{t0}, 2, v{vH}")
    I(f"v_add_u32 v{t0}, s{sW}, v{t0}")
    I(f"v_and_b32 v{t1}, 15, v{vN}")
    I(f"v_xor_b32 v{t0}, v{t0}, v{t1}")
    I(f"v_lshlrev_b32 v{t0}, 4, v{t0}")
    I(f"v_lshl_add_u32 v{t0}, v{vN}, 9, v{t0}")
    I(f"v_add_u32 v{va}, {LDS_T}, v{t0}")
    I(f"v_xor_b32 v{va1}, 128, v{va}")
    I(f"v_lshrrev_b32 v{t0}, 1, v{vN}")
    I(f"v_mul_u32_u24 v{t0}, 1040, v{t0}")
    I(f"v_and_b32 v{t1}, 1, v{vN}")
    I(f"v_lshl_add_u32 v{t0}, v{t1}, 9, v{t0}")
    I(f"v_lshl_add_u32 v{t0}, v{vH}, 6, v{t0}")
    I(f"s_lshl_b32 s48, s{sW}, 2")
    I(f"s_add_u32 s48, s48, {LDS_W}")
    I(f"v_add_u32 v{vw}, s48, v{t0}")
    wa = [cd, sd, vst, vsd]; vs1, vra = rc, rs
    I(f"s_lshl_b32 s48, s{sW}, 13")
    I(f"s_add_u32 s48, s48, {LDS_E}")
    I(f"v_lshl_add_u32 v{t1}, v{vH}, 1, v{vN}")
    I(f"v_lshlrev_b32 v{t2}, 9, v{vH}")
    I(f"v_add_u32 v{t2}, s48, v{t2}")
    for p in range(4):
        I(f"v_add_u32 v{t0}, {4*p}, v{t1}")
        I(f"v_and_b32 v{t0}, 31, v{t0}")
        I(f"v_lshl_add_u32 v{wa[p]}, v{t0}, 4, v{t2}")
    I(f"s_lshl_b32 s48, s{sW}, 3")
    I(f"v_lshrrev_b32 v{vs1}, 3, v0")
    I(f"v_add_u32 v{vs1}, s48, v{vs1}")
    I(f"v_and_b32 v{t1}, 7, v0")
    I(f"v_lshl_add_u32 v{t0}, v{t1}, 1, v{vs1}")
    I(f"v_and_b32 v{t0}, 31, v{t0}")
    I(f"v_lshlrev_b32 v{t0}, 4, v{t0}")
    I(f"v_and_b32 v{t2}, 1, v0")
    I(f"v_lshl_add_u32 v{t0}, v{t2}, 9, v{t0}")
    I(f"v_bfe_u32 v{t2}, v0, 1, 2")
    I(f"v_lshl_add_u32 v{t0}, v{t2}, 11, v{t0}")
    I(f"v_add_u32 v{vra}, {LDS_E}, v{t0}")
    tw = P.alloc(8)
    I(f"s_cmp_eq_u32 s{sK2}, 32")
    I(f"s_cselect_b32 s50, 0x3c800000, 0")
    I(f"v_cvt_f32_u32 v{t0}, v{vs1}")
    I(f"v_mul_f32 v{t0}, s50, v{t0}")
    I(f"v_cvt_f32_u32 v{t2}, s{sKB4}")
    I(f"v_mul_f32 v{t2}, 0x3d800000, v{t2}")
    for b0 in range(4):
        if b0: I(f"v_add_f32 v{t0}, v{t0}, v{t2}")
        I(f"v_cos_f32 v{tw+2*b0}, v{t0}"); I(f"v_sin_f32 v{tw+2*b0+1}, v{t0}")
    I(f"s_mov_b32 s48, 67584")
    I(f"v_mul_lo_u32 v{vs1}, v{vs1}, s48")
    I(f"v_lshl_add_u32 v{vs1}, v{t1}, 4, v{vs1}")
    I(f"s_lshl_b32 s52, s{sK2}, 9")
    I(f"s_lshl_b32 s49, s{sKB4}, 7")
    I(f"s_add_u32 s52, s52, s49")
    I(f"s_add_u32 s52, s52, {OFF_V}")
    ST.stamp()
    A.wait_vm_tag('t2'); sw_barrier(A, 2, "F0", t0, t1)
    ST.stamp()
    for (X, off) in ((RE, 0), (IM, 8)):
        for p in range(4):
            I(f"ds_read_b64 v[{X+2*p}:{X+2*p+1}], v{va1 if p & 1 else va} offset:{256*(p>>1) + off}")
    wreads = [f"ds_read2_b32 v[{wf+i}:{wf+i+1}], v{vw} offset0:{32*(i>>2) + 4*(i&3)} offset1:{32*(i>>2) + 4*(i&3) + 4}" for i in range(0, 16, 2)]
    wunp = []
    for i in range(16):
        wunp.append(f"v_lshlrev_b32 v{wr_+i}, 16, v{wf+i}")
        wunp.append(f"v_and_b32 v{wf+i}, 0xffff0000, v{wf+i}")
    def chain(Dq, X, S_, key, first):
        L = []
        for T_ in S_:
            for h in range(2):
                c = "0" if first else f"v[{Dq}:{Dq+15}]"
                L.append(f"v_mfma_f32_32x32x16_bf16 v[{Dq}:{Dq+15}], v[{X+4*h}:{X+4*h+3}], v[{T_[key]+4*h}:{T_[key]+4*h+3}], {c}")
                first = False
        return L
    def conv(Dq, X):
        return [f"v_cvt_pk_bf16_f32 v{X+k}, v{Dq+2*k}, v{Dq+2*k+1}" for k in range(8)]
    per = 6
    pend = []
    for st in range(4):
        dre, dim = D[st & 1]
        S_ = sets[1 if st == 2 else 0]
        merge(A, chain(dre, RE, S_, 'C', True) + chain(dim, RE, S_, 'N', True), pend, per)
        extra = wreads if st == 0 else (wunp if st == 1 else [])
        if st == 0:
            A.wait_vm_all(); sw_barrier(A, 3, "F1", t0, t1)
        if st == 0 or st == 2:
            merge(A, chain(dre, IM, S_, 'S', False), extra, per)
            merge(A, chain(dim, IM, S_, 'C', False), [], per)
            for x_ in conv(dre, RE): I(x_)
            pend = conv(dim, IM)
        elif st == 1:
            merge(A, chain(dre, IM, S_, 'S', False) + chain(dim, IM, S_, 'C', False), extra, per)
            ore, oim = D[0]
            for i in range(16): I(f"v_mul_f32 v{ore+i}, v{dre+i}, v{wr_+i}")
            for i in range(16):
                I(f"v_fma_f32 v{ore+i}, -v{dim+i}, v{wf+i}, v{ore+i}")
                if i & 1: I(f"v_cvt_pk_bf16_f32 v{RE+(i>>1)}, v{ore+i-1}, v{ore+i}")
            pend = []
            for i in range(16):
                pend.append(f"v_mul_f32 v{dim+i}, v{dim+i}, v{wr_+i}")
                pend.append(f"v_fma_f32 v{dim+i}, -v{dre+i}, v{wf+i}, -v{dim+i}")
                if i & 1: pend.append(f"v_cvt_pk_bf16_f32 v{IM+(i>>1)}, v{dim+i-1}, v{dim+i}")
        else:
            for m_ in chain(dre, IM, S_, 'S', False) + chain(dim, IM, S_, 'C', False): I(m_)
    ST.stamp()
    dre, dim = D[1]
    for p in range(4):
        I(f"ds_write_b128 v{wa[p]}, v[{dre+4*p}:{dre+4*p+3}] offset:{p*2048}")
    for p in range(4):
        I(f"ds_write_b128 v{wa[p]}, v[{dim+4*p}:{dim+4*p+3}] offset:{p*2048+1024}")
    sw_barrier(A, 1, "F", t0, t1)
    cr = [D[0][0] + 4*k for k in range(4)]; ci = [D[0][1] + 4*k for k in range(4)]
    for k in (0, 2, 1, 3):
        I(f"ds_read_b128 v[{cr[k]}:{cr[k]+3}], v{vra} offset:{k*8192}")
        I(f"ds_read_b128 v[{ci[k]}:{ci[k]+3}], v{vra} offset:{k*8192+1024}")
    ar = [dre + 4*k for k in range(4)]; ai = [dim + 4*k for k in range(4)]
    for e in range(4):
        I(f"v_add_f32 v{ar[0]+e}, v{cr[0]+e}, v{cr[2]+e}"); I(f"v_sub_f32 v{ar[1]+e}, v{cr[0]+e}, v{cr[2]+e}")
        I(f"v_add_f32 v{ai[0]+e}, v{ci[0]+e}, v{ci[2]+e}"); I(f"v_sub_f32 v{ai[1]+e}, v{ci[0]+e}, v{ci[2]+e}")
    for e in range(4):
        I(f"v_add_f32 v{ar[2]+e}, v{cr[1]+e}, v{cr[3]+e}"); I(f"v_sub_f32 v{ar[3]+e}, v{cr[1]+e}, v{cr[3]+e}")
        I(f"v_add_f32 v{ai[2]+e}, v{ci[1]+e}, v{ci[3]+e}"); I(f"v_sub_f32 v{ai[3]+e}, v{ci[1]+e}, v{ci[3]+e}")
    oq = [RE, RE + 4, IM, IM + 4]
    for b0 in range(4):
        xr, xi = cr[b0], ci[b0]
        for e in range(4):
            if b0 == 0:
                I(f"v_add_f32 v{xr+e}, v{ar[0]+e}, v{ar[2]+e}"); I(f"v_add_f32 v{xi+e}, v{ai[0]+e}, v{ai[2]+e}")
            elif b0 == 2:
                I(f"v_sub_f32 v{xr+e}, v{ar[0]+e}, v{ar[2]+e}"); I(f"v_sub_f32 v{xi+e}, v{ai[0]+e}, v{ai[2]+e}")
            elif b0 == 1:
                I(f"v_add_f32 v{xr+e}, v{ar[1]+e}, v{ai[3]+e}"); I(f"v_sub_f32 v{xi+e}, v{ai[1]+e}, v{ar[3]+e}")
            else:
                I(f"v_sub_f32 v{xr+e}, v{ar[1]+e}, v{ai[3]+e}"); I(f"v_add_f32 v{xi+e}, v{ai[1]+e}, v{ar[3]+e}")
        c_, s_ = tw + 2*b0, tw + 2*b0 + 1
        for e in range(4):
            I(f"v_mul_f32 v{wf+2*e}, v{xr+e}, v{c_}")
            I(f"v_mul_f32 v{wf+2*e+1}, v{xi+e}, v{c_}")
            I(f"v_fmac_f32 v{wf+2*e}, v{xi+e}, v{s_}")
            I(f"v_fma_f32 v{wf+2*e+1}, -v{xr+e}, v{s_}, v{wf+2*e+1}")
            I(f"v_cvt_pk_bf16_f32 v{oq[b0]+e}, v{wf+2*e}, v{wf+2*e+1}")
        I(f"buffer_store_dwordx4 v[{oq[b0]}:{oq[b0]+3}], v{vs1}, s[{WS_}:{WS_+3}], s52 offen {V4SC}")
        if b0 < 3: I(f"s_add_u32 s52, s52, 16896")
    ST.stamp(); ST.dump(sWV, WS_)
    I("s_endpgm")
    return P.hi

def gen_kv(A, ST):
    I = A.I
    P = Pool('v', 1, 256)
    sHd = 16
    I(f"s_sub_u32 s49, s2, 160")
    I(f"s_and_b32 s48, s49, 7")
    I(f"s_lshr_b32 s52, s49, 4")
    I(f"s_lshl_b32 s52, s52, 3")
    I(f"s_add_u32 s48, s48, s52")
    I(f"s_lshl_b32 s48, s48, 1")
    I(f"s_bfe_u32 s52, s49, 0x10003")
    I(f"s_add_u32 s{sHd}, s48, s52")
    vG, vM = P.alloc(), P.alloc()
    t0, t1, t2, t3 = [P.alloc() for _ in range(4)]
    part = P.alloc(32, 4)
    I(f"v_lshlrev_b32 v{t0}, 4, v0")
    I(f"s_lshl_b32 s48, s{sHd}, 15")
    I(f"s_lshl_b32 s49, s{sW}, 13")
    I(f"s_add_u32 s48, s48, s49")
    I(f"s_add_u32 s48, s48, {OFF_KVP}")
    I(f"s_add_u32 s49, s48, 4096")
    for i in range(8):
        I(f"buffer_load_dwordx4 v[{part+4*i}:{part+4*i+3}], v{t0}, s[{WS_}:{WS_+3}], s{48 + (i>>2)} offen offset:{1024*(i&3)}")
    I(f"v_lshrrev_b32 v{vG}, 4, v0")
    I(f"v_and_b32 v{vM}, 15, v0")
    wo = P.alloc(16, 2)
    I(f"v_lshlrev_b32 v{t1}, 12, v{vG}")
    I(f"v_lshl_add_u32 v{t1}, v{vM}, 3, v{t1}")
    I(f"s_lshl_b32 s54, s{sHd}, 14")
    I(f"s_lshl_b32 s55, s{sW}, 8")
    I(f"s_add_u32 s54, s54, s55")
    for G in range(2):
        for jj in range(4):
            r = wo + 8 * G + 2 * jj
            I(f"buffer_load_dwordx2 v[{r}:{r+1}], v{t1}, s[{WO_}:{WO_+3}], s54 offen offset:{1024*jj + 128*G}")
    I(f"s_lshl_b32 s48, s{sW}, 10")
    I(f"v_add_u32 v{t0}, {LDS_T}, v{t0}")
    I(f"v_add_u32 v{t2}, s48, v{t0}")
    vo_ = P.alloc()
    I(f"v_lshrrev_b32 v{vo_}, 2, v{vM}")
    I(f"v_lshlrev_b32 v{vo_}, 14, v{vo_}")
    I(f"v_and_b32 v{t3}, 3, v{vM}")
    I(f"v_lshl_add_u32 v{vo_}, v{t3}, 6, v{vo_}")
    I(f"v_lshl_add_u32 v{vo_}, v{vG}, 4, v{vo_}")
    I(f"s_lshl_b32 s56, s{sW}, 17")
    I(f"s_lshr_b32 s49, s{sHd}, 1")
    I(f"s_lshl_b32 s49, s49, 10")
    I(f"s_add_u32 s56, s56, s49")
    I(f"s_and_b32 s49, s{sHd}, 1")
    I(f"s_lshl_b32 s49, s49, 8")
    I(f"s_add_u32 s56, s56, s49")
    I(f"s_add_u32 s56, s56, {OFF_KVWO}")
    I(f"s_add_u32 s57, s56, 65536")
    I("s_mov_b32 s52, 0x05040100"); I("s_mov_b32 s53, 0x07060302")
    for i in range(1, 8):
        for c in range(4): I(f"v_add_f32 v{part+c}, v{part+c}, v{part+4*i+c}")
    I(f"ds_write_b128 v{t2}, v[{part}:{part+3}]")
    bq = P.alloc(16, 2); dd = P.alloc(32, 4); oo = P.alloc(16, 4)
    for G in range(2):
        for e in range(4):
            b_ = bq + 8 * G + 2 * e
            for hp in range(2):
                r0 = wo + 8 * G + 4 * hp + (e >> 1); r1 = r0 + 2
                I(f"v_perm_b32 v{b_+hp}, v{r1}, v{r0}, s{52 + (e & 1)}")
    sw_barrier(A, 1, "KV", t2, t3)
    kva = P.alloc(2, 2)
    b_ = part + 4
    for i in range(4):
        I(f"ds_read_b128 v[{b_+4*i}:{b_+3+4*i}], v{t0} offset:{1024*i}")
    for c in range(4):
        I(f"v_add_f32 v{b_+c}, v{b_+c}, v{b_+4+c}")
        I(f"v_add_f32 v{b_+8+c}, v{b_+8+c}, v{b_+12+c}")
        I(f"v_add_f32 v{b_+c}, v{b_+c}, v{b_+8+c}")
    I(f"v_cvt_pk_bf16_f32 v{kva}, v{b_}, v{b_+1}")
    I(f"v_cvt_pk_bf16_f32 v{kva+1}, v{b_+2}, v{b_+3}")
    for G in range(2):
        for e in range(4):
            b_ = bq + 8 * G + 2 * e; d_ = dd + 16 * G + 4 * e
            I(f"v_mfma_f32_16x16x16_bf16 v[{d_}:{d_+3}], v[{kva}:{kva+1}], v[{b_}:{b_+1}], 0")
    for G in range(2):
        for e in range(4):
            o_ = oo + 8 * G + 2 * e; d_ = dd + 16 * G + 4 * e
            I(f"v_cvt_pk_bf16_f32 v{o_}, v{d_}, v{d_+1}")
            I(f"v_cvt_pk_bf16_f32 v{o_+1}, v{d_+2}, v{d_+3}")
        q0, q1 = oo + 8 * G, oo + 8 * G + 4
        for q_ in (q0, q1):
            I(f"v_permlane16_swap_b32 v{q_}, v{q_+2}")
            I(f"v_permlane16_swap_b32 v{q_+1}, v{q_+3}")
        for k in range(4): I(f"v_permlane32_swap_b32 v{q0+k}, v{q1+k}")
        I(f"buffer_store_dwordx4 v[{q0}:{q0+3}], v{vo_}, s[{WS_}:{WS_+3}], s{56+G} offen {SC}")
        I(f"buffer_store_dwordx4 v[{q1}:{q1+3}], v{vo_}, s[{WS_}:{WS_+3}], s{56+G} offen offset:512 {SC}")
    ST.stamp(); ST.dump(sWV, WS_)
    I("s_endpgm")
    return P.hi

def gen_q(A, ST):
    I = A.I
    P = Pool('v', 1, 256)
    sJ, sS1, sU = 16, 18, 17
    I(f"s_sub_u32 s48, s2, 192")
    I(f"s_lshl_b32 s48, s48, 1")
    I(f"s_lshr_b32 s{sU}, s{sWV}, 2")
    I(f"s_add_u32 s48, s48, s{sU}")
    I(f"s_and_b32 s{sJ}, s48, 7")
    I(f"s_lshr_b32 s{sS1}, s48, 3")
    I(f"s_lshl_b32 s{sS1}, s{sS1}, 1")
    vG, vM = P.alloc(), P.alloc()
    t0, t1, t2, t3 = [P.alloc() for _ in range(4)]
    zr = P.alloc(8, 4); gv = P.alloc(2); pqr = [P.alloc(8, 2), P.alloc(8, 2)]
    va, v8 = P.alloc(), P.alloc()
    I(f"v_lshlrev_b32 v{va}, 4, v0")
    I(f"v_lshlrev_b32 v{v8}, 3, v0")
    I(f"s_lshl_b32 s48, s{sJ}, 2")
    I(f"s_add_u32 s49, s48, s{sW}")
    I(f"s_lshl_b32 s49, s49, 11")
    I(f"s_add_u32 s49, s49, {OFF_ZP}")
    I(f"buffer_load_dwordx4 v[{zr}:{zr+3}], v{va}, s[{WS_}:{WS_+3}], s49 offen")
    I(f"buffer_load_dwordx4 v[{zr+4}:{zr+7}], v{va}, s[{WS_}:{WS_+3}], s49 offen offset:1024")
    I(f"s_lshl_b32 s50, s{sS1}, 16")
    I(f"s_lshl_b32 s51, s{sW}, 14")
    I(f"s_add_u32 s50, s50, s51")
    I(f"s_lshl_b32 s51, s{sJ}, 11")
    I(f"s_add_u32 s50, s50, s51")
    I(f"s_add_u32 s54, s50, {OFF_PQ}")
    I(f"s_add_u32 s55, s54, 65536")
    I(f"s_add_u32 s50, s50, {OFF_APP}")
    I(f"s_add_u32 s51, s50, 65536")
    for tk in range(2):
        for hd in range(4):
            I(f"buffer_load_dwordx2 v[{pqr[tk]+2*hd}:{pqr[tk]+2*hd+1}], v{v8}, s[{WS_}:{WS_+3}], s{54+tk} offen offset:{512*hd}")
    I(f"v_lshrrev_b32 v{vG}, 4, v0")
    I(f"v_and_b32 v{vM}, 15, v0")
    I(f"v_lshlrev_b32 v{t1}, 2, v{vM}")
    I(f"s_lshl_b32 s52, s{sS1}, 8")
    I(f"s_lshl_b32 s53, s{sW}, 6")
    I(f"s_add_u32 s52, s52, s53")
    I(f"s_add_u32 s52, s52, {OFF_G}")
    for tk in range(2):
        I(f"buffer_load_dword v{gv+tk}, v{t1}, s[{WS_}:{WS_+3}], s52 offen offset:{256*tk}")
    I(f"s_lshl_b32 s56, s{sU}, 8")
    I(f"s_add_u32 s53, s53, s56")
    I(f"v_add_u32 v{t2}, s53, v{va}")
    I(f"v_lshl_add_u32 v{t3}, v{vG}, 4, s56")
    I(f"s_lshl_b32 s57, s{sU}, 2")
    I(f"s_add_u32 s57, s57, {LDS_FLAG}")
    ST.stamp()
    for c in range(4): I(f"v_add_f32 v{zr+c}, v{zr+c}, v{zr+4+c}")
    for sh in (8, 4):
        for c in range(4):
            I(f"v_add_f32_dpp v{zr+c}, v{zr+c}, v{zr+c} row_ror:{sh} row_mask:0xf bank_mask:0xf")
    for c in range(4): I(f"v_mov_b32 v{zr+4+c}, v{zr+c}")
    for c in range(4): I(f"v_permlane32_swap_b32 v{zr+c}, v{zr+4+c}")
    for c in range(4): I(f"v_add_f32 v{zr+c}, v{zr+c}, v{zr+4+c}")
    for c in range(4): I(f"v_mov_b32 v{zr+4+c}, v{zr+c}")
    for c in range(4): I(f"v_permlane16_swap_b32 v{zr+c}, v{zr+4+c}")
    for c in range(4): I(f"v_add_f32 v{zr+c}, v{zr+c}, v{zr+4+c}")
    I(f"v_cvt_pk_bf16_f32 v{zr+4}, v{zr}, v{zr+1}")
    I(f"v_cvt_pk_bf16_f32 v{zr+5}, v{zr+2}, v{zr+3}")
    I(f"v_lshlrev_b32 v{zr}, 16, v{zr+4}"); I(f"v_and_b32 v{zr+1}, 0xffff0000, v{zr+4}")
    I(f"v_lshlrev_b32 v{zr+2}, 16, v{zr+5}"); I(f"v_and_b32 v{zr+3}, 0xffff0000, v{zr+5}")
    I("s_mov_b64 exec, 15")
    I(f"ds_write_b128 v{t2}, v[{zr}:{zr+3}]")
    I("s_mov_b64 exec, -1")
    c_ = [[P.alloc(4, 4) for hd in range(4)] for tk in range(2)]
    for tk in range(2):
        for hd in range(4):
            for pr in range(2):
                I(f"v_lshlrev_b32 v{c_[tk][hd]+2*pr}, 16, v{pqr[tk]+2*hd+pr}")
                I(f"v_and_b32 v{c_[tk][hd]+2*pr+1}, 0xffff0000, v{pqr[tk]+2*hd+pr}")
    sw_barrier(A, 0, "Q", t0, t1, sreg=57)
    zq = [P.alloc(4, 4) for hd in range(4)]
    for hd in range(4): I(f"ds_read_b128 v[{zq[hd]}:{zq[hd]+3}], v{t3} offset:{hd*64}")
    for tk in range(2):
        den = P.alloc(4, 4); oq = [P.alloc(4, 4), P.alloc(4, 4)]
        cc = c_[tk]
        for hd in range(4):
            I(f"v_mul_f32 v{den+hd}, v{cc[hd]}, v{zq[hd]}")
            for i in range(1, 4): I(f"v_fmac_f32 v{den+hd}, v{cc[hd]+i}, v{zq[hd]+i}")
        I(f"v_permlane32_swap_b32 v{den}, v{den+2}")
        I(f"v_permlane32_swap_b32 v{den+1}, v{den+3}")
        I(f"v_add_f32 v{den}, v{den}, v{den+2}")
        I(f"v_add_f32 v{den+1}, v{den+1}, v{den+3}")
        I(f"v_permlane16_swap_b32 v{den}, v{den+1}")
        I(f"v_add_f32 v{den}, v{den}, v{den+1}")
        I(f"v_add_f32 v{den}, 0x358637bd, v{den}")
        I(f"v_rcp_f32 v{den}, v{den}")
        I(f"v_mul_f32 v{den}, v{den}, v{gv+tk}")
        I(f"v_mov_b32 v{den+1}, v{den}")
        I(f"v_permlane16_swap_b32 v{den}, v{den+1}")
        I(f"v_mov_b32 v{den+2}, v{den}"); I(f"v_mov_b32 v{den+3}, v{den+1}")
        I(f"v_permlane32_swap_b32 v{den}, v{den+2}")
        I(f"v_permlane32_swap_b32 v{den+1}, v{den+3}")
        for hd in range(4):
            c = cc[hd]
            for i in range(4): I(f"v_mul_f32 v{c+i}, v{c+i}, v{den+hd}")
            o_ = oq[hd >> 1] + 2 * (hd & 1)
            I(f"v_cvt_pk_bf16_f32 v{o_}, v{c}, v{c+1}")
            I(f"v_cvt_pk_bf16_f32 v{o_+1}, v{c+2}, v{c+3}")
            if hd & 1:
                q_ = oq[hd >> 1]
                I(f"v_permlane16_swap_b32 v{q_}, v{q_+2}")
                I(f"v_permlane16_swap_b32 v{q_+1}, v{q_+3}")
                I(f"buffer_store_dwordx4 v[{q_}:{q_+3}], v{va}, s[{WS_}:{WS_+3}], s{50+tk} offen offset:{1024*(hd>>1)} {SC}")
    ST.stamp(); ST.dump(sWV, WS_)
    return P.hi

def gen_k2():
    A = Asm(); I = A.I
    I(f"s_cmp_ge_u32 s2, {K2_GRID}")
    I("s_cbranch_scc1 K2_END")
    ST = Stamper(A, 1); ST.first()
    I("s_load_dwordx4 s[4:7], s[0:1], 0")
    I("s_load_dwordx2 s[8:9], s[0:1], 16")
    I("s_load_dwordx2 s[14:15], s[0:1], 72")
    I("v_lshrrev_b32 v1, 6, v0")
    I("v_and_b32 v0, 63, v0")
    I(f"v_readfirstlane_b32 s{sWV}, v1")
    I(f"v_mov_b32 v2, {LDS_FLAG}")
    I(f"v_mov_b32 v4, 0"); I(f"v_mov_b32 v5, 0"); I(f"v_mov_b32 v6, 0"); I(f"v_mov_b32 v7, 0")
    I(f"ds_write_b128 v2, v[4:7]")
    srd(A, WS_, 14, WS_BYTES)
    I(f"s_and_b32 s{sW}, s{sWV}, 3")
    srd(A, WO_, 8, 524288)
    A.barrier()
    I(f"s_cmp_ge_u32 s2, 192")
    A.drain_hazards()
    I("s_cbranch_scc1 K2_Q")
    I(f"s_cmp_ge_u32 s2, 160")
    I("s_cbranch_scc1 K2_KV0")
    I(f"s_cmp_ge_u32 s{sWV}, 4")
    I("s_cbranch_scc1 K2_PF")
    I(f"s_and_b32 s48, s2, 0x87")
    I(f"s_cmp_gt_u32 s48, 0x80")
    I("s_cbranch_scc1 K2_PF")
    h1 = gen_fft(A, ST)
    A.label("K2_PF")
    if int(os.environ.get("WPF", "1")):
        I(f"s_cmp_lt_u32 s2, 128")
        I("s_cbranch_scc1 K2_END")
        I(f"s_and_b32 s48, s2, 31")
        I(f"s_lshl_b32 s48, s48, 16")
        I(f"s_lshl_b32 s49, s{sWV}, 13")
        I(f"s_add_u32 s48, s48, s49")
        I(f"s_add_u32 s49, s48, {OFF_WEFF}")
        I(f"v_lshlrev_b32 v1, 7, v0")
        I(f"buffer_load_dword v2, v1, s[{WS_}:{WS_+3}], s49 offen sc1")
        if int(os.environ.get("WPF", "1")) & 2:
            if OFF_T2: I(f"s_add_u32 s48, s48, {OFF_T2}")
            I(f"buffer_load_dword v3, v1, s[{WS_}:{WS_+3}], s48 offen sc1")
    I("s_endpgm")
    A.label("K2_KV0")
    I(f"s_cmp_ge_u32 s{sWV}, 4")
    I("s_cbranch_scc1 K2_END")
    A.label("K2_KV"); ST.begin_role()
    h2 = gen_kv(A, ST)
    A.label("K2_Q"); ST.begin_role()
    h3 = gen_q(A, ST)
    A.label("K2_END")
    I("s_endpgm")
    return A.text(), max(h1, h2, h3), 0, A.ninst

if __name__ == "__main__":
    t, vg, ag, n = gen_k2(); print(vg, ag, n)
```

```python
from common_k import *
import struct
def f32(x): return hex(struct.unpack('<I', struct.pack('<f', x))[0])

LDS_B = 0
LDS_X = 98304
K1_LDS = 163840
K1_THREADS = 768
SC = os.environ.get("K1SC", "sc1")
T2SC = os.environ.get("T2SC", "sc1")
K1P = int(os.environ.get("K1P", "3"))
NTM = int(os.environ.get("NTM", "0"))
NTW = " nt" if NTM & 1 else ""
NTX = " nt" if NTM & 2 else ""
NTB = " nt" if NTM & 4 else ""
NTP = " nt" if NTM & 8 else ""
sJ, sT, sS1, sC0, sW = 16, 17, 18, 19, 20
X_, WQ_, WR_, WI_, GW_, WS_ = 24, 28, 32, 36, 40, 44
vG, vM = 1, 2

def gen_loader(A, ST):
    I = A.I
    P = Pool('v', 3, 168)
    sL = 21
    I(f"s_sub_u32 s{sL}, s{sW}, 8")
    if int(os.environ.get("PRIO", "3")) & 1: I("s_setprio 3")
    t0, t1, t2, t3 = [P.alloc() for _ in range(4)]
    vx = [P.alloc() for _ in range(4)]; vb = [P.alloc() for _ in range(4)]
    I(f"v_xor_b32 v{t0}, v{vG}, v{vM}")
    I(f"v_lshlrev_b32 v{t0}, 4, v{t0}")
    I(f"v_lshl_add_u32 v{vx[0]}, v{vG}, 15, v{t0}")
    I(f"s_lshl_b32 s56, s{sS1}, 10")
    I(f"s_lshl_b32 s57, s{sL}, 19")
    I(f"s_add_u32 s56, s56, s57")
    I(f"s_lshl_b32 s59, s{sL}, 12")
    I(f"s_add_u32 s57, s59, {LDS_X}")
    for i in range(1, 4):
        I(f"v_xor_b32 v{vx[i]}, {64*i}, v{vx[0]}")
        I(f"v_add_u32 v{vx[i]}, {i*131072 - 1024*i}, v{vx[i]}")
    srd(A, X_, 4, 2097152)
    def issue_x(ci, tag):
        I(f"s_add_u32 s48, s{sC0}, {ci}")
        I(f"s_and_b32 s48, s48, 3")
        I(f"s_lshl_b32 s49, s48, 8")
        I(f"s_add_u32 s49, s49, s56")
        I(f"s_lshl_b32 s50, s48, 14")
        I(f"s_add_u32 m0, s50, s57")
        for i in range(4):
            I(f"buffer_load_dwordx4 v{vx[i]}, s[{X_}:{X_+3}], s49 offen offset:{1024*i}{NTX} lds", tag=tag)
    if os.environ.get("DBG1"): ST.stamp()
    issue_x(0, 'c0')
    if os.environ.get("DBG1"):
        ST.stamp(); A.raw("    s_waitcnt vmcnt(3)"); ST.stamp(); A.raw("    s_waitcnt vmcnt(0)"); ST.stamp()
    I(f"v_lshrrev_b32 v{t0}, 3, v0")
    I(f"v_bfe_u32 v{t1}, v0, 4, 1")
    I(f"v_bfe_u32 v{t2}, v0, 1, 2")
    I(f"v_xor_b32 v{t1}, v{t1}, v{t2}")
    I(f"v_lshlrev_b32 v{t1}, 5, v{t1}")
    I(f"v_and_b32 v{t2}, 1, v0")
    I(f"v_lshl_add_u32 v{t1}, v{t2}, 4, v{t1}")
    I(f"v_mul_u32_u24 v{t0}, 3072, v{t0}")
    I(f"v_add_u32 v{vb[0]}, v{t0}, v{t1}")
    I(f"v_xor_b32 v{vb[1]}, 64, v{vb[0]}")
    I(f"v_add_u32 v{vb[1]}, {8*3072 - 1024}, v{vb[1]}")
    srd(A, WQ_, 6, 1572864)
    I(f"s_mul_i32 s58, s{sL}, {16*3072}")
    I(f"s_lshl_b32 s60, s{sJ}, 7")
    I(f"s_add_u32 s58, s58, s60")
    I(f"s_lshl_b32 s59, s{sL}, 11")
    I(f"s_lshl_b32 s61, s{sC0}, 1")
    def issue_b(ci):
        I(f"s_add_u32 s48, s61, {ci}")
        I(f"s_and_b32 s48, s48, 7")
        I(f"s_mul_i32 s60, s48, {64*3072}")
        I(f"s_add_u32 s60, s60, s58")
        for seg in range(3):
            if seg: I(f"s_add_u32 s60, s60, 1024")
            I(f"s_add_u32 m0, s59, {LDS_B + 24576*(ci & 3) + 8192*seg}")
            for i in range(2):
                I(f"buffer_load_dwordx4 v{vb[i]}, s[{WQ_}:{WQ_+3}], s60 offen offset:{1024*i}{NTB} lds", tag=f'c{ci}')
    def sync(tag):
        A.wait_vm_tag(tag); A.barrier()
        if tag in (('c0',) if os.environ.get('DBG1') else ('cx', 'c0', 'c2', 'c4')): ST.stamp()
    srd(A, WS_, 14, WS_BYTES)
    issue_b(0); issue_b(1); issue_x(1, 'c2')
    WT = WTask(A, sL, 128, 136, 160, 161, (162, 163, 164, 165))
    WT.o = 144
    WT.issue()
    srd(A, GW_, 12, 1024)
    gwr = P.alloc(8, 4); xr = P.alloc(8, 4); gl = P.alloc(8); pl = P.alloc(8); ph = P.alloc(8); sacc, ones = P.alloc(), P.alloc()
    I(f"v_and_b32 v{t0}, 31, v0")
    I(f"v_lshlrev_b32 v{t0}, 5, v{t0}")
    for k in range(2):
        I(f"buffer_load_dwordx4 v[{gwr+4*k}:{gwr+4*k+3}], v{t0}, s[{GW_}:{GW_+3}], 0 offen offset:{16*k}")
    GR = Rec(); I = GR.I
    I(f"s_lshl_b32 s64, s{sJ}, 3")
    I(f"s_lshl_b32 s65, s{sL}, 1")
    I(f"s_add_u32 s64, s64, s65")
    I(f"v_lshrrev_b32 v{t0}, 5, v0")
    I(f"v_add_u32 v{t0}, s64, v{t0}")
    I(f"v_and_b32 v{t1}, 7, v0")
    I(f"v_lshlrev_b32 v{t1}, 1, v{t1}")
    I(f"v_and_b32 v{t2}, 15, v{t0}")
    I(f"v_xor_b32 v{t1}, v{t1}, v{t2}")
    I(f"v_lshlrev_b32 v{t1}, 4, v{t1}")
    I(f"v_lshl_add_u32 v{t1}, v{t0}, 8, v{t1}")
    I(f"v_bfe_u32 v{t2}, v0, 3, 2")
    I(f"v_lshl_add_u32 v{t1}, v{t2}, 14, v{t1}")
    I(f"v_add_u32 v{vb[2]}, {LDS_X}, v{t1}")
    I(f"v_xor_b32 v{vb[3]}, 16, v{vb[2]}")
    I(f"v_mov_b32 v{sacc}, 0")
    I(f"v_mov_b32 v{ones}, 0x3f803f80")
    for i in range(8):
        I(f"v_mov_b32 v{pl+i}, 0"); I(f"v_mov_b32 v{ph+i}, 0")
    I(f"s_lshl_b32 s64, s{sS1}, 8")
    I(f"s_add_u32 s64, s64, {OFF_G}")
    I(f"v_lshlrev_b32 v{t0}, 2, v{t0}")
    for k in range(2): I(f"ds_read_b128 v[{xr+4*k}:{xr+4*k+3}], v{vb[2+k]}")
    for i in range(8):
        I(f"v_and_b32 v{gl+i}, 0xffff, v{gwr+i}")
        I(f"v_and_b32 v{gwr+i}, 0xffff0000, v{gwr+i}")
    for i in range(8):
        I(f"v_dot2c_f32_bf16 v{pl+i}, v{xr+i}, v{gl+i}")
        I(f"v_dot2c_f32_bf16 v{ph+i}, v{xr+i}, v{gwr+i}")
    for i in range(8): I(f"v_cvt_pk_bf16_f32 v{pl+i}, v{pl+i}, v{ph+i}")
    for i in range(8): I(f"v_dot2c_f32_bf16 v{sacc}, v{pl+i}, v{ones}")
    for sh in (8, 4, 2, 1):
        I(f"v_add_f32_dpp v{sacc}, v{sacc}, v{sacc} row_ror:{sh} row_mask:0xf bank_mask:0xf")
    I(f"v_mov_b32 v{t1}, v{sacc}")
    I(f"v_permlane16_swap_b32 v{sacc}, v{t1}")
    I(f"v_add_f32 v{sacc}, v{sacc}, v{t1}")
    I(f"v_cvt_pk_bf16_f32 v{sacc}, v{sacc}, v{sacc}")
    I(f"v_lshlrev_b32 v{sacc}, 16, v{sacc}")
    I(f"v_mul_f32 v{sacc}, 0xbfb8aa3b, v{sacc}")
    I(f"v_exp_f32 v{sacc}, v{sacc}")
    I(f"v_add_f32 v{sacc}, 1.0, v{sacc}")
    I(f"v_rcp_f32 v{sacc}, v{sacc}")
    I(f"v_cvt_pk_bf16_f32 v{sacc}, v{sacc}, v{sacc}")
    I(f"v_lshlrev_b32 v{sacc}, 16, v{sacc}")
    I("s_mov_b32 s66, 1"); I("s_mov_b32 s67, 1")
    I = A.I
    gu = GR.units(); npc = (len(gu) + 2) // 3
    sync('c0')
    issue_x(2, 'c2'); issue_x(3, 'c2')
    sync('c1')
    issue_b(2); issue_b(3); issue_b(4)
    vx = [vb[2], vb[3]]
    for ci in range(2, 5):
        sync(f'c{ci}')
        issue_b(ci + 3)
        if ci < 4:
            for u_ in gu[(ci-2)*npc:(ci-1)*npc]: play(A, u_)
    vq_ = list(A.vmq)
    WT.go()
    A.vmq = vq_

    for u_ in gu[2*npc:]: play(A, u_)
    def sync2(tag):
        idx = [i for i, e in enumerate(A.vmq) if e[1] == tag][-1]
        n = len(A.vmq) - 1 - idx
        I(f"s_cmp_ge_u32 s68, 528")
        A.raw(f"    s_cbranch_scc1 K1_S2A_{tag}")
        A.raw(f"    s_waitcnt vmcnt({n + 6})")
        A.raw(f"    s_branch K1_S2B_{tag}")
        A.raw(f"K1_S2A_{tag}:")
        A.raw(f"    s_waitcnt vmcnt({n})")
        A.raw(f"K1_S2B_{tag}:")
        A.vmq = A.vmq[idx+1:]
        A.barrier()
        if not os.environ.get('DBG1') or tag == 'c7': ST.stamp()
    sync2('c5'); sync2('c6'); sync2('c7')
    I("s_mov_b64 exec, s[66:67]")
    I(f"buffer_store_dword v{sacc}, v{t0}, s[{WS_}:{WS_+3}], s64 offen")
    I("s_mov_b64 exec, -1")
    A.raw("    s_waitcnt vmcnt(1)")
    WT.finish()
    if int(os.environ.get("PREF", "0")):
        vq_ = list(A.vmq)
        pf = 100
        I(f"s_lshr_b32 s48, s2, 3")
        I(f"v_lshlrev_b32 v{t2}, 4, v0")
        I(f"s_lshl_b32 s49, s48, 2")
        I(f"s_add_u32 s49, s49, s{sL}")
        I(f"s_cmp_ge_u32 s49, (GM_CODE_END - gm_k2_kernel) / 1024")
        I("s_cbranch_scc1 K1_NOCODE")
        A.raw("    s_getpc_b64 s[50:51]")
        A.raw("K1_PC:")
        I(f"s_lshl_b32 s49, s49, 10")
        I(f"s_add_u32 s49, s49, gm_k2_kernel - K1_PC")
        I(f"s_add_u32 s50, s50, s49")
        I(f"s_addc_u32 s51, s51, 0")
        I(f"global_load_dwordx4 v[{pf+8}:{pf+11}], v{t2}, s[50:51]")
        A.raw("K1_NOCODE:")
        A.vmq = vq_
    ST.dump(sW, WS_)
    I("s_endpgm")
    return P.hi

def gen_gemm(A, ST):
    I = A.I
    P = Pool('v', 3, 22)
    vl2 = P.alloc()
    t0, t1, t2, t3 = [P.alloc() for _ in range(4)]
    srd(A, WS_, 14, WS_BYTES)
    if int(os.environ.get("DPF", "0")):
        srd(A, X_, 4, 2097152)
        srd(A, WQ_, 6, 1572864)
        I(f"s_lshr_b32 s48, s2, 3")
        I(f"s_lshl_b32 s48, s48, 1")
        I(f"s_and_b32 s49, s{sW}, 1")
        I(f"s_add_u32 s48, s48, s49")
        I(f"s_cmp_ge_u32 s{sW}, 2")
        I("s_cbranch_scc1 K1_DPF2")
        I(f"s_lshl_b32 s48, s48, 15")
        I(f"s_and_b32 s49, s{sS1}, 24")
        I(f"s_lshl_b32 s49, s49, 10")
        I(f"s_add_u32 s48, s48, s49")
        I(f"v_lshlrev_b32 v{t0}, 7, v0")
        A.raw(f"    buffer_load_dword v22, v{t0}, s[{X_}:{X_+3}], s48 offen sc1{NTP}")
        I("s_branch K1_DPF3")
        A.raw("K1_DPF2:")
        I(f"s_mul_i32 s48, s48, {8*3072}")
        I(f"s_lshr_b32 s49, s{sJ}, 2")
        I(f"s_lshl_b32 s49, s49, 9")
        I(f"s_add_u32 s48, s48, s49")
        I(f"v_lshrrev_b32 v{t0}, 3, v0")
        I(f"v_mul_u32_u24 v{t0}, 3072, v{t0}")
        I(f"v_bfe_u32 v{t1}, v0, 2, 1")
        I(f"v_lshl_add_u32 v{t0}, v{t1}, 10, v{t0}")
        I(f"v_and_b32 v{t1}, 3, v0")
        I(f"v_lshl_add_u32 v{t0}, v{t1}, 7, v{t0}")
        A.raw(f"    buffer_load_dword v22, v{t0}, s[{WQ_}:{WQ_+3}], s48 offen offset:1024 sc1{NTP}")
        A.raw(f"    s_mov_b32 exec_lo, 0x0f0f0f0f")
        A.raw(f"    s_mov_b32 exec_hi, 0x0f0f0f0f")
        A.raw(f"    buffer_load_dword v23, v{t0}, s[{WQ_}:{WQ_+3}], s48 offen sc1{NTP}")
        A.raw(f"    s_mov_b64 exec, -1")
        A.raw("K1_DPF3:")
    P2 = Pool('v', 24, 168)
    aaddr = [P2.alloc() for _ in range(4)]
    baddr = P2.alloc()
    vL2E, vza, vpq = P2.alloc(), P2.alloc(), P2.alloc()
    I(f"s_lshl_b32 s48, s{sC0}, 14")
    I(f"s_add_u32 s48, s48, {LDS_X}")
    I(f"v_lshl_add_u32 v{t0}, v{vM}, 8, s48")
    I(f"v_xor_b32 v{t1}, v{vG}, v{vM}")
    I(f"v_lshl_add_u32 v{aaddr[0]}, v{t1}, 4, v{t0}")
    for ks in range(1, 4): I(f"v_xor_b32 v{aaddr[ks]}, {64*ks}, v{aaddr[0]}")
    I(f"v_bfe_u32 v{t0}, v0, 2, 2")
    I(f"v_bfe_u32 v{t1}, v0, 3, 1")
    I(f"v_and_b32 v{t2}, 1, v{vG}")
    I(f"v_lshl_or_b32 v{t1}, v{t2}, 1, v{t1}")
    I(f"v_xor_b32 v{t1}, s{sW}, v{t1}")
    I(f"v_lshl_add_u32 v{t0}, v{vG}, 3, v{t0}")
    I(f"v_lshlrev_b32 v{t0}, 7, v{t0}")
    I(f"v_lshl_add_u32 v{t0}, v{t1}, 5, v{t0}")
    I(f"v_and_b32 v{t1}, 3, v0")
    I(f"v_lshl_add_u32 v{baddr}, v{t1}, 3, v{t0}")
    baddr2 = P2.alloc()
    I(f"v_add_u32 v{baddr2}, 49152, v{baddr}")
    acc = [[P2.alloc(4, 4) for seg in range(3)] for mt in range(4)]
    af = [[P2.alloc(4, 4) for mt in range(4)] for _ in range(3)]
    bf = [[P2.alloc(4, 4) for seg in range(3)] for _ in range(3)]
    tt = [P.alloc() for _ in range(8)]
    ones = P.alloc(4, 4)
    for i in range(4): I(f"v_mov_b32 v{ones+i}, 0x3f803f80")
    I(f"v_mov_b32 v{vL2E}, {hex(LOG2E)}")
    I(f"s_lshl_b32 s48, s{sJ}, 2")
    I(f"s_add_u32 s48, s48, s{sW}")
    I(f"s_lshl_b32 s52, s48, 15")
    I(f"s_lshl_b32 s50, s{sS1}, 10")
    I(f"s_add_u32 s52, s52, s50")
    I(f"s_add_u32 s52, s52, {OFF_KVP}")
    I(f"s_lshl_b32 s51, s48, 11")
    I(f"s_lshl_b32 s50, s{sS1}, 6")
    I(f"s_add_u32 s51, s51, s50")
    I(f"s_add_u32 s51, s51, {OFF_ZP}")
    I(f"s_lshl_b32 s53, s{sS1}, 16")
    I(f"s_lshl_b32 s50, s48, 9")
    I(f"s_add_u32 s53, s53, s50")
    I(f"s_add_u32 s53, s53, {OFF_PQ}")
    I(f"v_lshlrev_b32 v{vl2}, 4, v0")
    I(f"v_lshlrev_b32 v{vza}, 2, v{vM}")
    I(f"v_lshlrev_b32 v{vpq}, 3, v0")
    def read_list(gs):
        ks, buf, slot = gs & 3, gs % 3, (gs >> 1) & 3
        ba = baddr2 if slot >= 2 else baddr
        L_ = []
        for seg in range(3):
            for half in range(2):
                L_.append(f"ds_read_b64_tr_b16 v[{bf[buf][seg]+2*half}:{bf[buf][seg]+2*half+1}], v{ba} offset:{(slot&1)*24576 + seg*8192 + (gs&1)*4096 + half*512}")
        for mt in range(4):
            L_.append(f"ds_read_b128 v[{af[buf][mt]}:{af[buf][mt]+3}], v{aaddr[ks]} offset:{mt*4096}")
        return L_
    def mfma_list(gs, mts=range(4)):
        buf = gs % 3
        L_ = []
        for mt in mts:
            for seg in (1, 2, 0):
                c = acc[mt][seg]
                cs = "0" if gs == 0 else f"v[{c}:{c+3}]"
                a_, b_ = af[buf][mt], bf[buf][seg]
                if seg == 0: a_, b_ = b_, a_
                L_.append(f"v_mfma_f32_16x16x32_bf16 v[{c}:{c+3}], v[{a_}:{a_+3}], v[{b_}:{b_+3}], {cs}")
        return L_
    def mfmas(gs):
        for x_ in mfma_list(gs): I(x_)
    def advance(ci):
        I(f"s_add_u32 s48, s{sC0}, {ci+1}")
        I(f"s_and_b32 s48, s48, 3")
        I(f"s_cmp_eq_u32 s48, 0")
        I(f"s_movk_i32 s49, 16384")
        I(f"s_cselect_b32 s48, {hex(-49152 & 0xffffffff)}, s49")
        for ks in range(4): I(f"v_add_u32 v{aaddr[ks]}, s48, v{aaddr[ks]}")
    ST.stamp()
    GV = int(os.environ.get("GV", "1"))
    done = 0
    if GV == 0:
      for gs in range(16):
        if gs & 1 == 0:
            if gs == 14:
                while done < gs: mfmas(done); done += 1
            if gs & 3 == 0 and gs: advance((gs >> 2) - 1)
            A.barrier()
            if gs in (0, 4, 8, 14): ST.stamp()
        rl = read_list(gs)
        if done <= gs - 2:
            ml = mfma_list(done); done += 1
            for k_, m_ in enumerate(ml):
                I(m_)
                if k_ < len(rl): I(rl[k_])
        else:
            for r_ in rl: I(r_)
    else:
      for c in range(8):
        gs = 2 * c
        if gs & 3 == 0 and gs: advance((gs >> 2) - 1)
        A.barrier()
        if gs in (0, 4, 8, 14): ST.stamp()
        rl = read_list(gs) + read_list(gs + 1)
        ml = mfma_list(gs - 1) if c else []
        ri = 0
        for m_ in ml:
            I(m_)
            for _ in range(2):
                if ri < 14: I(rl[ri]); ri += 1
        ml = mfma_list(gs)
        while ri < (14 if c else 14): I(rl[ri]); ri += 1
        for m_ in ml:
            I(m_)
            if ri < 20: I(rl[ri]); ri += 1
        done = gs + 1
    while done < 16: mfmas(done); done += 1
    ST.stamp()
    fr = af[1]
    pkq = [fr[0], fr[1]]; vq = [fr[2], fr[3]]
    kvacc, zacc = bf[1][0], bf[1][1]
    def phi4(k0):
        for pr in range(2): I(f"v_cvt_pk_bf16_f32 v{tt[pr]}, v{k0+2*pr}, v{k0+2*pr+1}")
        for pr in range(2):
            I(f"v_lshlrev_b32 v{k0+2*pr}, 16, v{tt[pr]}")
            I(f"v_and_b32 v{k0+2*pr+1}, 0xffff0000, v{tt[pr]}")
        for i in range(4): I(f"v_mul_f32 v{tt[4+i]}, v{vL2E}, v{k0+i}")
        for i in range(4): I(f"v_exp_f32 v{tt[4+i]}, v{tt[4+i]} clamp")
        for i in range(4): I(f"v_max_f32 v{k0+i}, 0x358637bd, v{k0+i}")
        for i in range(4): I(f"v_add_f32 v{k0+i}, v{k0+i}, v{tt[4+i]}")
    for mt in range(4):
        k0 = acc[mt][1]; v0_ = acc[mt][2]
        for pr in range(2):
            I(f"v_cvt_pk_bf16_f32 v{vq[mt>>1] + 2*(mt&1) + pr}, v{v0_+2*pr}, v{v0_+2*pr+1}")
        phi4(k0)
        for pr in range(2):
            I(f"v_cvt_pk_bf16_f32 v{pkq[mt>>1] + 2*(mt&1) + pr}, v{k0+2*pr}, v{k0+2*pr+1}")
        if mt & 1:
            h2 = mt >> 1
            cs = "0" if h2 == 0 else f"v[{kvacc}:{kvacc+3}]"
            cz = "0" if h2 == 0 else f"v[{zacc}:{zacc+3}]"
            I(f"v_mfma_f32_16x16x32_bf16 v[{kvacc}:{kvacc+3}], v[{vq[h2]}:{vq[h2]+3}], v[{pkq[h2]}:{pkq[h2]+3}], {cs}")
            I(f"v_mfma_f32_16x16x32_bf16 v[{zacc}:{zacc+3}], v[{ones}:{ones+3}], v[{pkq[h2]}:{pkq[h2]+3}], {cz}")
    for mt in range(4):
        q0 = acc[mt][0]; o_ = acc[mt][2]
        phi4(q0)
        I(f"v_cvt_pk_bf16_f32 v{o_}, v{q0}, v{q0+1}")
        I(f"v_cvt_pk_bf16_f32 v{o_+1}, v{q0+2}, v{q0+3}")
        I(f"buffer_store_dwordx2 v[{o_}:{o_+1}], v{vpq}, s[{WS_}:{WS_+3}], s53 offen {SC}")
        if mt < 3: I(f"s_add_u32 s53, s53, 16384")
        if mt == 0:
            I(f"buffer_store_dwordx4 v[{kvacc}:{kvacc+3}], v{vl2}, s[{WS_}:{WS_+3}], s52 offen {SC}")
            I("s_mov_b64 exec, 0xffff")
            I(f"buffer_store_dword v{zacc}, v{vza}, s[{WS_}:{WS_+3}], s51 offen {SC}")
            I("s_mov_b64 exec, -1")
    ST.stamp()
    ST.dump(sW, WS_)
    I("s_endpgm")
    return max(P.hi, P2.hi)

class WTask:
    def __init__(self, A, sH, R_, Iq, orr, oii, temps):
        self.A, self.sH = A, sH
        self.R_, self.Iq, self.orr, self.oii = R_, Iq, orr, oii
        self.t0, self.t1, self.t2, self.t3 = temps
    def issue(self):
        A = self.A; I = A.I; sH = self.sH
        R_, Iq, orr, oii, t0, t1, t2, t3 = self.R_, self.Iq, self.orr, self.oii, self.t0, self.t1, self.t2, self.t3
        srd(A, WR_, 8, 1052672)
        srd(A, WI_, 10, 1052672)
        I(f"s_lshl_b32 s68, s2, 1")
        I(f"s_add_u32 s68, s68, s{sH}")
        I(f"s_add_u32 s49, s2, 512")
        I(f"s_cmp_eq_u32 s{sH}, 2")
        I(f"s_cselect_b32 s68, s49, s68")
        I(f"s_cmp_eq_u32 s{sH}, 3")
        I(f"s_cselect_b32 s68, 1024, s68")
        I(f"s_lshr_b32 s49, s68, 1")
        I(f"s_lshr_b32 s50, s49, 3")
        I(f"s_and_b32 s51, s49, 7")
        I(f"s_lshl_b32 s51, s51, 8")
        I(f"s_add_u32 s50, s50, s51")
        I(f"v_lshl_add_u32 v{t0}, v{vG}, 6, s50")
        I(f"v_sub_u32 v{t1}, 2048, v{t0}")
        I(f"v_and_b32 v{t1}, 2047, v{t1}")
        I(f"v_mul_u32_u24 v{t0}, 514, v{t0}")
        I(f"v_mul_u32_u24 v{t1}, 514, v{t1}")
        I(f"s_lshl_b32 s69, s49, 13")
        I(f"s_add_u32 s69, s69, {OFF_WEFF}")
        I(f"v_lshlrev_b32 v{t3}, 5, v{vM}")
        I(f"v_add_u32 v{t2}, v{t0}, v{t3}")
        I(f"v_sub_u32 v{t3}, v{t1}, v{t3}")
        I(f"v_add_u32 v{t3}, 482, v{t3}")
        I(f"v_add_u32 v{t0}, 512, v{t0}")
        I(f"s_bitcmp1_b32 s68, 0")
        I(f"s_cselect_b64 s[70:71], -1, 0")
        I(f"v_cndmask_b32 v{t2}, v{t2}, v{t3}, s[70:71]")
        I(f"v_cndmask_b32 v{t1}, v{t1}, v{t0}, s[70:71]")
    def go(self):
        A = self.A; I = A.I
        R_, Iq, orr, oii, t0, t1, t2, t3 = self.R_, self.Iq, self.orr, self.oii, self.t0, self.t1, self.t2, self.t3
        I(f"s_cmp_ge_u32 s68, 528")
        A.wait_lg_all()
        I("s_cbranch_scc1 K1_WISSUED")
        for k in range(2):
            I(f"buffer_load_dwordx4 v[{R_+4*k}:{R_+4*k+3}], v{t2}, s[{WR_}:{WR_+3}], 0 offen offset:{16*k}{NTW}")
            I(f"buffer_load_dwordx4 v[{Iq+4*k}:{Iq+4*k+3}], v{t2}, s[{WI_}:{WI_+3}], 0 offen offset:{16*k}{NTW}")
        I(f"buffer_load_ushort v{orr}, v{t1}, s[{WR_}:{WR_+3}], 0 offen")
        I(f"buffer_load_ushort v{oii}, v{t1}, s[{WI_}:{WI_+3}], 0 offen")
        A.drain_hazards()
        A.label("K1_WISSUED")
    def finish(self):
        A = self.A; I = A.I
        R_, Iq, o, orr, oii, t0, t1, t2, t3 = self.R_, self.Iq, self.o, self.orr, self.oii, self.t0, self.t1, self.t2, self.t3
        I(f"s_cmp_ge_u32 s68, 528")
        A.drain_hazards()
        I("s_cbranch_scc1 K1_WDONE")
        I(f"v_lshlrev_b32 v{t3}, 11, v{vG}")
        I(f"v_lshl_add_u32 v{t3}, v{vM}, 4, v{t3}")
        I("s_mov_b32 s72, 0x05040100"); I("s_mov_b32 s73, 0x07060302")
        I("s_mov_b32 s74, 0x00010001"); I("s_mov_b32 s75, 0x00010001")
        I(f"s_bitcmp1_b32 s68, 0")
        I("s_cbranch_scc1 K1_WMIR")
        for mir in range(2):
            if mir: A.label("K1_WMIR")
            if mir:
                for k in range(8): I(f"v_xor_b32 v{Iq+k}, 0x80008000, v{Iq+k}")
            for c in range(16):
                tq = 15 - c if mir else c
                I(f"v_perm_b32 v{o + 4*(c&3) + (c>>2)}, v{Iq+(tq>>1)}, v{R_+(tq>>1)}, s{72+(tq&1)}")
            I("s_mov_b64 exec, s[74:75]")
            I(f"v_lshlrev_b32 v{t0}, 16, v{o}")
            I(f"v_and_b32 v{t1}, 0xffff0000, v{o}")
            I(f"v_lshlrev_b32 v{orr}, 16, v{orr}")
            I(f"v_lshlrev_b32 v{oii}, 16, v{oii}")
            I(f"v_add_f32 v{t0}, v{t0}, v{orr}")
            I(f"v_add_f32 v{t1}, v{t1}, v{oii}" if mir else f"v_sub_f32 v{t1}, v{t1}, v{oii}")
            I(f"v_mul_f32 v{t0}, 0.5, v{t0}")
            I(f"v_mul_f32 v{t1}, 0.5, v{t1}")
            I(f"v_cvt_pk_bf16_f32 v{o}, v{t0}, v{t1}")
            I("s_mov_b64 exec, -1")
            for k4 in range(4):
                I(f"buffer_store_dwordx4 v[{o+4*k4}:{o+4*k4+3}], v{t3}, s[{WS_}:{WS_+3}], s69 offen offset:{512*k4 + 256*mir} {SC}")
            A.nop(2)
            A.drain_hazards()
            if not mir: I("s_branch K1_WDONE")
        A.label("K1_WDONE")

def gen_fft(A, ST):
    I = A.I
    sJ = globals()["sJ"]
    P = Pool('v', 3, 168)
    sH = 21
    I(f"s_sub_u32 s{sH}, s{sW}, 4")
    if int(os.environ.get("PRIO", "3")) & 2: I("s_setprio 2")
    t0, t1, t2, t3 = [P.alloc() for _ in range(4)]
    kA, kB = P.alloc(), P.alloc()
    if int(os.environ.get("PREF", "0")) & 2:
        I(f"s_sub_u32 s49, s2, 160")
        I(f"s_lshl_b32 s48, s{sH}, 4")
        I(f"s_and_b32 s48, s48, 32")
        I(f"s_or_b32 s48, s48, s49")
        I(f"s_cmp_ge_u32 s48, 32")
        I("s_cbranch_scc1 K1_NOWO")
        A.raw("    s_load_dwordx2 s[50:51], s[0:1], 16")
        I(f"s_and_b32 s48, s49, 7")
        I(f"s_lshr_b32 s52, s49, 4")
        I(f"s_lshl_b32 s52, s52, 3")
        I(f"s_add_u32 s48, s48, s52")
        I(f"s_lshl_b32 s48, s48, 1")
        I(f"s_bfe_u32 s52, s49, 0x10003")
        I(f"s_add_u32 s48, s48, s52")
        I(f"s_lshl_b32 s48, s48, 14")
        I(f"s_lshl_b32 s52, s{sH}, 13")
        I(f"s_add_u32 s48, s48, s52")
        I(f"v_lshlrev_b32 v{t0}, 7, v0")
        A.raw("    s_waitcnt lgkmcnt(0)")
        srd(A, 72, 50, 524288)
        A.raw(f"    buffer_load_dword v{t3}, v{t0}, s[72:75], s48 offen sc1")
        A.raw("    s_waitcnt vmcnt(0)")
        A.raw("K1_NOWO:")
    I(f"s_and_b32 s22, s{sJ}, 6")
    I(f"s_and_b32 s23, s{sH}, 1")
    I(f"s_or_b32 s22, s22, s23")
    I(f"s_and_b32 s23, s{sJ}, 1")
    I(f"s_lshl_b32 s23, s23, 1")
    I(f"s_lshr_b32 s{sH}, s{sH}, 1")
    I(f"s_add_u32 s{sH}, s{sH}, s23")
    sJ = 22
    split_consts(A, kA, kB)
    srd(A, WS_, 14, WS_BYTES)
    tr1 = [[P.alloc(4, 4) for hl in range(2)] for u in range(2)]
    cv = P.alloc(8, 4)
    vP0, vP1, vK, vSg = P.alloc(), P.alloc(), P.alloc(), P.alloc()
    I(f"v_lshrrev_b32 v{t0}, 1, v{vM}")
    I(f"s_lshl_b32 s53, s{sH}, 3")
    I(f"v_add_u32 v{t0}, s53, v{t0}")
    I(f"v_and_b32 v{t1}, 1, v{vM}")
    I(f"v_mul_u32_u24 v{vP0}, s{sS1}, v{t0}")
    I(f"v_lshl_add_u32 v{vP0}, v{t1}, 9, v{vP0}")
    I(f"v_lshlrev_b32 v{vP1}, 5, v{t0}")
    I(f"v_and_b32 v{vSg}, 1, v{t0}")
    I(f"v_mul_u32_u24 v{vSg}, 0x8000, v{vSg}")
    I(f"v_lshl_or_b32 v{vSg}, v{vSg}, 16, v{vSg}")
    I(f"s_cmp_eq_u32 s{sH}, 0")
    I(f"s_cselect_b32 s54, 0x00020002, 0")
    I(f"s_mov_b32 s55, s54")
    I(f"s_mov_b64 exec, s[54:55]")
    I(f"v_mov_b32 v{vP1}, 1024")
    I(f"v_mov_b32 v{vP0}, 0")
    I(f"s_mov_b64 exec, -1")
    I(f"v_lshlrev_b32 v{t0}, 3, v{vG}")
    I(f"v_mad_u32_u24 v{vP0}, v{t0}, v{vP1}, v{vP0}")
    I(f"v_cvt_f32_u32 v{vP0}, v{vP0}")
    I(f"v_cvt_f32_u32 v{vP1}, v{vP1}")
    I(f"v_mul_f32 v{vP0}, 0x3a000000, v{vP0}")
    I(f"v_mul_f32 v{vP1}, 0x3a000000, v{vP1}")
    I(f"v_add_f32 v{t0}, v{vP0}, v{vP1}")
    I(f"v_cos_f32 v{vK}, v{vP1}")
    I(f"v_cos_f32 v{cv}, v{vP0}")
    I(f"v_cos_f32 v{cv+1}, v{t0}")
    I(f"v_add_f32 v{vK}, v{vK}, v{vK}")
    for j_ in range(2, 8): I(f"v_fma_f32 v{cv+j_}, v{vK}, v{cv+j_-1}, -v{cv+j_-2}")
    split_many(A, [(tr1[0][0] + pr, tr1[0][1] + pr, cv + 2*pr, cv + 2*pr + 1, None, None) for pr in range(4)], kA, kB)
    for hl in range(2):
        for pr in range(4): I(f"v_xor_b32 v{tr1[1][hl]+pr}, v{vSg}, v{tr1[0][hl]+pr}")
    tr2 = [[P.alloc(4, 4) for cs in range(2)] for e in range(4)]
    cd, sd, rc, rs = P.alloc(), P.alloc(), P.alloc(), P.alloc()
    cs8 = P.alloc(8, 4)
    ce = [cs8 + k for k in range(4)]; se = [cs8 + 4 + k for k in range(4)]
    c1 = [cv + e for e in range(4)]; s1_ = [cv + 4 + e for e in range(4)]
    I(f"s_lshl_b32 s53, s{sJ}, 2")
    I(f"v_lshl_add_u32 v{t0}, v{vG}, 5, s53")
    I(f"v_mul_u32_u24 v{vP0}, v{t0}, v{vM}")
    I(f"v_cvt_f32_u32 v{vP0}, v{vP0}")
    I(f"v_mul_f32 v{vP0}, 0x3b000000, v{vP0}")
    I(f"v_cvt_f32_u32 v{vP1}, v{vM}")
    I(f"v_mul_f32 v{t0}, 0x3e800000, v{vP1}")
    I(f"v_mul_f32 v{vP1}, 0x3b000000, v{vP1}")
    I(f"v_cos_f32 v{ce[0]}, v{vP0}"); I(f"v_sin_f32 v{se[0]}, v{vP0}")
    I(f"v_cos_f32 v{cd}, v{vP1}"); I(f"v_sin_f32 v{sd}, v{vP1}")
    I(f"v_cos_f32 v{rc}, v{t0}"); I(f"v_sin_f32 v{rs}, v{t0}")
    I(f"v_rndne_f32 v{rc}, v{rc}"); I(f"v_rndne_f32 v{rs}, v{rs}")
    I(f"v_and_b32 v{vSg}, 1, v{vM}")
    I(f"v_mul_u32_u24 v{vSg}, 0x8000, v{vSg}")
    I(f"v_lshl_or_b32 v{vSg}, v{vSg}, 16, v{vSg}")
    for e in range(1, 4):
        I(f"v_mul_f32 v{t0}, v{se[e-1]}, v{sd}")
        I(f"v_mul_f32 v{t1}, v{ce[e-1]}, v{sd}")
        I(f"v_fma_f32 v{ce[e]}, v{ce[e-1]}, v{cd}, -v{t0}")
        I(f"v_fma_f32 v{se[e]}, v{se[e-1]}, v{cd}, v{t1}")
    for e in range(4):
        I(f"v_mul_f32 v{t0}, v{se[e]}, v{rs}")
        I(f"v_mul_f32 v{t1}, v{ce[e]}, v{rs}")
        I(f"v_fma_f32 v{c1[e]}, v{ce[e]}, v{rc}, -v{t0}")
        I(f"v_fma_f32 v{s1_[e]}, v{se[e]}, v{rc}, v{t1}")
    split_many(A, [(tr2[e][0], tr2[e][0] + 2, ce[e], c1[e], None, None) for e in range(4)] +
                  [(tr2[e][1], tr2[e][1] + 2, se[e], s1_[e], None, None) for e in range(4)], kA, kB)
    for e in range(4):
        for cs in range(2):
            I(f"v_xor_b32 v{tr2[e][cs]+1}, v{vSg}, v{tr2[e][cs]}")
            I(f"v_xor_b32 v{tr2[e][cs]+3}, v{vSg}, v{tr2[e][cs]+2}")
    a0, a1 = P.alloc(), P.alloc()
    I(f"v_bfe_u32 v{t0}, v0, 2, 2")
    I(f"v_lshl_add_u32 v{t0}, v{vG}, 3, v{t0}")
    I(f"v_and_b32 v{t1}, 3, v0")
    I(f"s_lshr_b32 s53, s{sJ}, 1")
    I(f"v_lshl_add_u32 v{t1}, v{t1}, 2, s53")
    I(f"v_and_b32 v{t2}, 15, v{t0}")
    I(f"v_xor_b32 v{t1}, v{t1}, v{t2}")
    I(f"v_lshlrev_b32 v{t1}, 4, v{t1}")
    I(f"v_lshl_add_u32 v{t1}, v{t0}, 8, v{t1}")
    I(f"s_and_b32 s53, s{sJ}, 1")
    I(f"s_lshl_b32 s53, s53, 3")
    I(f"s_add_u32 s53, s53, {LDS_X}")
    I(f"v_add_u32 v{a0}, s53, v{t1}")
    I(f"v_xor_b32 v{a1}, 64, v{a0}")
    vcs, vsn, vaddr, vaddr2 = cd, sd, rc, rs
    I(f"v_cvt_f32_u32 v{vcs}, s{sS1}")
    I(f"v_mul_f32 v{vcs}, 0x3c800000, v{vcs}")
    I(f"v_sin_f32 v{vsn}, v{vcs}")
    I(f"v_cos_f32 v{vcs}, v{vcs}")
    I(f"v_and_b32 v{t0}, 3, v0")
    I(f"v_lshlrev_b32 v{vaddr2}, 7, v{t0}")
    I(f"v_bfe_u32 v{t0}, v0, 2, 2")
    I(f"v_lshl_add_u32 v{vaddr2}, v{t0}, 4, v{vaddr2}")
    I(f"v_lshl_add_u32 v{vaddr}, v{vG}, 17, v{vaddr2}")
    I(f"s_lshl_b32 s62, s{sH}, 19")
    I(f"s_lshl_b32 s53, s{sS1}, 11")
    I(f"s_lshr_b32 s66, s{sJ}, 1")
    I(f"s_lshl_b32 s66, s66, 9")
    I(f"s_add_u32 s66, s66, s53")
    I(f"s_and_b32 s53, s{sJ}, 1")
    I(f"s_lshl_b32 s53, s53, 6")
    I(f"s_add_u32 s66, s66, s53")
    if OFF_T2: I(f"s_add_u32 s66, s66, {OFF_T2}")
    I(f"s_add_u32 s62, s62, s66")
    I(f"s_add_u32 s63, s62, {65536}")
    I(f"s_add_u32 s66, s66, {32*65536}")
    I(f"s_cmp_eq_u32 s{sH}, 0")
    I(f"s_cselect_b64 s[54:55], 0xffff, 0")
    ST.stamp()
    A.barrier(); A.barrier(); A.barrier()
    ST.stamp()
    F = Rec(); FI = F.I
    xa = [[P.alloc(4, 4) for u in range(2)] for tt in range(4)]
    d1 = [P.alloc(4, 4) for tt in range(4)]
    for tt in range(4):
        for u in range(2):
            FI(f"ds_read_b64_tr_b16 v[{xa[tt][u]}:{xa[tt][u]+1}], v{a0} offset:{tt*16384+u*8192}")
            FI(f"ds_read_b64_tr_b16 v[{xa[tt][u]+2}:{xa[tt][u]+3}], v{a1} offset:{tt*16384+u*8192+1024}")
    for tt in range(4):
        for u in range(2):
            for hl in range(2 if K1P >= 2 else 1):
                cs = "0" if (u == 0 and hl == 0) else f"v[{d1[tt]}:{d1[tt]+3}]"
                FI(f"v_mfma_f32_16x16x32_bf16 v[{d1[tt]}:{d1[tt]+3}], v[{xa[tt][u]}:{xa[tt][u]+3}], v[{tr1[u][hl]}:{tr1[u][hl]+3}], {cs}")
    F.barrier()
    dh = [P.alloc(4, 4) for e in range(4)]; dl = [P.alloc(4, 4) for e in range(4)]
    pc = [xa[e][0] for e in range(4)]; ps = [xa[e][1] for e in range(4)]
    for eh in range(2):
        if K1P >= 3:
            split_many(F, [(dh[e] + pr, dl[e] + pr, d1[2*pr] + e, d1[2*pr+1] + e, dh[e] + 2 + pr, dl[e] + 2 + pr) for e in (2*eh, 2*eh+1) for pr in range(2)], kA, kB)
        else:
            for e in (2*eh, 2*eh+1):
                for pr in range(2):
                    FI(f"v_cvt_pk_bf16_f32 v{dh[e]+pr}, v{d1[2*pr]+e}, v{d1[2*pr+1]+e}")
                    FI(f"v_mov_b32 v{dh[e]+2+pr}, v{dh[e]+pr}")
        for e in (2*eh, 2*eh+1):
            for (acc_, cs_) in ((pc[e], 0), (ps[e], 1)):
                FI(f"v_mfma_f32_16x16x32_bf16 v[{acc_}:{acc_+3}], v[{dh[e]}:{dh[e]+3}], v[{tr2[e][cs_]}:{tr2[e][cs_]+3}], 0")
                if K1P >= 3: FI(f"v_mfma_f32_16x16x32_bf16 v[{acc_}:{acc_+3}], v[{dl[e]}:{dl[e]+3}], v[{tr2[e][cs_]}:{tr2[e][cs_]+3}], v[{acc_}:{acc_+3}]")
        if K1P >= 3 or eh == 1: F.barrier()
    rq = [tr1[0][0], tr1[0][1], tr1[1][0]]; iq = [tr1[1][1], d1[0], d1[1]]
    re = [[rq[ks2] + e for e in range(4)] for ks2 in range(3)]
    im = [[iq[ks2] + e for e in range(4)] for ks2 in range(3)]
    for e in range(4):
        for ks2 in range(2):
            FI(f"v_add_f32 v{re[ks2][e]}, v{pc[e]+2*ks2}, v{ps[e]+2*ks2+1}")
            FI(f"v_sub_f32 v{im[ks2][e]}, v{pc[e]+2*ks2+1}, v{ps[e]+2*ks2}")
    FI("s_mov_b64 exec, s[54:55]")
    for e in range(4):
        FI(f"v_mov_b32 v{re[0][e]}, v{pc[e]}")
        FI(f"v_xor_b32 v{im[0][e]}, 0x80000000, v{ps[e]}")
    FI("s_mov_b64 exec, -1")
    gr = [(dh[0], dh[1]), (dh[2], dh[3]), (dl[0], dl[1])]
    def granule(R, ks2):
        gh, gl = gr[ks2]
        for pr in range(2):
            R.I(f"v_cvt_pk_bf16_f32 v{gh+pr}, v{re[ks2][2*pr]}, v{re[ks2][2*pr+1]}")
            R.I(f"v_cvt_pk_bf16_f32 v{gh+2+pr}, v{im[ks2][2*pr]}, v{im[ks2][2*pr+1]}")
    for ks2 in range(2): granule(F, ks2)
    for ks2 in range(2):
        gh, gl = gr[ks2]
        FI(f"buffer_store_dwordx4 v[{gh}:{gh+3}], v{vaddr}, s[{WS_}:{WS_+3}], s{62+ks2} offen {T2SC}")
    NOFFT = int(os.environ.get("NOFFT", "0"))
    for u in F.units():
        if NOFFT and not (u[0][0] == 'C'): continue
        play(A, u)
    ST.stamp()
    I(f"s_cmp_lg_u32 s{sH}, 0")
    A.drain_hazards()
    I("s_cbranch_scc1 K1_NOSP")
    for e in range(4):
        I(f"v_mul_f32 v{t2}, v{ps[e]+1}, v{vsn}")
        I(f"v_fma_f32 v{re[2][e]}, v{pc[e]+1}, v{vcs}, -v{t2}")
        I(f"v_mul_f32 v{t3}, v{ps[e]+1}, v{vcs}")
        I(f"v_fma_f32 v{im[2][e]}, -v{pc[e]+1}, v{vsn}, -v{t3}")
    granule(A, 2)
    I("s_mov_b64 exec, 0xffff")
    gh, gl = gr[2]
    I(f"buffer_store_dwordx4 v[{gh}:{gh+3}], v{vaddr2}, s[{WS_}:{WS_+3}], s66 offen {T2SC}")
    vmq_save = list(A.vmq)
    I("s_mov_b64 exec, -1")
    A.label("K1_NOSP")
    A.vmq = vmq_save
    ST.stamp()
    if STAMPS:
        for _ in range(2 if K1P >= 3 else 3): A.barrier()
    ST.dump(sW, WS_)
    return P.hi

def gen_k1():
    A = Asm(); I = A.I
    I("s_cmp_ge_u32 s2, 256")
    I("s_cbranch_scc1 K1_END")
    ST = Stamper(A, 0); ST.first()
    I("s_load_dwordx4 s[4:7], s[0:1], 0")
    I("s_load_dwordx4 s[8:11], s[0:1], 32")
    I("s_load_dwordx2 s[12:13], s[0:1], 48")
    I("s_load_dwordx2 s[14:15], s[0:1], 72")
    I("v_lshrrev_b32 v1, 6, v0")
    I(f"v_readfirstlane_b32 s{sW}, v1")
    if int(os.environ.get("CPF", "0")):
        I(f"s_cmp_ge_u32 s{sW}, 2")
        I("s_cbranch_scc1 K1_NOCPF")
        A.raw("    s_getpc_b64 s[22:23]")
        A.raw("K1_PC0:")
        A.raw("    v_lshlrev_b32 v3, 7, v0")
        A.raw("    v_min_u32 v3, gm_k2_kernel - K1_PC0 - 16, v3")
        A.raw("    global_load_dword v23, v3, s[22:23]")
        A.raw("K1_NOCPF:")
    I("v_and_b32 v0, 63, v0")
    decode_wg(A, "s2", sJ, sS1)
    I(f"s_add_u32 s{sC0}, s{sS1}, s{sJ}")
    I(f"s_and_b32 s{sC0}, s{sC0}, {int(os.environ.get('ROT', '3'))}")
    I(f"v_lshrrev_b32 v{vG}, 4, v0")
    I(f"v_and_b32 v{vM}, 15, v0")
    I(f"s_cmp_lt_u32 s{sW}, 8")
    A.drain_hazards()
    I("s_cbranch_scc1 K1_NOTL")
    lg_save = list(A.lgq)
    h1 = gen_loader(A, ST)
    A.label("K1_NOTL"); A.lgq = list(lg_save); ST.begin_role()
    I(f"s_cmp_ge_u32 s{sW}, 4")
    I("s_cbranch_scc1 K1_FFT")
    h2 = gen_gemm(A, ST)
    A.label("K1_FFT"); A.lgq = list(lg_save); ST.begin_role()
    h3 = gen_fft(A, ST)
    A.label("K1_END")
    I("s_endpgm")
    return A.text(), max(h1, h2, h3), A.ninst

if __name__ == "__main__":
    t, vg, n = gen_k1()
    print(vg, n)
```

```python
from common_k import *
import struct, os
def f32(x): return hex(struct.unpack('<I', struct.pack('<f', x))[0])

LDS_T = 1024
LDS_E = 36864
LDS_FLAG = LDS_E + 32768
K2_LDS = LDS_FLAG + 64
K2_GRID = 256
K2_THREADS = 512
SC = os.environ.get("K2SC", "sc1")
V4SC = os.environ.get("V4SC", "sc1")
sW = 20
sWV = 19
X_, WQ_, WO_, WS_ = 24, 28, 32, 44
LDS_W = 17408

def merge(A, mf, va, per):
    vi = 0
    for m_ in mf:
        A.I(m_)
        for _ in range(per):
            if vi < len(va): A.I(va[vi]); vi += 1
    while vi < len(va): A.I(va[vi]); vi += 1

def sw_barrier(A, idx, tag, vt, vone, sreg=None):
    I = A.I
    if not int(os.environ.get("SWB", "0")):
        A.barrier(); return
    A.wait_lg_all()
    I(f"v_mov_b32 v{vt}, {LDS_FLAG + 4*idx}" if sreg is None else f"v_mov_b32 v{vt}, s{sreg}")
    I(f"v_mov_b32 v{vone}, 1")
    I("s_mov_b64 exec, 1")
    I(f"ds_add_u32 v{vt}, v{vone}")
    A.raw(f"SWB_{tag}:")
    I(f"ds_read_b32 v{vone}, v{vt}")
    I(f"v_readfirstlane_b32 s48, v{vone}")
    I(f"s_cmp_lt_u32 s48, 4")
    I(f"s_cbranch_scc1 SWB_{tag}")
    I("s_mov_b64 exec, -1")

class L_:
    def __init__(self): self.l = []
    def I(self, t, tag=None): self.l.append(t)

def gen_fft(A, ST):
    I = A.I
    P = Pool('v', 1, 256)
    sK2, sKB4, sKB = 16, 17, 18
    I("s_setprio 3")
    I(f"s_lshr_b32 s{sK2}, s2, 5")
    I(f"s_lshl_b32 s{sK2}, s{sK2}, 3")
    I(f"s_and_b32 s48, s2, 7")
    I(f"s_add_u32 s{sK2}, s{sK2}, s48")
    I(f"s_bfe_u32 s{sKB4}, s2, 0x20003")
    t0, t1, t2, t3 = [P.alloc() for _ in range(4)]
    vN, vH = P.alloc(), P.alloc()
    vo = [P.alloc() for _ in range(4)]
    I(f"v_and_b32 v{vN}, 31, v0")
    I(f"v_lshrrev_b32 v{vH}, 5, v0")
    I(f"s_and_b32 s48, s{sW}, 1")
    I(f"s_lshl_b32 s48, s48, 3")
    I(f"v_xor_b32 v{t0}, s48, v{vN}")
    I(f"v_xor_b32 v{t0}, v{t0}, v{vH}")
    I(f"v_lshrrev_b32 v{t1}, 3, v{t0}")
    I(f"v_and_b32 v{t0}, 7, v{t0}")
    I(f"v_lshlrev_b32 v{t0}, 4, v{t0}")
    I(f"v_lshl_add_u32 v{t0}, v{t1}, 9, v{t0}")
    I(f"v_lshl_add_u32 v{vo[0]}, v{vH}, 11, v{t0}")
    for i in range(1, 4):
        I(f"v_xor_b32 v{vo[i]}, {32*i}, v{vo[0]}")
        I(f"v_add_u32 v{vo[i]}, {3072*i}, v{vo[i]}")
    I(f"s_lshl_b32 s48, s{sK2}, 16")
    I(f"s_lshl_b32 s49, s{sW}, 14")
    I(f"s_add_u32 s48, s48, s49")
    I(f"s_lshl_b32 s50, s{sKB4}, 9")
    I(f"s_add_u32 s51, s48, s50")
    I(f"s_add_u32 s51, s51, {OFF_WEFF}")
    I(f"s_lshl_b32 s49, s{sKB4}, 7")
    I(f"s_add_u32 s48, s48, s49")
    if OFF_T2: I(f"s_add_u32 s48, s48, {OFF_T2}")
    I(f"s_lshl_b32 s49, s{sW}, 12")
    I(f"s_add_u32 m0, s49, {LDS_T}")
    for i in range(4):
        I(f"buffer_load_dwordx4 v{vo[i]}, s[{WS_}:{WS_+3}], s48 offen offset:{1024*i} lds", tag='t2')
    I(f"v_lshlrev_b32 v{t0}, 4, v{vN}")
    I(f"v_lshl_add_u32 v{t0}, v{vH}, 11, v{t0}")
    I(f"s_mul_i32 s49, s{sW}, 4160")
    I(f"s_add_u32 m0, s49, {LDS_W}")
    for i in range(4):
        if i:
            I(f"s_add_u32 m0, m0, 1040")
            I(f"s_add_u32 s51, s51, 4096")
        I(f"buffer_load_dwordx4 v{t0}, s[{WS_}:{WS_+3}], s51 offen lds", tag='w')
    I(f"s_lshl_b32 s{sKB}, s{sW}, 2")
    I(f"s_add_u32 s{sKB}, s{sKB}, s{sKB4}")
    kA, kB = P.alloc(), P.alloc()
    nterm = 2 if NT2 >= 2 else 1
    if nterm == 2: split_consts(A, kA, kB)
    sets = [[dict(C=P.alloc(8, 4), S=P.alloc(8, 4), N=P.alloc(8, 4)) for _ in range(nterm)] for _ in range(2)]
    D = [(P.alloc(16, 4), P.alloc(16, 4)) for _ in range(2)]
    cw, sw = D[1][0], D[1][1]
    vst, vsd, cd, sd, rc, rs, vSg, vNeg = [P.alloc() for _ in range(8)]
    I(f"v_cvt_f32_u32 v{t0}, v{vN}")
    I(f"v_mul_f32 v{vst}, 0x3d000000, v{t0}")
    I(f"v_mul_f32 v{t1}, 0x3e800000, v{t0}")
    I(f"v_cos_f32 v{cd}, v{vst}"); I(f"v_sin_f32 v{sd}, v{vst}")
    I(f"v_cos_f32 v{rc}, v{t1}"); I(f"v_sin_f32 v{rs}, v{t1}")
    I(f"v_lshlrev_b32 v{t2}, 2, v{vH}")
    I(f"v_cvt_f32_u32 v{t2}, v{t2}")
    I(f"v_mul_f32 v{vsd}, v{t2}, v{vst}")
    I(f"v_rndne_f32 v{rc}, v{rc}"); I(f"v_rndne_f32 v{rs}, v{rs}")
    I(f"v_and_b32 v{vSg}, 1, v{vN}")
    I(f"v_mul_u32_u24 v{vSg}, 0x8000, v{vSg}")
    I(f"v_lshl_or_b32 v{vSg}, v{vSg}, 16, v{vSg}")
    I(f"v_mov_b32 v{vNeg}, 0x80008000")
    for si in range(2):
        if si == 1:
            I(f"v_cvt_f32_u32 v{t1}, s{sKB}")
            I(f"v_mul_f32 v{t1}, 0x3d800000, v{t1}")
            I(f"v_fmac_f32 v{vsd}, v{t1}, v{vst}")
        I(f"v_cos_f32 v{cw}, v{vsd}"); I(f"v_sin_f32 v{sw}, v{vsd}")
        for jj in range(1, 4):
            I(f"v_mul_f32 v{t0}, v{sw+jj-1}, v{sd}")
            I(f"v_mul_f32 v{t1}, v{cw+jj-1}, v{sd}")
            I(f"v_fma_f32 v{cw+jj}, v{cw+jj-1}, v{cd}, -v{t0}")
            I(f"v_fma_f32 v{sw+jj}, v{sw+jj-1}, v{cd}, v{t1}")
        for jj in range(4):
            I(f"v_mul_f32 v{t0}, v{sw+jj}, v{rs}")
            I(f"v_mul_f32 v{t1}, v{cw+jj}, v{rs}")
            I(f"v_fma_f32 v{cw+4+jj}, v{cw+jj}, v{rc}, -v{t0}")
            I(f"v_fma_f32 v{sw+4+jj}, v{sw+jj}, v{rc}, v{t1}")
        S_ = sets[si]
        if nterm == 2:
            split_many(A, [(S_[0]['C'] + k, S_[1]['C'] + k, cw + 2*k, cw + 2*k + 1, None, None) for k in range(4)] +
                          [(S_[0]['S'] + k, S_[1]['S'] + k, sw + 2*k, sw + 2*k + 1, None, None) for k in range(4)], kA, kB)
        else:
            for k in range(4):
                I(f"v_cvt_pk_bf16_f32 v{S_[0]['C']+k}, v{cw+2*k}, v{cw+2*k+1}")
                I(f"v_cvt_pk_bf16_f32 v{S_[0]['S']+k}, v{sw+2*k}, v{sw+2*k+1}")
        for T_ in S_:
            for k in range(4):
                I(f"v_xor_b32 v{T_['C']+4+k}, v{vSg}, v{T_['C']+k}")
                I(f"v_xor_b32 v{T_['S']+4+k}, v{vSg}, v{T_['S']+k}")
            for k in range(8): I(f"v_xor_b32 v{T_['N']+k}, v{vNeg}, v{T_['S']+k}")
    RE, IM = P.alloc(8, 4), P.alloc(8, 4)
    wf = P.alloc(16, 2); wr_ = P.alloc(16, 2)
    va, va1, vw = vo[0], vo[1], vo[2]
    I(f"v_lshlrev_b32 v{t0}, 2, v{vH}")
    I(f"v_add_u32 v{t0}, s{sW}, v{t0}")
    I(f"v_and_b32 v{t1}, 15, v{vN}")
    I(f"v_xor_b32 v{t0}, v{t0}, v{t1}")
    I(f"v_lshlrev_b32 v{t0}, 4, v{t0}")
    I(f"v_lshl_add_u32 v{t0}, v{vN}, 9, v{t0}")
    I(f"v_add_u32 v{va}, {LDS_T}, v{t0}")
    I(f"v_xor_b32 v{va1}, 128, v{va}")
    I(f"v_lshrrev_b32 v{t0}, 1, v{vN}")
    I(f"v_mul_u32_u24 v{t0}, 1040, v{t0}")
    I(f"v_and_b32 v{t1}, 1, v{vN}")
    I(f"v_lshl_add_u32 v{t0}, v{t1}, 9, v{t0}")
    I(f"v_lshl_add_u32 v{t0}, v{vH}, 6, v{t0}")
    I(f"s_lshl_b32 s48, s{sW}, 2")
    I(f"s_add_u32 s48, s48, {LDS_W}")
    I(f"v_add_u32 v{vw}, s48, v{t0}")
    wa = [cd, sd, vst, vsd]; vs1, vra = rc, rs
    I(f"s_lshl_b32 s48, s{sW}, 13")
    I(f"s_add_u32 s48, s48, {LDS_E}")
    I(f"v_lshl_add_u32 v{t1}, v{vH}, 1, v{vN}")
    I(f"v_lshlrev_b32 v{t2}, 9, v{vH}")
    I(f"v_add_u32 v{t2}, s48, v{t2}")
    for p in range(4):
        I(f"v_add_u32 v{t0}, {4*p}, v{t1}")
        I(f"v_and_b32 v{t0}, 31, v{t0}")
        I(f"v_lshl_add_u32 v{wa[p]}, v{t0}, 4, v{t2}")
    I(f"s_lshl_b32 s48, s{sW}, 3")
    I(f"v_lshrrev_b32 v{vs1}, 3, v0")
    I(f"v_add_u32 v{vs1}, s48, v{vs1}")
    I(f"v_and_b32 v{t1}, 7, v0")
    I(f"v_lshl_add_u32 v{t0}, v{t1}, 1, v{vs1}")
    I(f"v_and_b32 v{t0}, 31, v{t0}")
    I(f"v_lshlrev_b32 v{t0}, 4, v{t0}")
    I(f"v_and_b32 v{t2}, 1, v0")
    I(f"v_lshl_add_u32 v{t0}, v{t2}, 9, v{t0}")
    I(f"v_bfe_u32 v{t2}, v0, 1, 2")
    I(f"v_lshl_add_u32 v{t0}, v{t2}, 11, v{t0}")
    I(f"v_add_u32 v{vra}, {LDS_E}, v{t0}")
    tw = P.alloc(8)
    I(f"s_cmp_eq_u32 s{sK2}, 32")
    I(f"s_cselect_b32 s50, 0x3c800000, 0")
    I(f"v_cvt_f32_u32 v{t0}, v{vs1}")
    I(f"v_mul_f32 v{t0}, s50, v{t0}")
    I(f"v_cvt_f32_u32 v{t2}, s{sKB4}")
    I(f"v_mul_f32 v{t2}, 0x3d800000, v{t2}")
    for b0 in range(4):
        if b0: I(f"v_add_f32 v{t0}, v{t0}, v{t2}")
        I(f"v_cos_f32 v{tw+2*b0}, v{t0}"); I(f"v_sin_f32 v{tw+2*b0+1}, v{t0}")
    I(f"s_mov_b32 s48, 67584")
    I(f"v_mul_lo_u32 v{vs1}, v{vs1}, s48")
    I(f"v_lshl_add_u32 v{vs1}, v{t1}, 4, v{vs1}")
    I(f"s_lshl_b32 s52, s{sK2}, 9")
    I(f"s_lshl_b32 s49, s{sKB4}, 7")
    I(f"s_add_u32 s52, s52, s49")
    I(f"s_add_u32 s52, s52, {OFF_V}")
    ST.stamp()
    A.wait_vm_tag('t2'); sw_barrier(A, 2, "F0", t0, t1)
    ST.stamp()
    for (X, off) in ((RE, 0), (IM, 8)):
        for p in range(4):
            I(f"ds_read_b64 v[{X+2*p}:{X+2*p+1}], v{va1 if p & 1 else va} offset:{256*(p>>1) + off}")
    wreads = [f"ds_read2_b32 v[{wf+i}:{wf+i+1}], v{vw} offset0:{32*(i>>2) + 4*(i&3)} offset1:{32*(i>>2) + 4*(i&3) + 4}" for i in range(0, 16, 2)]
    wunp = []
    for i in range(16):
        wunp.append(f"v_lshlrev_b32 v{wr_+i}, 16, v{wf+i}")
        wunp.append(f"v_and_b32 v{wf+i}, 0xffff0000, v{wf+i}")
    def chain(Dq, X, S_, key, first):
        L = []
        for T_ in S_:
            for h in range(2):
                c = "0" if first else f"v[{Dq}:{Dq+15}]"
                L.append(f"v_mfma_f32_32x32x16_bf16 v[{Dq}:{Dq+15}], v[{X+4*h}:{X+4*h+3}], v[{T_[key]+4*h}:{T_[key]+4*h+3}], {c}")
                first = False
        return L
    def conv(Dq, X):
        return [f"v_cvt_pk_bf16_f32 v{X+k}, v{Dq+2*k}, v{Dq+2*k+1}" for k in range(8)]
    per = 6
    pend = []
    for st in range(4):
        dre, dim = D[st & 1]
        S_ = sets[1 if st == 2 else 0]
        merge(A, chain(dre, RE, S_, 'C', True) + chain(dim, RE, S_, 'N', True), pend, per)
        extra = wreads if st == 0 else (wunp if st == 1 else [])
        if st == 0:
            A.wait_vm_all(); sw_barrier(A, 3, "F1", t0, t1)
        if st == 0 or st == 2:
            merge(A, chain(dre, IM, S_, 'S', False), extra, per)
            merge(A, chain(dim, IM, S_, 'C', False), [], per)
            for x_ in conv(dre, RE): I(x_)
            pend = conv(dim, IM)
        elif st == 1:
            merge(A, chain(dre, IM, S_, 'S', False) + chain(dim, IM, S_, 'C', False), extra, per)
            ore, oim = D[0]
            for i in range(16): I(f"v_mul_f32 v{ore+i}, v{dre+i}, v{wr_+i}")
            for i in range(16):
                I(f"v_fma_f32 v{ore+i}, -v{dim+i}, v{wf+i}, v{ore+i}")
                if i & 1: I(f"v_cvt_pk_bf16_f32 v{RE+(i>>1)}, v{ore+i-1}, v{ore+i}")
            pend = []
            for i in range(16):
                pend.append(f"v_mul_f32 v{dim+i}, v{dim+i}, v{wr_+i}")
                pend.append(f"v_fma_f32 v{dim+i}, -v{dre+i}, v{wf+i}, -v{dim+i}")
                if i & 1: pend.append(f"v_cvt_pk_bf16_f32 v{IM+(i>>1)}, v{dim+i-1}, v{dim+i}")
        else:
            for m_ in chain(dre, IM, S_, 'S', False) + chain(dim, IM, S_, 'C', False): I(m_)
    ST.stamp()
    dre, dim = D[1]
    for p in range(4):
        I(f"ds_write_b128 v{wa[p]}, v[{dre+4*p}:{dre+4*p+3}] offset:{p*2048}")
    for p in range(4):
        I(f"ds_write_b128 v{wa[p]}, v[{dim+4*p}:{dim+4*p+3}] offset:{p*2048+1024}")
    sw_barrier(A, 1, "F", t0, t1)
    cr = [D[0][0] + 4*k for k in range(4)]; ci = [D[0][1] + 4*k for k in range(4)]
    for k in (0, 2, 1, 3):
        I(f"ds_read_b128 v[{cr[k]}:{cr[k]+3}], v{vra} offset:{k*8192}")
        I(f"ds_read_b128 v[{ci[k]}:{ci[k]+3}], v{vra} offset:{k*8192+1024}")
    ar = [dre + 4*k for k in range(4)]; ai = [dim + 4*k for k in range(4)]
    for e in range(4):
        I(f"v_add_f32 v{ar[0]+e}, v{cr[0]+e}, v{cr[2]+e}"); I(f"v_sub_f32 v{ar[1]+e}, v{cr[0]+e}, v{cr[2]+e}")
        I(f"v_add_f32 v{ai[0]+e}, v{ci[0]+e}, v{ci[2]+e}"); I(f"v_sub_f32 v{ai[1]+e}, v{ci[0]+e}, v{ci[2]+e}")
    for e in range(4):
        I(f"v_add_f32 v{ar[2]+e}, v{cr[1]+e}, v{cr[3]+e}"); I(f"v_sub_f32 v{ar[3]+e}, v{cr[1]+e}, v{cr[3]+e}")
        I(f"v_add_f32 v{ai[2]+e}, v{ci[1]+e}, v{ci[3]+e}"); I(f"v_sub_f32 v{ai[3]+e}, v{ci[1]+e}, v{ci[3]+e}")
    oq = [RE, RE + 4, IM, IM + 4]
    for b0 in range(4):
        xr, xi = cr[b0], ci[b0]
        for e in range(4):
            if b0 == 0:
                I(f"v_add_f32 v{xr+e}, v{ar[0]+e}, v{ar[2]+e}"); I(f"v_add_f32 v{xi+e}, v{ai[0]+e}, v{ai[2]+e}")
            elif b0 == 2:
                I(f"v_sub_f32 v{xr+e}, v{ar[0]+e}, v{ar[2]+e}"); I(f"v_sub_f32 v{xi+e}, v{ai[0]+e}, v{ai[2]+e}")
            elif b0 == 1:
                I(f"v_add_f32 v{xr+e}, v{ar[1]+e}, v{ai[3]+e}"); I(f"v_sub_f32 v{xi+e}, v{ai[1]+e}, v{ar[3]+e}")
            else:
                I(f"v_sub_f32 v{xr+e}, v{ar[1]+e}, v{ai[3]+e}"); I(f"v_add_f32 v{xi+e}, v{ai[1]+e}, v{ar[3]+e}")
        c_, s_ = tw + 2*b0, tw + 2*b0 + 1
        for e in range(4):
            I(f"v_mul_f32 v{wf+2*e}, v{xr+e}, v{c_}")
            I(f"v_mul_f32 v{wf+2*e+1}, v{xi+e}, v{c_}")
            I(f"v_fmac_f32 v{wf+2*e}, v{xi+e}, v{s_}")
            I(f"v_fma_f32 v{wf+2*e+1}, -v{xr+e}, v{s_}, v{wf+2*e+1}")
            I(f"v_cvt_pk_bf16_f32 v{oq[b0]+e}, v{wf+2*e}, v{wf+2*e+1}")
        I(f"buffer_store_dwordx4 v[{oq[b0]}:{oq[b0]+3}], v{vs1}, s[{WS_}:{WS_+3}], s52 offen {V4SC}")
        if b0 < 3: I(f"s_add_u32 s52, s52, 16896")
    ST.stamp(); ST.dump(sWV, WS_)
    I("s_endpgm")
    return P.hi

def gen_kv(A, ST):
    I = A.I
    P = Pool('v', 1, 256)
    sHd = 16
    I(f"s_sub_u32 s49, s2, 160")
    I(f"s_and_b32 s48, s49, 7")
    I(f"s_lshr_b32 s52, s49, 4")
    I(f"s_lshl_b32 s52, s52, 3")
    I(f"s_add_u32 s48, s48, s52")
    I(f"s_lshl_b32 s48, s48, 1")
    I(f"s_bfe_u32 s52, s49, 0x10003")
    I(f"s_add_u32 s{sHd}, s48, s52")
    vG, vM = P.alloc(), P.alloc()
    t0, t1, t2, t3 = [P.alloc() for _ in range(4)]
    part = P.alloc(32, 4)
    I(f"v_lshlrev_b32 v{t0}, 4, v0")
    I(f"s_lshl_b32 s48, s{sHd}, 15")
    I(f"s_lshl_b32 s49, s{sW}, 13")
    I(f"s_add_u32 s48, s48, s49")
    I(f"s_add_u32 s48, s48, {OFF_KVP}")
    I(f"s_add_u32 s49, s48, 4096")
    for i in range(8):
        I(f"buffer_load_dwordx4 v[{part+4*i}:{part+4*i+3}], v{t0}, s[{WS_}:{WS_+3}], s{48 + (i>>2)} offen offset:{1024*(i&3)}")
    I(f"v_lshrrev_b32 v{vG}, 4, v0")
    I(f"v_and_b32 v{vM}, 15, v0")
    wo = P.alloc(16, 2)
    I(f"v_lshlrev_b32 v{t1}, 12, v{vG}")
    I(f"v_lshl_add_u32 v{t1}, v{vM}, 3, v{t1}")
    I(f"s_lshl_b32 s54, s{sHd}, 14")
    I(f"s_lshl_b32 s55, s{sW}, 8")
    I(f"s_add_u32 s54, s54, s55")
    for G in range(2):
        for jj in range(4):
            r = wo + 8 * G + 2 * jj
            I(f"buffer_load_dwordx2 v[{r}:{r+1}], v{t1}, s[{WO_}:{WO_+3}], s54 offen offset:{1024*jj + 128*G}")
    I(f"s_lshl_b32 s48, s{sW}, 10")
    I(f"v_add_u32 v{t0}, {LDS_T}, v{t0}")
    I(f"v_add_u32 v{t2}, s48, v{t0}")
    vo_ = P.alloc()
    I(f"v_lshrrev_b32 v{vo_}, 2, v{vM}")
    I(f"v_lshlrev_b32 v{vo_}, 14, v{vo_}")
    I(f"v_and_b32 v{t3}, 3, v{vM}")
    I(f"v_lshl_add_u32 v{vo_}, v{t3}, 6, v{vo_}")
    I(f"v_lshl_add_u32 v{vo_}, v{vG}, 4, v{vo_}")
    I(f"s_lshl_b32 s56, s{sW}, 17")
    I(f"s_lshr_b32 s49, s{sHd}, 1")
    I(f"s_lshl_b32 s49, s49, 10")
    I(f"s_add_u32 s56, s56, s49")
    I(f"s_and_b32 s49, s{sHd}, 1")
    I(f"s_lshl_b32 s49, s49, 8")
    I(f"s_add_u32 s56, s56, s49")
    I(f"s_add_u32 s56, s56, {OFF_KVWO}")
    I(f"s_add_u32 s57, s56, 65536")
    I("s_mov_b32 s52, 0x05040100"); I("s_mov_b32 s53, 0x07060302")
    for i in range(1, 8):
        for c in range(4): I(f"v_add_f32 v{part+c}, v{part+c}, v{part+4*i+c}")
    I(f"ds_write_b128 v{t2}, v[{part}:{part+3}]")
    bq = P.alloc(16, 2); dd = P.alloc(32, 4); oo = P.alloc(16, 4)
    for G in range(2):
        for e in range(4):
            b_ = bq + 8 * G + 2 * e
            for hp in range(2):
                r0 = wo + 8 * G + 4 * hp + (e >> 1); r1 = r0 + 2
                I(f"v_perm_b32 v{b_+hp}, v{r1}, v{r0}, s{52 + (e & 1)}")
    sw_barrier(A, 1, "KV", t2, t3)
    kva = P.alloc(2, 2)
    b_ = part + 4
    for i in range(4):
        I(f"ds_read_b128 v[{b_+4*i}:{b_+3+4*i}], v{t0} offset:{1024*i}")
    for c in range(4):
        I(f"v_add_f32 v{b_+c}, v{b_+c}, v{b_+4+c}")
        I(f"v_add_f32 v{b_+8+c}, v{b_+8+c}, v{b_+12+c}")
        I(f"v_add_f32 v{b_+c}, v{b_+c}, v{b_+8+c}")
    I(f"v_cvt_pk_bf16_f32 v{kva}, v{b_}, v{b_+1}")
    I(f"v_cvt_pk_bf16_f32 v{kva+1}, v{b_+2}, v{b_+3}")
    for G in range(2):
        for e in range(4):
            b_ = bq + 8 * G + 2 * e; d_ = dd + 16 * G + 4 * e
            I(f"v_mfma_f32_16x16x16_bf16 v[{d_}:{d_+3}], v[{kva}:{kva+1}], v[{b_}:{b_+1}], 0")
    for G in range(2):
        for e in range(4):
            o_ = oo + 8 * G + 2 * e; d_ = dd + 16 * G + 4 * e
            I(f"v_cvt_pk_bf16_f32 v{o_}, v{d_}, v{d_+1}")
            I(f"v_cvt_pk_bf16_f32 v{o_+1}, v{d_+2}, v{d_+3}")
        q0, q1 = oo + 8 * G, oo + 8 * G + 4
        for q_ in (q0, q1):
            I(f"v_permlane16_swap_b32 v{q_}, v{q_+2}")
            I(f"v_permlane16_swap_b32 v{q_+1}, v{q_+3}")
        for k in range(4): I(f"v_permlane32_swap_b32 v{q0+k}, v{q1+k}")
        I(f"buffer_store_dwordx4 v[{q0}:{q0+3}], v{vo_}, s[{WS_}:{WS_+3}], s{56+G} offen {SC}")
        I(f"buffer_store_dwordx4 v[{q1}:{q1+3}], v{vo_}, s[{WS_}:{WS_+3}], s{56+G} offen offset:512 {SC}")
    ST.stamp(); ST.dump(sWV, WS_)
    I("s_endpgm")
    return P.hi

def gen_q(A, ST):
    I = A.I
    P = Pool('v', 1, 256)
    sJ, sS1, sU = 16, 18, 17
    I(f"s_sub_u32 s48, s2, 192")
    I(f"s_lshl_b32 s48, s48, 1")
    I(f"s_lshr_b32 s{sU}, s{sWV}, 2")
    I(f"s_add_u32 s48, s48, s{sU}")
    I(f"s_and_b32 s{sJ}, s48, 7")
    I(f"s_lshr_b32 s{sS1}, s48, 3")
    I(f"s_lshl_b32 s{sS1}, s{sS1}, 1")
    vG, vM = P.alloc(), P.alloc()
    t0, t1, t2, t3 = [P.alloc() for _ in range(4)]
    zr = P.alloc(8, 4); gv = P.alloc(2); pqr = [P.alloc(8, 2), P.alloc(8, 2)]
    va, v8 = P.alloc(), P.alloc()
    I(f"v_lshlrev_b32 v{va}, 4, v0")
    I(f"v_lshlrev_b32 v{v8}, 3, v0")
    I(f"s_lshl_b32 s48, s{sJ}, 2")
    I(f"s_add_u32 s49, s48, s{sW}")
    I(f"s_lshl_b32 s49, s49, 11")
    I(f"s_add_u32 s49, s49, {OFF_ZP}")
    I(f"buffer_load_dwordx4 v[{zr}:{zr+3}], v{va}, s[{WS_}:{WS_+3}], s49 offen")
    I(f"buffer_load_dwordx4 v[{zr+4}:{zr+7}], v{va}, s[{WS_}:{WS_+3}], s49 offen offset:1024")
    I(f"s_lshl_b32 s50, s{sS1}, 16")
    I(f"s_lshl_b32 s51, s{sW}, 14")
    I(f"s_add_u32 s50, s50, s51")
    I(f"s_lshl_b32 s51, s{sJ}, 11")
    I(f"s_add_u32 s50, s50, s51")
    I(f"s_add_u32 s54, s50, {OFF_PQ}")
    I(f"s_add_u32 s55, s54, 65536")
    I(f"s_add_u32 s50, s50, {OFF_APP}")
    I(f"s_add_u32 s51, s50, 65536")
    for tk in range(2):
        for hd in range(4):
            I(f"buffer_load_dwordx2 v[{pqr[tk]+2*hd}:{pqr[tk]+2*hd+1}], v{v8}, s[{WS_}:{WS_+3}], s{54+tk} offen offset:{512*hd}")
    I(f"v_lshrrev_b32 v{vG}, 4, v0")
    I(f"v_and_b32 v{vM}, 15, v0")
    I(f"v_lshlrev_b32 v{t1}, 2, v{vM}")
    I(f"s_lshl_b32 s52, s{sS1}, 8")
    I(f"s_lshl_b32 s53, s{sW}, 6")
    I(f"s_add_u32 s52, s52, s53")
    I(f"s_add_u32 s52, s52, {OFF_G}")
    for tk in range(2):
        I(f"buffer_load_dword v{gv+tk}, v{t1}, s[{WS_}:{WS_+3}], s52 offen offset:{256*tk}")
    I(f"s_lshl_b32 s56, s{sU}, 8")
    I(f"s_add_u32 s53, s53, s56")
    I(f"v_add_u32 v{t2}, s53, v{va}")
    I(f"v_lshl_add_u32 v{t3}, v{vG}, 4, s56")
    I(f"s_lshl_b32 s57, s{sU}, 2")
    I(f"s_add_u32 s57, s57, {LDS_FLAG}")
    ST.stamp()
    for c in range(4): I(f"v_add_f32 v{zr+c}, v{zr+c}, v{zr+4+c}")
    for sh in (8, 4):
        for c in range(4):
            I(f"v_add_f32_dpp v{zr+c}, v{zr+c}, v{zr+c} row_ror:{sh} row_mask:0xf bank_mask:0xf")
    for c in range(4): I(f"v_mov_b32 v{zr+4+c}, v{zr+c}")
    for c in range(4): I(f"v_permlane32_swap_b32 v{zr+c}, v{zr+4+c}")
    for c in range(4): I(f"v_add_f32 v{zr+c}, v{zr+c}, v{zr+4+c}")
    for c in range(4): I(f"v_mov_b32 v{zr+4+c}, v{zr+c}")
    for c in range(4): I(f"v_permlane16_swap_b32 v{zr+c}, v{zr+4+c}")
    for c in range(4): I(f"v_add_f32 v{zr+c}, v{zr+c}, v{zr+4+c}")
    I(f"v_cvt_pk_bf16_f32 v{zr+4}, v{zr}, v{zr+1}")
    I(f"v_cvt_pk_bf16_f32 v{zr+5}, v{zr+2}, v{zr+3}")
    I(f"v_lshlrev_b32 v{zr}, 16, v{zr+4}"); I(f"v_and_b32 v{zr+1}, 0xffff0000, v{zr+4}")
    I(f"v_lshlrev_b32 v{zr+2}, 16, v{zr+5}"); I(f"v_and_b32 v{zr+3}, 0xffff0000, v{zr+5}")
    I("s_mov_b64 exec, 15")
    I(f"ds_write_b128 v{t2}, v[{zr}:{zr+3}]")
    I("s_mov_b64 exec, -1")
    c_ = [[P.alloc(4, 4) for hd in range(4)] for tk in range(2)]
    for tk in range(2):
        for hd in range(4):
            for pr in range(2):
                I(f"v_lshlrev_b32 v{c_[tk][hd]+2*pr}, 16, v{pqr[tk]+2*hd+pr}")
                I(f"v_and_b32 v{c_[tk][hd]+2*pr+1}, 0xffff0000, v{pqr[tk]+2*hd+pr}")
    sw_barrier(A, 0, "Q", t0, t1, sreg=57)
    zq = [P.alloc(4, 4) for hd in range(4)]
    for hd in range(4): I(f"ds_read_b128 v[{zq[hd]}:{zq[hd]+3}], v{t3} offset:{hd*64}")
    for tk in range(2):
        den = P.alloc(4, 4); oq = [P.alloc(4, 4), P.alloc(4, 4)]
        cc = c_[tk]
        for hd in range(4):
            I(f"v_mul_f32 v{den+hd}, v{cc[hd]}, v{zq[hd]}")
            for i in range(1, 4): I(f"v_fmac_f32 v{den+hd}, v{cc[hd]+i}, v{zq[hd]+i}")
        I(f"v_permlane32_swap_b32 v{den}, v{den+2}")
        I(f"v_permlane32_swap_b32 v{den+1}, v{den+3}")
        I(f"v_add_f32 v{den}, v{den}, v{den+2}")
        I(f"v_add_f32 v{den+1}, v{den+1}, v{den+3}")
        I(f"v_permlane16_swap_b32 v{den}, v{den+1}")
        I(f"v_add_f32 v{den}, v{den}, v{den+1}")
        I(f"v_add_f32 v{den}, 0x358637bd, v{den}")
        I(f"v_rcp_f32 v{den}, v{den}")
        I(f"v_mul_f32 v{den}, v{den}, v{gv+tk}")
        I(f"v_mov_b32 v{den+1}, v{den}")
        I(f"v_permlane16_swap_b32 v{den}, v{den+1}")
        I(f"v_mov_b32 v{den+2}, v{den}"); I(f"v_mov_b32 v{den+3}, v{den+1}")
        I(f"v_permlane32_swap_b32 v{den}, v{den+2}")
        I(f"v_permlane32_swap_b32 v{den+1}, v{den+3}")
        for hd in range(4):
            c = cc[hd]
            for i in range(4): I(f"v_mul_f32 v{c+i}, v{c+i}, v{den+hd}")
            o_ = oq[hd >> 1] + 2 * (hd & 1)
            I(f"v_cvt_pk_bf16_f32 v{o_}, v{c}, v{c+1}")
            I(f"v_cvt_pk_bf16_f32 v{o_+1}, v{c+2}, v{c+3}")
            if hd & 1:
                q_ = oq[hd >> 1]
                I(f"v_permlane16_swap_b32 v{q_}, v{q_+2}")
                I(f"v_permlane16_swap_b32 v{q_+1}, v{q_+3}")
                I(f"buffer_store_dwordx4 v[{q_}:{q_+3}], v{va}, s[{WS_}:{WS_+3}], s{50+tk} offen offset:{1024*(hd>>1)} {SC}")
    ST.stamp(); ST.dump(sWV, WS_)
    return P.hi

def gen_k2():
    A = Asm(); I = A.I
    I(f"s_cmp_ge_u32 s2, {K2_GRID}")
    I("s_cbranch_scc1 K2_END")
    ST = Stamper(A, 1); ST.first()
    I("s_load_dwordx4 s[4:7], s[0:1], 0")
    I("s_load_dwordx2 s[8:9], s[0:1], 16")
    I("s_load_dwordx2 s[14:15], s[0:1], 72")
    I("v_lshrrev_b32 v1, 6, v0")
    I("v_and_b32 v0, 63, v0")
    I(f"v_readfirstlane_b32 s{sWV}, v1")
    if int(os.environ.get("SWB", "0")):
        I(f"v_mov_b32 v2, {LDS_FLAG}")
        I(f"v_mov_b32 v4, 0"); I(f"v_mov_b32 v5, 0"); I(f"v_mov_b32 v6, 0"); I(f"v_mov_b32 v7, 0")
        I(f"ds_write_b128 v2, v[4:7]")
    srd(A, WS_, 14, WS_BYTES)
    I(f"s_and_b32 s{sW}, s{sWV}, 3")
    srd(A, WO_, 8, 524288)
    if int(os.environ.get("SWB", "0")): A.barrier()
    I(f"s_cmp_ge_u32 s2, 192")
    A.drain_hazards()
    I("s_cbranch_scc1 K2_Q")
    I(f"s_cmp_ge_u32 s2, 160")
    I("s_cbranch_scc1 K2_KV0")
    I(f"s_cmp_ge_u32 s{sWV}, 4")
    I("s_cbranch_scc1 K2_PF")
    I(f"s_and_b32 s48, s2, 0x87")
    I(f"s_cmp_gt_u32 s48, 0x80")
    I("s_cbranch_scc1 K2_PF")
    h1 = gen_fft(A, ST)
    A.label("K2_PF")
    if int(os.environ.get("WPF", "0")):
        I(f"s_cmp_lt_u32 s2, 128")
        I("s_cbranch_scc1 K2_END")
        I(f"s_and_b32 s48, s2, 31")
        I(f"s_lshl_b32 s48, s48, 16")
        I(f"s_lshl_b32 s49, s{sWV}, 13")
        I(f"s_add_u32 s48, s48, s49")
        I(f"s_add_u32 s49, s48, {OFF_WEFF}")
        I(f"v_lshlrev_b32 v1, 7, v0")
        I(f"buffer_load_dword v2, v1, s[{WS_}:{WS_+3}], s49 offen sc1")
        if int(os.environ.get("WPF", "0")) & 2:
            if OFF_T2: I(f"s_add_u32 s48, s48, {OFF_T2}")
            I(f"buffer_load_dword v3, v1, s[{WS_}:{WS_+3}], s48 offen sc1")
    I("s_endpgm")
    A.label("K2_KV0")
    I(f"s_cmp_ge_u32 s{sWV}, 4")
    I("s_cbranch_scc1 K2_END")
    A.label("K2_KV"); ST.begin_role()
    h2 = gen_kv(A, ST)
    A.label("K2_Q"); ST.begin_role()
    h3 = gen_q(A, ST)
    A.label("K2_END")
    I("s_endpgm")
    return A.text(), max(h1, h2, h3), 0, A.ninst

if __name__ == "__main__":
    t, vg, ag, n = gen_k2(); print(vg, ag, n)
```

```python
from common_k import *
import struct
def f32(x): return hex(struct.unpack('<I', struct.pack('<f', x))[0])

LDS_B = 0
LDS_X = 98304
K1_LDS = 163840
K1_THREADS = 768
SC = os.environ.get("K1SC", "sc1")
T2SC = os.environ.get("T2SC", "sc1")
K1P = int(os.environ.get("K1P", "3"))
NTM = int(os.environ.get("NTM", "0"))
NTW = " nt" if NTM & 1 else ""
NTX = " nt" if NTM & 2 else ""
NTB = " nt" if NTM & 4 else ""
NTP = " nt" if NTM & 8 else ""
sJ, sT, sS1, sC0, sW = 16, 17, 18, 19, 20
X_, WQ_, WR_, WI_, GW_, WS_ = 24, 28, 32, 36, 40, 44
vG, vM = 1, 2

def gen_loader(A, ST):
    I = A.I
    P = Pool('v', 3, 168)
    sL = 21
    I(f"s_sub_u32 s{sL}, s{sW}, 8")
    if int(os.environ.get("PRIO", "3")) & 1: I("s_setprio 3")
    t0, t1, t2, t3 = [P.alloc() for _ in range(4)]
    vx = [P.alloc() for _ in range(4)]; vb = [P.alloc() for _ in range(4)]
    I(f"v_xor_b32 v{t0}, v{vG}, v{vM}")
    I(f"v_lshlrev_b32 v{t0}, 4, v{t0}")
    I(f"v_lshl_add_u32 v{vx[0]}, v{vG}, 15, v{t0}")
    I(f"s_lshl_b32 s56, s{sS1}, 10")
    I(f"s_lshl_b32 s57, s{sL}, 19")
    I(f"s_add_u32 s56, s56, s57")
    I(f"s_lshl_b32 s59, s{sL}, 12")
    I(f"s_add_u32 s57, s59, {LDS_X}")
    for i in range(1, 4):
        I(f"v_xor_b32 v{vx[i]}, {64*i}, v{vx[0]}")
        I(f"v_add_u32 v{vx[i]}, {i*131072 - 1024*i}, v{vx[i]}")
    srd(A, X_, 4, 2097152)
    def issue_x(ci, tag):
        I(f"s_add_u32 s48, s{sC0}, {ci}")
        I(f"s_and_b32 s48, s48, 3")
        I(f"s_lshl_b32 s49, s48, 8")
        I(f"s_add_u32 s49, s49, s56")
        I(f"s_lshl_b32 s50, s48, 14")
        I(f"s_add_u32 m0, s50, s57")
        for i in range(4):
            I(f"buffer_load_dwordx4 v{vx[i]}, s[{X_}:{X_+3}], s49 offen offset:{1024*i}{NTX} lds", tag=tag)
    if os.environ.get("DBG1"): ST.stamp()
    issue_x(0, 'c0')
    if os.environ.get("DBG1"):
        ST.stamp(); A.raw("    s_waitcnt vmcnt(3)"); ST.stamp(); A.raw("    s_waitcnt vmcnt(0)"); ST.stamp()
    I(f"v_lshrrev_b32 v{t0}, 3, v0")
    I(f"v_bfe_u32 v{t1}, v0, 4, 1")
    I(f"v_bfe_u32 v{t2}, v0, 1, 2")
    I(f"v_xor_b32 v{t1}, v{t1}, v{t2}")
    I(f"v_lshlrev_b32 v{t1}, 5, v{t1}")
    I(f"v_and_b32 v{t2}, 1, v0")
    I(f"v_lshl_add_u32 v{t1}, v{t2}, 4, v{t1}")
    I(f"v_mul_u32_u24 v{t0}, 3072, v{t0}")
    I(f"v_add_u32 v{vb[0]}, v{t0}, v{t1}")
    I(f"v_xor_b32 v{vb[1]}, 64, v{vb[0]}")
    I(f"v_add_u32 v{vb[1]}, {8*3072 - 1024}, v{vb[1]}")
    srd(A, WQ_, 6, 1572864)
    I(f"s_mul_i32 s58, s{sL}, {16*3072}")
    I(f"s_lshl_b32 s60, s{sJ}, 7")
    I(f"s_add_u32 s58, s58, s60")
    I(f"s_lshl_b32 s59, s{sL}, 11")
    I(f"s_lshl_b32 s61, s{sC0}, 1")
    def issue_b(ci):
        I(f"s_add_u32 s48, s61, {ci}")
        I(f"s_and_b32 s48, s48, 7")
        I(f"s_mul_i32 s60, s48, {64*3072}")
        I(f"s_add_u32 s60, s60, s58")
        for seg in range(3):
            if seg: I(f"s_add_u32 s60, s60, 1024")
            I(f"s_add_u32 m0, s59, {LDS_B + 24576*(ci & 3) + 8192*seg}")
            for i in range(2):
                I(f"buffer_load_dwordx4 v{vb[i]}, s[{WQ_}:{WQ_+3}], s60 offen offset:{1024*i}{NTB} lds", tag=f'c{ci}')
    def sync(tag):
        A.wait_vm_tag(tag); A.barrier()
        if tag in (('c0',) if os.environ.get('DBG1') else ('cx', 'c0', 'c2', 'c4')): ST.stamp()
    srd(A, WS_, 14, WS_BYTES)
    issue_b(0); issue_b(1); issue_x(1, 'c2')
    WT = WTask(A, sL, 128, 136, 160, 161, (162, 163, 164, 165))
    WT.o = 144
    WT.issue()
    srd(A, GW_, 12, 1024)
    gwr = P.alloc(8, 4); xr = P.alloc(8, 4); gl = P.alloc(8); pl = P.alloc(8); ph = P.alloc(8); sacc, ones = P.alloc(), P.alloc()
    I(f"v_and_b32 v{t0}, 31, v0")
    I(f"v_lshlrev_b32 v{t0}, 5, v{t0}")
    for k in range(2):
        I(f"buffer_load_dwordx4 v[{gwr+4*k}:{gwr+4*k+3}], v{t0}, s[{GW_}:{GW_+3}], 0 offen offset:{16*k}")
    GR = Rec(); I = GR.I
    I(f"s_lshl_b32 s64, s{sJ}, 3")
    I(f"s_lshl_b32 s65, s{sL}, 1")
    I(f"s_add_u32 s64, s64, s65")
    I(f"v_lshrrev_b32 v{t0}, 5, v0")
    I(f"v_add_u32 v{t0}, s64, v{t0}")
    I(f"v_and_b32 v{t1}, 7, v0")
    I(f"v_lshlrev_b32 v{t1}, 1, v{t1}")
    I(f"v_and_b32 v{t2}, 15, v{t0}")
    I(f"v_xor_b32 v{t1}, v{t1}, v{t2}")
    I(f"v_lshlrev_b32 v{t1}, 4, v{t1}")
    I(f"v_lshl_add_u32 v{t1}, v{t0}, 8, v{t1}")
    I(f"v_bfe_u32 v{t2}, v0, 3, 2")
    I(f"v_lshl_add_u32 v{t1}, v{t2}, 14, v{t1}")
    I(f"v_add_u32 v{vb[2]}, {LDS_X}, v{t1}")
    I(f"v_xor_b32 v{vb[3]}, 16, v{vb[2]}")
    I(f"v_mov_b32 v{sacc}, 0")
    I(f"v_mov_b32 v{ones}, 0x3f803f80")
    for i in range(8):
        I(f"v_mov_b32 v{pl+i}, 0"); I(f"v_mov_b32 v{ph+i}, 0")
    I(f"s_lshl_b32 s64, s{sS1}, 8")
    I(f"s_add_u32 s64, s64, {OFF_G}")
    I(f"v_lshlrev_b32 v{t0}, 2, v{t0}")
    for k in range(2): I(f"ds_read_b128 v[{xr+4*k}:{xr+4*k+3}], v{vb[2+k]}")
    for i in range(8):
        I(f"v_and_b32 v{gl+i}, 0xffff, v{gwr+i}")
        I(f"v_and_b32 v{gwr+i}, 0xffff0000, v{gwr+i}")
    for i in range(8):
        I(f"v_dot2c_f32_bf16 v{pl+i}, v{xr+i}, v{gl+i}")
        I(f"v_dot2c_f32_bf16 v{ph+i}, v{xr+i}, v{gwr+i}")
    for i in range(8): I(f"v_cvt_pk_bf16_f32 v{pl+i}, v{pl+i}, v{ph+i}")
    for i in range(8): I(f"v_dot2c_f32_bf16 v{sacc}, v{pl+i}, v{ones}")
    for sh in (8, 4, 2, 1):
        I(f"v_add_f32_dpp v{sacc}, v{sacc}, v{sacc} row_ror:{sh} row_mask:0xf bank_mask:0xf")
    I(f"v_mov_b32 v{t1}, v{sacc}")
    I(f"v_permlane16_swap_b32 v{sacc}, v{t1}")
    I(f"v_add_f32 v{sacc}, v{sacc}, v{t1}")
    I(f"v_cvt_pk_bf16_f32 v{sacc}, v{sacc}, v{sacc}")
    I(f"v_lshlrev_b32 v{sacc}, 16, v{sacc}")
    I(f"v_mul_f32 v{sacc}, 0xbfb8aa3b, v{sacc}")
    I(f"v_exp_f32 v{sacc}, v{sacc}")
    I(f"v_add_f32 v{sacc}, 1.0, v{sacc}")
    I(f"v_rcp_f32 v{sacc}, v{sacc}")
    I(f"v_cvt_pk_bf16_f32 v{sacc}, v{sacc}, v{sacc}")
    I(f"v_lshlrev_b32 v{sacc}, 16, v{sacc}")
    I("s_mov_b32 s66, 1"); I("s_mov_b32 s67, 1")
    I = A.I
    gu = GR.units(); npc = (len(gu) + 2) // 3
    sync('c0')
    issue_x(2, 'c2'); issue_x(3, 'c2')
    sync('c1')
    issue_b(2); issue_b(3); issue_b(4)
    vx = [vb[2], vb[3]]
    for ci in range(2, 5):
        sync(f'c{ci}')
        issue_b(ci + 3)
        if ci < 4:
            for u_ in gu[(ci-2)*npc:(ci-1)*npc]: play(A, u_)
    vq_ = list(A.vmq)
    WT.go()
    A.vmq = vq_

    for u_ in gu[2*npc:]: play(A, u_)
    def sync2(tag):
        idx = [i for i, e in enumerate(A.vmq) if e[1] == tag][-1]
        n = len(A.vmq) - 1 - idx
        I(f"s_cmp_ge_u32 s68, 528")
        A.raw(f"    s_cbranch_scc1 K1_S2A_{tag}")
        A.raw(f"    s_waitcnt vmcnt({n + 6})")
        A.raw(f"    s_branch K1_S2B_{tag}")
        A.raw(f"K1_S2A_{tag}:")
        A.raw(f"    s_waitcnt vmcnt({n})")
        A.raw(f"K1_S2B_{tag}:")
        A.vmq = A.vmq[idx+1:]
        A.barrier()
        if not os.environ.get('DBG1') or tag == 'c7': ST.stamp()
    sync2('c5'); sync2('c6'); sync2('c7')
    I("s_mov_b64 exec, s[66:67]")
    I(f"buffer_store_dword v{sacc}, v{t0}, s[{WS_}:{WS_+3}], s64 offen")
    I("s_mov_b64 exec, -1")
    A.raw("    s_waitcnt vmcnt(1)")
    WT.finish()
    if int(os.environ.get("PREF", "1")):
        vq_ = list(A.vmq)
        pf = 100
        I(f"s_lshr_b32 s48, s2, 3")
        I(f"v_lshlrev_b32 v{t2}, 4, v0")
        I(f"s_lshl_b32 s49, s48, 2")
        I(f"s_add_u32 s49, s49, s{sL}")
        I(f"s_cmp_ge_u32 s49, (GM_CODE_END - gm_k2_kernel) / 1024")
        I("s_cbranch_scc1 K1_NOCODE")
        A.raw("    s_getpc_b64 s[50:51]")
        A.raw("K1_PC:")
        I(f"s_lshl_b32 s49, s49, 10")
        I(f"s_add_u32 s49, s49, gm_k2_kernel - K1_PC")
        I(f"s_add_u32 s50, s50, s49")
        I(f"s_addc_u32 s51, s51, 0")
        I(f"global_load_dwordx4 v[{pf+8}:{pf+11}], v{t2}, s[50:51]")
        A.raw("K1_NOCODE:")
        if int(os.environ.get("PREF", "1")) & 4:
            I(f"s_sub_u32 s49, s2, 160")
            I(f"s_lshl_b32 s48, s{sL}, 4")
            I(f"s_and_b32 s48, s48, 32")
            I(f"s_or_b32 s48, s48, s49")
            I(f"s_cmp_ge_u32 s48, 32")
            I("s_cbranch_scc1 K1_NOWO2")
            A.raw("    s_load_dwordx2 s[50:51], s[0:1], 16")
            I(f"s_and_b32 s48, s49, 7")
            I(f"s_lshr_b32 s52, s49, 4")
            I(f"s_lshl_b32 s52, s52, 3")
            I(f"s_add_u32 s48, s48, s52")
            I(f"s_lshl_b32 s48, s48, 1")
            I(f"s_bfe_u32 s52, s49, 0x10003")
            I(f"s_add_u32 s48, s48, s52")
            I(f"s_lshl_b32 s48, s48, 14")
            I(f"s_lshl_b32 s52, s{sL}, 13")
            I(f"s_add_u32 s48, s48, s52")
            I(f"v_lshlrev_b32 v{t0}, 7, v0")
            A.raw("    s_waitcnt lgkmcnt(0)")
            srd(A, 72, 50, 524288)
            A.raw(f"    buffer_load_dword v{pf}, v{t0}, s[72:75], s48 offen sc1")
            A.raw("K1_NOWO2:")
        A.vmq = vq_
    ST.dump(sW, WS_)
    I("s_endpgm")
    return P.hi

def gen_gemm(A, ST):
    I = A.I
    P = Pool('v', 3, 22)
    vl2 = P.alloc()
    t0, t1, t2, t3 = [P.alloc() for _ in range(4)]
    srd(A, WS_, 14, WS_BYTES)
    if int(os.environ.get("DPF", "0")):
        srd(A, X_, 4, 2097152)
        srd(A, WQ_, 6, 1572864)
        I(f"s_lshr_b32 s48, s2, 3")
        I(f"s_lshl_b32 s48, s48, 1")
        I(f"s_and_b32 s49, s{sW}, 1")
        I(f"s_add_u32 s48, s48, s49")
        I(f"s_cmp_ge_u32 s{sW}, 2")
        I("s_cbranch_scc1 K1_DPF2")
        I(f"s_lshl_b32 s48, s48, 15")
        I(f"s_and_b32 s49, s{sS1}, 24")
        I(f"s_lshl_b32 s49, s49, 10")
        I(f"s_add_u32 s48, s48, s49")
        I(f"v_lshlrev_b32 v{t0}, 7, v0")
        A.raw(f"    buffer_load_dword v22, v{t0}, s[{X_}:{X_+3}], s48 offen sc1{NTP}")
        I("s_branch K1_DPF3")
        A.raw("K1_DPF2:")
        I(f"s_mul_i32 s48, s48, {8*3072}")
        I(f"s_lshr_b32 s49, s{sJ}, 2")
        I(f"s_lshl_b32 s49, s49, 9")
        I(f"s_add_u32 s48, s48, s49")
        I(f"v_lshrrev_b32 v{t0}, 3, v0")
        I(f"v_mul_u32_u24 v{t0}, 3072, v{t0}")
        I(f"v_bfe_u32 v{t1}, v0, 2, 1")
        I(f"v_lshl_add_u32 v{t0}, v{t1}, 10, v{t0}")
        I(f"v_and_b32 v{t1}, 3, v0")
        I(f"v_lshl_add_u32 v{t0}, v{t1}, 7, v{t0}")
        A.raw(f"    buffer_load_dword v22, v{t0}, s[{WQ_}:{WQ_+3}], s48 offen offset:1024 sc1{NTP}")
        A.raw(f"    s_mov_b32 exec_lo, 0x0f0f0f0f")
        A.raw(f"    s_mov_b32 exec_hi, 0x0f0f0f0f")
        A.raw(f"    buffer_load_dword v23, v{t0}, s[{WQ_}:{WQ_+3}], s48 offen sc1{NTP}")
        A.raw(f"    s_mov_b64 exec, -1")
        A.raw("K1_DPF3:")
    P2 = Pool('v', 24, 168)
    aaddr = [P2.alloc() for _ in range(4)]
    baddr = P2.alloc()
    vL2E, vza, vpq = P2.alloc(), P2.alloc(), P2.alloc()
    I(f"s_lshl_b32 s48, s{sC0}, 14")
    I(f"s_add_u32 s48, s48, {LDS_X}")
    I(f"v_lshl_add_u32 v{t0}, v{vM}, 8, s48")
    I(f"v_xor_b32 v{t1}, v{vG}, v{vM}")
    I(f"v_lshl_add_u32 v{aaddr[0]}, v{t1}, 4, v{t0}")
    for ks in range(1, 4): I(f"v_xor_b32 v{aaddr[ks]}, {64*ks}, v{aaddr[0]}")
    I(f"v_bfe_u32 v{t0}, v0, 2, 2")
    I(f"v_bfe_u32 v{t1}, v0, 3, 1")
    I(f"v_and_b32 v{t2}, 1, v{vG}")
    I(f"v_lshl_or_b32 v{t1}, v{t2}, 1, v{t1}")
    I(f"v_xor_b32 v{t1}, s{sW}, v{t1}")
    I(f"v_lshl_add_u32 v{t0}, v{vG}, 3, v{t0}")
    I(f"v_lshlrev_b32 v{t0}, 7, v{t0}")
    I(f"v_lshl_add_u32 v{t0}, v{t1}, 5, v{t0}")
    I(f"v_and_b32 v{t1}, 3, v0")
    I(f"v_lshl_add_u32 v{baddr}, v{t1}, 3, v{t0}")
    baddr2 = P2.alloc()
    I(f"v_add_u32 v{baddr2}, 49152, v{baddr}")
    acc = [[P2.alloc(4, 4) for seg in range(3)] for mt in range(4)]
    af = [[P2.alloc(4, 4) for mt in range(4)] for _ in range(3)]
    bf = [[P2.alloc(4, 4) for seg in range(3)] for _ in range(3)]
    tt = [P.alloc() for _ in range(8)]
    ones = P.alloc(4, 4)
    for i in range(4): I(f"v_mov_b32 v{ones+i}, 0x3f803f80")
    I(f"v_mov_b32 v{vL2E}, {hex(LOG2E)}")
    I(f"s_lshl_b32 s48, s{sJ}, 2")
    I(f"s_add_u32 s48, s48, s{sW}")
    I(f"s_lshl_b32 s52, s48, 15")
    I(f"s_lshl_b32 s50, s{sS1}, 10")
    I(f"s_add_u32 s52, s52, s50")
    I(f"s_add_u32 s52, s52, {OFF_KVP}")
    I(f"s_lshl_b32 s51, s48, 11")
    I(f"s_lshl_b32 s50, s{sS1}, 6")
    I(f"s_add_u32 s51, s51, s50")
    I(f"s_add_u32 s51, s51, {OFF_ZP}")
    I(f"s_lshl_b32 s53, s{sS1}, 16")
    I(f"s_lshl_b32 s50, s48, 9")
    I(f"s_add_u32 s53, s53, s50")
    I(f"s_add_u32 s53, s53, {OFF_PQ}")
    I(f"v_lshlrev_b32 v{vl2}, 4, v0")
    I(f"v_lshlrev_b32 v{vza}, 2, v{vM}")
    I(f"v_lshlrev_b32 v{vpq}, 3, v0")
    def read_list(gs):
        ks, buf, slot = gs & 3, gs % 3, (gs >> 1) & 3
        ba = baddr2 if slot >= 2 else baddr
        L_ = []
        for seg in range(3):
            for half in range(2):
                L_.append(f"ds_read_b64_tr_b16 v[{bf[buf][seg]+2*half}:{bf[buf][seg]+2*half+1}], v{ba} offset:{(slot&1)*24576 + seg*8192 + (gs&1)*4096 + half*512}")
        for mt in range(4):
            L_.append(f"ds_read_b128 v[{af[buf][mt]}:{af[buf][mt]+3}], v{aaddr[ks]} offset:{mt*4096}")
        return L_
    def mfma_list(gs, mts=range(4)):
        buf = gs % 3
        L_ = []
        for mt in mts:
            for seg in (1, 2, 0):
                c = acc[mt][seg]
                cs = "0" if gs == 0 else f"v[{c}:{c+3}]"
                a_, b_ = af[buf][mt], bf[buf][seg]
                if seg == 0: a_, b_ = b_, a_
                L_.append(f"v_mfma_f32_16x16x32_bf16 v[{c}:{c+3}], v[{a_}:{a_+3}], v[{b_}:{b_+3}], {cs}")
        return L_
    def mfmas(gs):
        for x_ in mfma_list(gs): I(x_)
    def advance(ci):
        I(f"s_add_u32 s48, s{sC0}, {ci+1}")
        I(f"s_and_b32 s48, s48, 3")
        I(f"s_cmp_eq_u32 s48, 0")
        I(f"s_movk_i32 s49, 16384")
        I(f"s_cselect_b32 s48, {hex(-49152 & 0xffffffff)}, s49")
        for ks in range(4): I(f"v_add_u32 v{aaddr[ks]}, s48, v{aaddr[ks]}")
    ST.stamp()
    GV = int(os.environ.get("GV", "1"))
    done = 0
    if GV == 0:
      for gs in range(16):
        if gs & 1 == 0:
            if gs == 14:
                while done < gs: mfmas(done); done += 1
            if gs & 3 == 0 and gs: advance((gs >> 2) - 1)
            A.barrier()
            if gs in (0, 4, 8, 14): ST.stamp()
        rl = read_list(gs)
        if done <= gs - 2:
            ml = mfma_list(done); done += 1
            for k_, m_ in enumerate(ml):
                I(m_)
                if k_ < len(rl): I(rl[k_])
        else:
            for r_ in rl: I(r_)
    else:
      for c in range(8):
        gs = 2 * c
        if gs & 3 == 0 and gs: advance((gs >> 2) - 1)
        A.barrier()
        if gs in (0, 4, 8, 14): ST.stamp()
        rl = read_list(gs) + read_list(gs + 1)
        ml = mfma_list(gs - 1) if c else []
        ri = 0
        for m_ in ml:
            I(m_)
            for _ in range(2):
                if ri < 14: I(rl[ri]); ri += 1
        ml = mfma_list(gs)
        while ri < (14 if c else 14): I(rl[ri]); ri += 1
        for m_ in ml:
            I(m_)
            if ri < 20: I(rl[ri]); ri += 1
        done = gs + 1
    while done < 16: mfmas(done); done += 1
    ST.stamp()
    fr = af[1]
    pkq = [fr[0], fr[1]]; vq = [fr[2], fr[3]]
    kvacc, zacc = bf[1][0], bf[1][1]
    def phi4(k0):
        for pr in range(2): I(f"v_cvt_pk_bf16_f32 v{tt[pr]}, v{k0+2*pr}, v{k0+2*pr+1}")
        for pr in range(2):
            I(f"v_lshlrev_b32 v{k0+2*pr}, 16, v{tt[pr]}")
            I(f"v_and_b32 v{k0+2*pr+1}, 0xffff0000, v{tt[pr]}")
        for i in range(4): I(f"v_mul_f32 v{tt[4+i]}, v{vL2E}, v{k0+i}")
        for i in range(4): I(f"v_exp_f32 v{tt[4+i]}, v{tt[4+i]} clamp")
        for i in range(4): I(f"v_max_f32 v{k0+i}, 0x358637bd, v{k0+i}")
        for i in range(4): I(f"v_add_f32 v{k0+i}, v{k0+i}, v{tt[4+i]}")
    for mt in range(4):
        k0 = acc[mt][1]; v0_ = acc[mt][2]
        for pr in range(2):
            I(f"v_cvt_pk_bf16_f32 v{vq[mt>>1] + 2*(mt&1) + pr}, v{v0_+2*pr}, v{v0_+2*pr+1}")
        phi4(k0)
        for pr in range(2):
            I(f"v_cvt_pk_bf16_f32 v{pkq[mt>>1] + 2*(mt&1) + pr}, v{k0+2*pr}, v{k0+2*pr+1}")
        if mt & 1:
            h2 = mt >> 1
            cs = "0" if h2 == 0 else f"v[{kvacc}:{kvacc+3}]"
            cz = "0" if h2 == 0 else f"v[{zacc}:{zacc+3}]"
            I(f"v_mfma_f32_16x16x32_bf16 v[{kvacc}:{kvacc+3}], v[{vq[h2]}:{vq[h2]+3}], v[{pkq[h2]}:{pkq[h2]+3}], {cs}")
            I(f"v_mfma_f32_16x16x32_bf16 v[{zacc}:{zacc+3}], v[{ones}:{ones+3}], v[{pkq[h2]}:{pkq[h2]+3}], {cz}")
    for mt in range(4):
        q0 = acc[mt][0]; o_ = acc[mt][2]
        phi4(q0)
        I(f"v_cvt_pk_bf16_f32 v{o_}, v{q0}, v{q0+1}")
        I(f"v_cvt_pk_bf16_f32 v{o_+1}, v{q0+2}, v{q0+3}")
        I(f"buffer_store_dwordx2 v[{o_}:{o_+1}], v{vpq}, s[{WS_}:{WS_+3}], s53 offen {SC}")
        if mt < 3: I(f"s_add_u32 s53, s53, 16384")
        if mt == 0:
            I(f"buffer_store_dwordx4 v[{kvacc}:{kvacc+3}], v{vl2}, s[{WS_}:{WS_+3}], s52 offen {SC}")
            I("s_mov_b64 exec, 0xffff")
            I(f"buffer_store_dword v{zacc}, v{vza}, s[{WS_}:{WS_+3}], s51 offen {SC}")
            I("s_mov_b64 exec, -1")
    ST.stamp()
    ST.dump(sW, WS_)
    I("s_endpgm")
    return max(P.hi, P2.hi)

class WTask:
    def __init__(self, A, sH, R_, Iq, orr, oii, temps):
        self.A, self.sH = A, sH
        self.R_, self.Iq, self.orr, self.oii = R_, Iq, orr, oii
        self.t0, self.t1, self.t2, self.t3 = temps
    def issue(self):
        A = self.A; I = A.I; sH = self.sH
        R_, Iq, orr, oii, t0, t1, t2, t3 = self.R_, self.Iq, self.orr, self.oii, self.t0, self.t1, self.t2, self.t3
        srd(A, WR_, 8, 1052672)
        srd(A, WI_, 10, 1052672)
        I(f"s_lshl_b32 s68, s2, 1")
        I(f"s_add_u32 s68, s68, s{sH}")
        I(f"s_add_u32 s49, s2, 512")
        I(f"s_cmp_eq_u32 s{sH}, 2")
        I(f"s_cselect_b32 s68, s49, s68")
        I(f"s_cmp_eq_u32 s{sH}, 3")
        I(f"s_cselect_b32 s68, 1024, s68")
        I(f"s_lshr_b32 s49, s68, 1")
        I(f"s_lshr_b32 s50, s49, 3")
        I(f"s_and_b32 s51, s49, 7")
        I(f"s_lshl_b32 s51, s51, 8")
        I(f"s_add_u32 s50, s50, s51")
        I(f"v_lshl_add_u32 v{t0}, v{vG}, 6, s50")
        I(f"v_sub_u32 v{t1}, 2048, v{t0}")
        I(f"v_and_b32 v{t1}, 2047, v{t1}")
        I(f"v_mul_u32_u24 v{t0}, 514, v{t0}")
        I(f"v_mul_u32_u24 v{t1}, 514, v{t1}")
        I(f"s_lshl_b32 s69, s49, 13")
        I(f"s_add_u32 s69, s69, {OFF_WEFF}")
        I(f"v_lshlrev_b32 v{t3}, 5, v{vM}")
        I(f"v_add_u32 v{t2}, v{t0}, v{t3}")
        I(f"v_sub_u32 v{t3}, v{t1}, v{t3}")
        I(f"v_add_u32 v{t3}, 482, v{t3}")
        I(f"v_add_u32 v{t0}, 512, v{t0}")
        I(f"s_bitcmp1_b32 s68, 0")
        I(f"s_cselect_b64 s[70:71], -1, 0")
        I(f"v_cndmask_b32 v{t2}, v{t2}, v{t3}, s[70:71]")
        I(f"v_cndmask_b32 v{t1}, v{t1}, v{t0}, s[70:71]")
    def go(self):
        A = self.A; I = A.I
        R_, Iq, orr, oii, t0, t1, t2, t3 = self.R_, self.Iq, self.orr, self.oii, self.t0, self.t1, self.t2, self.t3
        I(f"s_cmp_ge_u32 s68, 528")
        A.wait_lg_all()
        I("s_cbranch_scc1 K1_WISSUED")
        for k in range(2):
            I(f"buffer_load_dwordx4 v[{R_+4*k}:{R_+4*k+3}], v{t2}, s[{WR_}:{WR_+3}], 0 offen offset:{16*k}{NTW}")
            I(f"buffer_load_dwordx4 v[{Iq+4*k}:{Iq+4*k+3}], v{t2}, s[{WI_}:{WI_+3}], 0 offen offset:{16*k}{NTW}")
        I(f"buffer_load_ushort v{orr}, v{t1}, s[{WR_}:{WR_+3}], 0 offen")
        I(f"buffer_load_ushort v{oii}, v{t1}, s[{WI_}:{WI_+3}], 0 offen")
        A.drain_hazards()
        A.label("K1_WISSUED")
    def finish(self):
        A = self.A; I = A.I
        R_, Iq, o, orr, oii, t0, t1, t2, t3 = self.R_, self.Iq, self.o, self.orr, self.oii, self.t0, self.t1, self.t2, self.t3
        I(f"s_cmp_ge_u32 s68, 528")
        A.drain_hazards()
        I("s_cbranch_scc1 K1_WDONE")
        I(f"v_lshlrev_b32 v{t3}, 11, v{vG}")
        I(f"v_lshl_add_u32 v{t3}, v{vM}, 4, v{t3}")
        I("s_mov_b32 s72, 0x05040100"); I("s_mov_b32 s73, 0x07060302")
        I("s_mov_b32 s74, 0x00010001"); I("s_mov_b32 s75, 0x00010001")
        I(f"s_bitcmp1_b32 s68, 0")
        I("s_cbranch_scc1 K1_WMIR")
        for mir in range(2):
            if mir: A.label("K1_WMIR")
            if mir:
                for k in range(8): I(f"v_xor_b32 v{Iq+k}, 0x80008000, v{Iq+k}")
            for c in range(16):
                tq = 15 - c if mir else c
                I(f"v_perm_b32 v{o + 4*(c&3) + (c>>2)}, v{Iq+(tq>>1)}, v{R_+(tq>>1)}, s{72+(tq&1)}")
            I("s_mov_b64 exec, s[74:75]")
            I(f"v_lshlrev_b32 v{t0}, 16, v{o}")
            I(f"v_and_b32 v{t1}, 0xffff0000, v{o}")
            I(f"v_lshlrev_b32 v{orr}, 16, v{orr}")
            I(f"v_lshlrev_b32 v{oii}, 16, v{oii}")
            I(f"v_add_f32 v{t0}, v{t0}, v{orr}")
            I(f"v_add_f32 v{t1}, v{t1}, v{oii}" if mir else f"v_sub_f32 v{t1}, v{t1}, v{oii}")
            I(f"v_mul_f32 v{t0}, 0.5, v{t0}")
            I(f"v_mul_f32 v{t1}, 0.5, v{t1}")
            I(f"v_cvt_pk_bf16_f32 v{o}, v{t0}, v{t1}")
            I("s_mov_b64 exec, -1")
            for k4 in range(4):
                I(f"buffer_store_dwordx4 v[{o+4*k4}:{o+4*k4+3}], v{t3}, s[{WS_}:{WS_+3}], s69 offen offset:{512*k4 + 256*mir} {SC}")
            A.nop(2)
            A.drain_hazards()
            if not mir: I("s_branch K1_WDONE")
        A.label("K1_WDONE")

def gen_fft(A, ST):
    I = A.I
    sJ = globals()["sJ"]
    P = Pool('v', 3, 168)
    sH = 21
    I(f"s_sub_u32 s{sH}, s{sW}, 4")
    if int(os.environ.get("PRIO", "3")) & 2: I("s_setprio 2")
    t0, t1, t2, t3 = [P.alloc() for _ in range(4)]
    kA, kB = P.alloc(), P.alloc()
    if int(os.environ.get("PREF", "1")) & 2:
        I(f"s_sub_u32 s49, s2, 160")
        I(f"s_lshl_b32 s48, s{sH}, 4")
        I(f"s_and_b32 s48, s48, 32")
        I(f"s_or_b32 s48, s48, s49")
        I(f"s_cmp_ge_u32 s48, 32")
        I("s_cbranch_scc1 K1_NOWO")
        A.raw("    s_load_dwordx2 s[50:51], s[0:1], 16")
        I(f"s_and_b32 s48, s49, 7")
        I(f"s_lshr_b32 s52, s49, 4")
        I(f"s_lshl_b32 s52, s52, 3")
        I(f"s_add_u32 s48, s48, s52")
        I(f"s_lshl_b32 s48, s48, 1")
        I(f"s_bfe_u32 s52, s49, 0x10003")
        I(f"s_add_u32 s48, s48, s52")
        I(f"s_lshl_b32 s48, s48, 14")
        I(f"s_lshl_b32 s52, s{sH}, 13")
        I(f"s_add_u32 s48, s48, s52")
        I(f"v_lshlrev_b32 v{t0}, 7, v0")
        A.raw("    s_waitcnt lgkmcnt(0)")
        srd(A, 72, 50, 524288)
        A.raw(f"    buffer_load_dword v{t3}, v{t0}, s[72:75], s48 offen sc1")
        A.raw("    s_waitcnt vmcnt(0)")
        A.raw("K1_NOWO:")
    I(f"s_and_b32 s22, s{sJ}, 6")
    I(f"s_and_b32 s23, s{sH}, 1")
    I(f"s_or_b32 s22, s22, s23")
    I(f"s_and_b32 s23, s{sJ}, 1")
    I(f"s_lshl_b32 s23, s23, 1")
    I(f"s_lshr_b32 s{sH}, s{sH}, 1")
    I(f"s_add_u32 s{sH}, s{sH}, s23")
    sJ = 22
    split_consts(A, kA, kB)
    srd(A, WS_, 14, WS_BYTES)
    tr1 = [[P.alloc(4, 4) for hl in range(2)] for u in range(2)]
    cv = P.alloc(8, 4)
    vP0, vP1, vK, vSg = P.alloc(), P.alloc(), P.alloc(), P.alloc()
    I(f"v_lshrrev_b32 v{t0}, 1, v{vM}")
    I(f"s_lshl_b32 s53, s{sH}, 3")
    I(f"v_add_u32 v{t0}, s53, v{t0}")
    I(f"v_and_b32 v{t1}, 1, v{vM}")
    I(f"v_mul_u32_u24 v{vP0}, s{sS1}, v{t0}")
    I(f"v_lshl_add_u32 v{vP0}, v{t1}, 9, v{vP0}")
    I(f"v_lshlrev_b32 v{vP1}, 5, v{t0}")
    I(f"v_and_b32 v{vSg}, 1, v{t0}")
    I(f"v_mul_u32_u24 v{vSg}, 0x8000, v{vSg}")
    I(f"v_lshl_or_b32 v{vSg}, v{vSg}, 16, v{vSg}")
    I(f"s_cmp_eq_u32 s{sH}, 0")
    I(f"s_cselect_b32 s54, 0x00020002, 0")
    I(f"s_mov_b32 s55, s54")
    I(f"s_mov_b64 exec, s[54:55]")
    I(f"v_mov_b32 v{vP1}, 1024")
    I(f"v_mov_b32 v{vP0}, 0")
    I(f"s_mov_b64 exec, -1")
    I(f"v_lshlrev_b32 v{t0}, 3, v{vG}")
    I(f"v_mad_u32_u24 v{vP0}, v{t0}, v{vP1}, v{vP0}")
    I(f"v_cvt_f32_u32 v{vP0}, v{vP0}")
    I(f"v_cvt_f32_u32 v{vP1}, v{vP1}")
    I(f"v_mul_f32 v{vP0}, 0x3a000000, v{vP0}")
    I(f"v_mul_f32 v{vP1}, 0x3a000000, v{vP1}")
    I(f"v_add_f32 v{t0}, v{vP0}, v{vP1}")
    I(f"v_cos_f32 v{vK}, v{vP1}")
    I(f"v_cos_f32 v{cv}, v{vP0}")
    I(f"v_cos_f32 v{cv+1}, v{t0}")
    I(f"v_add_f32 v{vK}, v{vK}, v{vK}")
    for j_ in range(2, 8): I(f"v_fma_f32 v{cv+j_}, v{vK}, v{cv+j_-1}, -v{cv+j_-2}")
    split_many(A, [(tr1[0][0] + pr, tr1[0][1] + pr, cv + 2*pr, cv + 2*pr + 1, None, None) for pr in range(4)], kA, kB)
    for hl in range(2):
        for pr in range(4): I(f"v_xor_b32 v{tr1[1][hl]+pr}, v{vSg}, v{tr1[0][hl]+pr}")
    tr2 = [[P.alloc(4, 4) for cs in range(2)] for e in range(4)]
    cd, sd, rc, rs = P.alloc(), P.alloc(), P.alloc(), P.alloc()
    cs8 = P.alloc(8, 4)
    ce = [cs8 + k for k in range(4)]; se = [cs8 + 4 + k for k in range(4)]
    c1 = [cv + e for e in range(4)]; s1_ = [cv + 4 + e for e in range(4)]
    I(f"s_lshl_b32 s53, s{sJ}, 2")
    I(f"v_lshl_add_u32 v{t0}, v{vG}, 5, s53")
    I(f"v_mul_u32_u24 v{vP0}, v{t0}, v{vM}")
    I(f"v_cvt_f32_u32 v{vP0}, v{vP0}")
    I(f"v_mul_f32 v{vP0}, 0x3b000000, v{vP0}")
    I(f"v_cvt_f32_u32 v{vP1}, v{vM}")
    I(f"v_mul_f32 v{t0}, 0x3e800000, v{vP1}")
    I(f"v_mul_f32 v{vP1}, 0x3b000000, v{vP1}")
    I(f"v_cos_f32 v{ce[0]}, v{vP0}"); I(f"v_sin_f32 v{se[0]}, v{vP0}")
    I(f"v_cos_f32 v{cd}, v{vP1}"); I(f"v_sin_f32 v{sd}, v{vP1}")
    I(f"v_cos_f32 v{rc}, v{t0}"); I(f"v_sin_f32 v{rs}, v{t0}")
    I(f"v_rndne_f32 v{rc}, v{rc}"); I(f"v_rndne_f32 v{rs}, v{rs}")
    I(f"v_and_b32 v{vSg}, 1, v{vM}")
    I(f"v_mul_u32_u24 v{vSg}, 0x8000, v{vSg}")
    I(f"v_lshl_or_b32 v{vSg}, v{vSg}, 16, v{vSg}")
    for e in range(1, 4):
        I(f"v_mul_f32 v{t0}, v{se[e-1]}, v{sd}")
        I(f"v_mul_f32 v{t1}, v{ce[e-1]}, v{sd}")
        I(f"v_fma_f32 v{ce[e]}, v{ce[e-1]}, v{cd}, -v{t0}")
        I(f"v_fma_f32 v{se[e]}, v{se[e-1]}, v{cd}, v{t1}")
    for e in range(4):
        I(f"v_mul_f32 v{t0}, v{se[e]}, v{rs}")
        I(f"v_mul_f32 v{t1}, v{ce[e]}, v{rs}")
        I(f"v_fma_f32 v{c1[e]}, v{ce[e]}, v{rc}, -v{t0}")
        I(f"v_fma_f32 v{s1_[e]}, v{se[e]}, v{rc}, v{t1}")
    split_many(A, [(tr2[e][0], tr2[e][0] + 2, ce[e], c1[e], None, None) for e in range(4)] +
                  [(tr2[e][1], tr2[e][1] + 2, se[e], s1_[e], None, None) for e in range(4)], kA, kB)
    for e in range(4):
        for cs in range(2):
            I(f"v_xor_b32 v{tr2[e][cs]+1}, v{vSg}, v{tr2[e][cs]}")
            I(f"v_xor_b32 v{tr2[e][cs]+3}, v{vSg}, v{tr2[e][cs]+2}")
    a0, a1 = P.alloc(), P.alloc()
    I(f"v_bfe_u32 v{t0}, v0, 2, 2")
    I(f"v_lshl_add_u32 v{t0}, v{vG}, 3, v{t0}")
    I(f"v_and_b32 v{t1}, 3, v0")
    I(f"s_lshr_b32 s53, s{sJ}, 1")
    I(f"v_lshl_add_u32 v{t1}, v{t1}, 2, s53")
    I(f"v_and_b32 v{t2}, 15, v{t0}")
    I(f"v_xor_b32 v{t1}, v{t1}, v{t2}")
    I(f"v_lshlrev_b32 v{t1}, 4, v{t1}")
    I(f"v_lshl_add_u32 v{t1}, v{t0}, 8, v{t1}")
    I(f"s_and_b32 s53, s{sJ}, 1")
    I(f"s_lshl_b32 s53, s53, 3")
    I(f"s_add_u32 s53, s53, {LDS_X}")
    I(f"v_add_u32 v{a0}, s53, v{t1}")
    I(f"v_xor_b32 v{a1}, 64, v{a0}")
    vcs, vsn, vaddr, vaddr2 = cd, sd, rc, rs
    I(f"v_cvt_f32_u32 v{vcs}, s{sS1}")
    I(f"v_mul_f32 v{vcs}, 0x3c800000, v{vcs}")
    I(f"v_sin_f32 v{vsn}, v{vcs}")
    I(f"v_cos_f32 v{vcs}, v{vcs}")
    I(f"v_and_b32 v{t0}, 3, v0")
    I(f"v_lshlrev_b32 v{vaddr2}, 7, v{t0}")
    I(f"v_bfe_u32 v{t0}, v0, 2, 2")
    I(f"v_lshl_add_u32 v{vaddr2}, v{t0}, 4, v{vaddr2}")
    I(f"v_lshl_add_u32 v{vaddr}, v{vG}, 17, v{vaddr2}")
    I(f"s_lshl_b32 s62, s{sH}, 19")
    I(f"s_lshl_b32 s53, s{sS1}, 11")
    I(f"s_lshr_b32 s66, s{sJ}, 1")
    I(f"s_lshl_b32 s66, s66, 9")
    I(f"s_add_u32 s66, s66, s53")
    I(f"s_and_b32 s53, s{sJ}, 1")
    I(f"s_lshl_b32 s53, s53, 6")
    I(f"s_add_u32 s66, s66, s53")
    if OFF_T2: I(f"s_add_u32 s66, s66, {OFF_T2}")
    I(f"s_add_u32 s62, s62, s66")
    I(f"s_add_u32 s63, s62, {65536}")
    I(f"s_add_u32 s66, s66, {32*65536}")
    I(f"s_cmp_eq_u32 s{sH}, 0")
    I(f"s_cselect_b64 s[54:55], 0xffff, 0")
    ST.stamp()
    A.barrier(); A.barrier(); A.barrier()
    ST.stamp()
    F = Rec(); FI = F.I
    xa = [[P.alloc(4, 4) for u in range(2)] for tt in range(4)]
    d1 = [P.alloc(4, 4) for tt in range(4)]
    for tt in range(4):
        for u in range(2):
            FI(f"ds_read_b64_tr_b16 v[{xa[tt][u]}:{xa[tt][u]+1}], v{a0} offset:{tt*16384+u*8192}")
            FI(f"ds_read_b64_tr_b16 v[{xa[tt][u]+2}:{xa[tt][u]+3}], v{a1} offset:{tt*16384+u*8192+1024}")
    for tt in range(4):
        for u in range(2):
            for hl in range(2 if K1P >= 2 else 1):
                cs = "0" if (u == 0 and hl == 0) else f"v[{d1[tt]}:{d1[tt]+3}]"
                FI(f"v_mfma_f32_16x16x32_bf16 v[{d1[tt]}:{d1[tt]+3}], v[{xa[tt][u]}:{xa[tt][u]+3}], v[{tr1[u][hl]}:{tr1[u][hl]+3}], {cs}")
    F.barrier()
    dh = [P.alloc(4, 4) for e in range(4)]; dl = [P.alloc(4, 4) for e in range(4)]
    pc = [xa[e][0] for e in range(4)]; ps = [xa[e][1] for e in range(4)]
    for eh in range(2):
        if K1P >= 3:
            split_many(F, [(dh[e] + pr, dl[e] + pr, d1[2*pr] + e, d1[2*pr+1] + e, dh[e] + 2 + pr, dl[e] + 2 + pr) for e in (2*eh, 2*eh+1) for pr in range(2)], kA, kB)
        else:
            for e in (2*eh, 2*eh+1):
                for pr in range(2):
                    FI(f"v_cvt_pk_bf16_f32 v{dh[e]+pr}, v{d1[2*pr]+e}, v{d1[2*pr+1]+e}")
                    FI(f"v_mov_b32 v{dh[e]+2+pr}, v{dh[e]+pr}")
        for e in (2*eh, 2*eh+1):
            for (acc_, cs_) in ((pc[e], 0), (ps[e], 1)):
                FI(f"v_mfma_f32_16x16x32_bf16 v[{acc_}:{acc_+3}], v[{dh[e]}:{dh[e]+3}], v[{tr2[e][cs_]}:{tr2[e][cs_]+3}], 0")
                if K1P >= 3: FI(f"v_mfma_f32_16x16x32_bf16 v[{acc_}:{acc_+3}], v[{dl[e]}:{dl[e]+3}], v[{tr2[e][cs_]}:{tr2[e][cs_]+3}], v[{acc_}:{acc_+3}]")
        if K1P >= 3 or eh == 1: F.barrier()
    rq = [tr1[0][0], tr1[0][1], tr1[1][0]]; iq = [tr1[1][1], d1[0], d1[1]]
    re = [[rq[ks2] + e for e in range(4)] for ks2 in range(3)]
    im = [[iq[ks2] + e for e in range(4)] for ks2 in range(3)]
    for e in range(4):
        for ks2 in range(2):
            FI(f"v_add_f32 v{re[ks2][e]}, v{pc[e]+2*ks2}, v{ps[e]+2*ks2+1}")
            FI(f"v_sub_f32 v{im[ks2][e]}, v{pc[e]+2*ks2+1}, v{ps[e]+2*ks2}")
    FI("s_mov_b64 exec, s[54:55]")
    for e in range(4):
        FI(f"v_mov_b32 v{re[0][e]}, v{pc[e]}")
        FI(f"v_xor_b32 v{im[0][e]}, 0x80000000, v{ps[e]}")
    FI("s_mov_b64 exec, -1")
    gr = [(dh[0], dh[1]), (dh[2], dh[3]), (dl[0], dl[1])]
    def granule(R, ks2):
        gh, gl = gr[ks2]
        for pr in range(2):
            R.I(f"v_cvt_pk_bf16_f32 v{gh+pr}, v{re[ks2][2*pr]}, v{re[ks2][2*pr+1]}")
            R.I(f"v_cvt_pk_bf16_f32 v{gh+2+pr}, v{im[ks2][2*pr]}, v{im[ks2][2*pr+1]}")
    for ks2 in range(2): granule(F, ks2)
    for ks2 in range(2):
        gh, gl = gr[ks2]
        FI(f"buffer_store_dwordx4 v[{gh}:{gh+3}], v{vaddr}, s[{WS_}:{WS_+3}], s{62+ks2} offen {T2SC}")
    NOFFT = int(os.environ.get("NOFFT", "0"))
    for u in F.units():
        if NOFFT and not (u[0][0] == 'C'): continue
        play(A, u)
    ST.stamp()
    I(f"s_cmp_lg_u32 s{sH}, 0")
    A.drain_hazards()
    I("s_cbranch_scc1 K1_NOSP")
    for e in range(4):
        I(f"v_mul_f32 v{t2}, v{ps[e]+1}, v{vsn}")
        I(f"v_fma_f32 v{re[2][e]}, v{pc[e]+1}, v{vcs}, -v{t2}")
        I(f"v_mul_f32 v{t3}, v{ps[e]+1}, v{vcs}")
        I(f"v_fma_f32 v{im[2][e]}, -v{pc[e]+1}, v{vsn}, -v{t3}")
    granule(A, 2)
    I("s_mov_b64 exec, 0xffff")
    gh, gl = gr[2]
    I(f"buffer_store_dwordx4 v[{gh}:{gh+3}], v{vaddr2}, s[{WS_}:{WS_+3}], s66 offen {T2SC}")
    vmq_save = list(A.vmq)
    I("s_mov_b64 exec, -1")
    A.label("K1_NOSP")
    A.vmq = vmq_save
    ST.stamp()
    if STAMPS:
        for _ in range(2 if K1P >= 3 else 3): A.barrier()
    ST.dump(sW, WS_)
    return P.hi

def gen_k1():
    A = Asm(); I = A.I
    I("s_cmp_ge_u32 s2, 256")
    I("s_cbranch_scc1 K1_END")
    ST = Stamper(A, 0); ST.first()
    I("s_load_dwordx4 s[4:7], s[0:1], 0")
    I("s_load_dwordx4 s[8:11], s[0:1], 32")
    I("s_load_dwordx2 s[12:13], s[0:1], 48")
    I("s_load_dwordx2 s[14:15], s[0:1], 72")
    I("v_lshrrev_b32 v1, 6, v0")
    I(f"v_readfirstlane_b32 s{sW}, v1")
    if int(os.environ.get("CPF", "0")):
        I(f"s_cmp_ge_u32 s{sW}, 2")
        I("s_cbranch_scc1 K1_NOCPF")
        A.raw("    s_getpc_b64 s[22:23]")
        A.raw("K1_PC0:")
        A.raw("    v_lshlrev_b32 v3, 7, v0")
        A.raw("    v_min_u32 v3, gm_k2_kernel - K1_PC0 - 16, v3")
        A.raw("    global_load_dword v23, v3, s[22:23]")
        A.raw("K1_NOCPF:")
    I("v_and_b32 v0, 63, v0")
    decode_wg(A, "s2", sJ, sS1)
    I(f"s_add_u32 s{sC0}, s{sS1}, s{sJ}")
    I(f"s_and_b32 s{sC0}, s{sC0}, {int(os.environ.get('ROT', '3'))}")
    I(f"v_lshrrev_b32 v{vG}, 4, v0")
    I(f"v_and_b32 v{vM}, 15, v0")
    I(f"s_cmp_lt_u32 s{sW}, 8")
    A.drain_hazards()
    I("s_cbranch_scc1 K1_NOTL")
    lg_save = list(A.lgq)
    h1 = gen_loader(A, ST)
    A.label("K1_NOTL"); A.lgq = list(lg_save); ST.begin_role()
    I(f"s_cmp_ge_u32 s{sW}, 4")
    I("s_cbranch_scc1 K1_FFT")
    h2 = gen_gemm(A, ST)
    A.label("K1_FFT"); A.lgq = list(lg_save); ST.begin_role()
    h3 = gen_fft(A, ST)
    A.label("K1_END")
    I("s_endpgm")
    return A.text(), max(h1, h2, h3), A.ninst

if __name__ == "__main__":
    t, vg, n = gen_k1()
    print(vg, n)
```
